```python
import torch

def _softmax(x, axis=-1):
    return torch.softmax(x, dim=axis)
def _gelu(x):
    return torch.nn.functional.gelu(x, approximate="tanh")
def _silu(x):
    return torch.nn.functional.silu(x)
def _sigmoid(x):
    return torch.sigmoid(x)
def _layernorm(x, axis=-1, eps=1e-5):
    m = x.mean(dim=axis, keepdim=True)
    v = x.var(dim=axis, keepdim=True, unbiased=False)
    return (x - m) / torch.sqrt(v + eps)
def _scatter_add(tgt, idx, src, axis=0):
    return tgt.clone().index_add_(axis, idx, src)
def _segment_sum(src, seg, n):
    out = torch.zeros((n,) + src.shape[1:], dtype=src.dtype)
    return out.index_add_(0, seg, src)
def _pad(x, pw):
    flat = tuple(v for pair in reversed(pw) for v in pair)
    return torch.nn.functional.pad(x, flat)

kernel_name = 'parallel_sum__softmax_full_mha__dense_activation_mish__prompt'

def setup_inputs():

    _w = (lambda a: (lambda t: t.to(torch.bfloat16) if t.is_floating_point() else t)(torch.as_tensor(a)))
    def _A_setup():
        B, S, D = 1, 2048, 512
        return {
            "x": _w((lambda *s: torch.randn(*s, dtype=torch.bfloat16) * 0.05)(B, S, D)),
            "wqkv": _w((lambda *s: torch.randn(*s, dtype=torch.bfloat16) * 0.05)(D, 3 * D)),
            "wo": _w((lambda *s: torch.randn(*s, dtype=torch.bfloat16) * 0.05)(D, D)),
        }
    _A_in = _A_setup()

    def _B_setup():
        B, S, D, F = 1, 2048, 512, 1792
        return {
            "x": _w((lambda *s: torch.randn(*s, dtype=torch.bfloat16) * 0.05)(B, S, D)),
            "w1": _w((lambda *s: torch.randn(*s, dtype=torch.bfloat16) * 0.8)(D, F) * (D ** -0.5)),
            "b1": _w((lambda *s: torch.randn(*s, dtype=torch.bfloat16) * 0.8)(F)),
            "w2": _w((lambda *s: torch.randn(*s, dtype=torch.bfloat16) * 0.2)(F, D) * (F ** -0.5)),
        }
    _B_in = _B_setup()

    return {
        "A_x": _A_in["x"],
        "A_wqkv": _A_in["wqkv"],
        "A_wo": _A_in["wo"],
        "B_x": _B_in["x"],
        "B_w1": _B_in["w1"],
        "B_b1": _B_in["b1"],
        "B_w2": _B_in["w2"],
    }

def reference(A_x, A_wqkv, A_wo, B_x, B_w1, B_b1, B_w2):
    def _A_ref(x, wqkv, wo):
        B, S, D = x.shape
        H = 32; Dh = D // H
        qkv = (lambda x, *d: x.permute(*d))((x @ wqkv).reshape(B, S, 3, H, Dh), 2, 0, 3, 1, 4)
        q, k, v = qkv[0], qkv[1], qkv[2]
        scale = Dh ** -0.5
        scores = torch.einsum("bhqd,bhkd->bhqk", q, k) * scale
        p = _softmax(scores, axis=-1)
        o = torch.einsum("bhqk,bhkd->bhqd", p, v)
        return (lambda x, *d: x.permute(*d))(o, 0, 2, 1, 3).reshape(B, S, D) @ wo

    def _B_ref(x, w1, b1, w2):
        h = torch.einsum("bsd,df->bsf", x, w1) + b1
        sp = torch.log1p(torch.exp(-torch.abs(h))) + torch.where(h > 0, h, torch.zeros_like(h))
        act = h * torch.tanh(sp)
        return torch.einsum("bsf,fd->bsd", act, w2)

    x = A_x
    xn = _layernorm(x, axis=-1)
    return x + _A_ref(xn, A_wqkv, A_wo) + _B_ref(xn, B_w1, B_b1, B_w2)
```

```python
import re

class Asm:
    def __init__(self):
        self.lines = []
    def __call__(self, s=""):
        for l in s.split("\n"):
            l = l.rstrip()
            if l.strip() == "":
                continue
            st = l.strip()
            if st.endswith(":") or st.startswith(".") or st.startswith(";"):
                self.lines.append(st)
            else:
                self.lines.append("  " + st)
    def extend(self, lst):
        for l in lst:
            self(l)
    def text(self):
        return "\n".join(self.lines) + "\n"

def vr(a, n=1):
    return f"v{a}" if n == 1 else f"v[{a}:{a+n-1}]"
def ar(a, n=1):
    return f"a{a}" if n == 1 else f"a[{a}:{a+n-1}]"
def sr(a, n=1):
    return f"s{a}" if n == 1 else f"s[{a}:{a+n-1}]"

REG_RE = re.compile(r"^(-|\|)?([vas])(?:(\d+)|\[(\d+):(\d+)\])\|?$")
def parse_operand(tok):
    tok = tok.strip()
    t = tok
    if t.startswith("abs(") and t.endswith(")"):
        t = t[4:-1]
    if t.startswith("-abs(") and t.endswith(")"):
        t = t[5:-1]
    if t.startswith("-|") and t.endswith("|"):
        t = t[2:-1]
    m = REG_RE.match(t)
    if m:
        k = m.group(2)
        if m.group(3) is not None:
            lo = hi = int(m.group(3))
        else:
            lo, hi = int(m.group(4)), int(m.group(5))
        return [(k, i) for i in range(lo, hi + 1)]
    if t == "vcc":
        return [("s", "vcc")]
    if t == "exec":
        return [("s", "exec")]
    if t == "m0":
        return [("s", "m0")]
    if t in ("vcc_lo", "vcc_hi"):
        return [("s", "vcc")]
    if t in ("exec_lo", "exec_hi"):
        return [("s", "exec")]
    return []

TRANS = ("v_exp_f32", "v_log_f32", "v_rcp_f32", "v_rsq_f32", "v_sqrt_f32", "v_sin_f32", "v_cos_f32", "v_exp_f16", "v_rcp_iflag_f32")

class Ins:
    __slots__ = ("text", "op", "ops", "mods", "dst", "src", "cls", "line", "srcA", "srcB", "srcC", "passes")
    pass

def split_ops(s):
    out, depth, cur = [], 0, ""
    for ch in s:
        if ch in "[(":
            depth += 1
        if ch in "])":
            depth -= 1
        if ch == "," and depth == 0:
            out.append(cur.strip()); cur = ""
        else:
            cur += ch
    if cur.strip():
        out.append(cur.strip())
    return out

def parse_ins(text, line):
    t = text.split(";")[0].strip()
    I = Ins(); I.text = t; I.line = line
    parts = t.split(None, 1)
    op = parts[0]
    for suf in ("_e32", "_e64"):
        if op.endswith(suf):
            op = op[:-len(suf)]
    I.op = op
    rest = parts[1] if len(parts) > 1 else ""
    ops = split_ops(rest)
    mods = ""
    if ops:
        w = ops[-1].split()
        if len(w) > 1:
            ops[-1] = w[0]; mods = " ".join(w[1:])
    I.ops = ops; I.mods = mods
    I.dst, I.src = [], []
    I.srcA = I.srcB = I.srcC = []
    I.passes = 0
    P = [parse_operand(o) for o in ops]
    if op.startswith("v_mfma"):
        I.cls = "mfma"
        I.dst = P[0]; I.srcA, I.srcB, I.srcC = P[1], P[2], P[3]
        I.src = P[1] + P[2] + P[3]
        I.passes = 8 if "32x32" in op else 4
    elif op.startswith("v_cmpx"):
        raise Exception("v_cmpx not supported by checker")
    elif op.startswith("v_cmp"):
        I.cls = "valu"; I.dst = P[0]; I.src = sum(P[1:], [])
    elif op in ("v_readfirstlane_b32", "v_readlane_b32"):
        I.cls = "valu"; I.dst = P[0]; I.src = sum(P[1:], [])
    elif op.startswith("v_permlane32_swap") or op.startswith("v_permlane16_swap"):
        I.cls = "valu"; I.dst = P[0] + P[1]; I.src = P[0] + P[1]
    elif op in ("v_add_co_u32", "v_sub_co_u32", "v_addc_co_u32", "v_subb_co_u32"):
        I.cls = "valu"; I.dst = P[0] + P[1]; I.src = sum(P[2:], [])
    elif op.startswith("v_"):
        I.cls = "valu"; I.dst = P[0]; I.src = sum(P[1:], [])
        if op in ("v_fmac_f32", "v_dot2c_f32_bf16", "v_pk_fmac_f16", "v_mac_f32") or "UNUSED_PRESERVE" in mods:
            I.src = I.src + P[0]
        if op == "v_cndmask_b32" and len(ops) == 3:
            I.src = I.src + [("s", "vcc")]
        if op == "v_writelane_b32":
            I.src = I.src + P[0]
    elif op.startswith("ds_"):
        I.cls = "ds"
        if op.startswith("ds_read") or op.startswith("ds_bpermute") or op.startswith("ds_permute") or op.startswith("ds_swizzle") or "_rtn" in op:
            I.dst = P[0]; I.src = sum(P[1:], [])
        else:
            I.src = sum(P, [])
    elif op.startswith("buffer_") or op.startswith("global_"):
        I.cls = "vmem"
        islds = (" lds" in (" " + mods)) or op.startswith("global_load_lds")
        if op.startswith("buffer_load") and not islds:
            I.dst = P[0]; I.src = sum(P[1:], [])
        elif op.startswith("buffer_load") and islds:
            I.src = sum(P, []) + [("s", "m0")]
        elif op.startswith("buffer_store"):
            I.src = sum(P, [])
        elif op.startswith("buffer_atomic"):
            I.src = sum(P, [])
            if "sc0" in mods: I.dst = P[0]
        elif op.startswith("global_load_lds"):
            I.src = sum(P, []) + [("s", "m0")]
        elif op.startswith("global_load"):
            I.dst = P[0]; I.src = sum(P[1:], [])
        elif op.startswith("global_store"):
            I.src = sum(P, [])
        elif op.startswith("global_atomic"):
            if "sc0" in mods:
                I.dst = P[0]; I.src = sum(P[1:], [])
            else:
                I.src = sum(P, [])
        else:
            raise Exception("unknown vmem " + t)
    elif op.startswith("s_load") or op.startswith("s_buffer_load") or op in ("s_memtime", "s_memrealtime"):
        I.cls = "smem"; I.dst = P[0]; I.src = sum(P[1:], [])
    elif op.startswith("s_"):
        I.cls = "salu"
        if op.startswith("s_cmp") or op in ("s_waitcnt", "s_nop", "s_barrier", "s_endpgm", "s_branch", "s_setprio", "s_sleep") or op.startswith("s_cbranch") or op == "s_bitcmp1_b32" or op == "s_bitcmp0_b32":
            I.src = sum(P, [])
        elif op == "s_setpc_b64":
            I.src = sum(P, [])
        elif "saveexec" in op:
            I.dst = P[0] + [("s", "exec")]; I.src = P[1] + [("s", "exec")]
        else:
            I.dst = P[0]; I.src = sum(P[1:], [])
            if op in ("s_addk_i32", "s_mulk_i32", "s_cmov_b32"):
                I.src = I.src + P[0]
    else:
        raise Exception("unknown instruction: " + t)
    return I

def parse_kernel(text, name):
    lines = text.split("\n")
    ins, labels = [], {}
    on = False
    for n, l in enumerate(lines, 1):
        st = l.split(";")[0].strip() if not l.strip().startswith(";") else ""
        if not st:
            if "@chk" in l and on:
                I = Ins(); I.text = l.strip(); I.op = "@chk"; I.cls = "ann"; I.dst = []; I.src = []; I.line = n; I.ops = []; I.mods = ""; I.passes = 0; I.srcA = I.srcB = I.srcC = []
                ins.append(I)
            continue
        if st == name + ":":
            on = True; continue
        if not on:
            continue
        if st.startswith(".section") or st.startswith(".amdhsa_kernel"):
            break
        if st.endswith(":"):
            labels[st[:-1]] = len(ins); continue
        if st.startswith("."):
            continue
        I = parse_ins(st, n)
        ins.append(I)
        if "@chk" in l:
            A = Ins(); A.text = ";" + l.split(";", 1)[1]; A.op = "@chk"; A.cls = "ann"; A.dst = []; A.src = []; A.line = n; A.ops = []; A.mods = ""; A.passes = 0; A.srcA = A.srcB = A.srcC = []
            ins.append(A)
    return ins, labels

def _val(tok, S):
    tok = tok.strip()
    m = re.match(r"^s(\d+)$", tok)
    if m: return S.get(int(m.group(1)))
    if tok == "m0": return S.get("m0")
    if tok == "vcc" or tok == "exec": return None
    try:
        return int(tok, 0) & 0xffffffff
    except Exception:
        try:
            import struct
            return struct.unpack("<I", struct.pack("<f", float(tok)))[0]
        except Exception:
            return None

def trace(ins, labels, init, maxsteps=400000, branch_default=None):
    S = dict(init); scc = None; pc = 0; out = []; force = {}
    M = 0xffffffff
    while True:
        if len(out) > maxsteps: raise Exception("trace too long")
        if pc >= len(ins): raise Exception("ran off the end")
        I = ins[pc]
        if I.cls == "ann":
            for kv in re.findall(r"(\w+)=([-\w$]+)", I.text.split("@chk", 1)[1]):
                k, v = kv
                v = init[v] if v in init else int(v, 0)
                if k.startswith("s") and k[1:].isdigit(): S[int(k[1:])] = v & M
                else: force[k] = v
            pc += 1; continue
        out.append(I)
        op = I.op; o = I.ops
        def setd(tok, v):
            m = re.match(r"^s(\d+)$", tok)
            if m: S[int(m.group(1))] = None if v is None else v & M
            elif tok == "m0": S["m0"] = None if v is None else v & M
        def clobber():
            for (k, r) in I.dst:
                if k == "s": S[r] = None
        if op == "s_endpgm": return out
        if op == "s_branch": pc = labels[o[0]]; continue
        if op.startswith("s_cbranch"):
            c = op[len("s_cbranch_"):]
            if c in ("scc0", "scc1"):
                if scc is None:
                    if "scc" in force: cv = force.pop("scc")
                    else: raise Exception(f"unknown scc at line {I.line}: {I.text}")
                else: cv = scc
                take = (cv == 1) if c == "scc1" else (cv == 0)
            else:
                key = c.replace("nz", "z")
                if key in force: z = force.pop(key)
                elif branch_default is not None and key in branch_default: z = branch_default[key]
                else: raise Exception(f"unknown {c} at line {I.line}")
                take = (z == 1) if c.endswith("z") and not c.endswith("nz") else (z == 0)
            if take: pc = labels[o[0]]
            else: pc += 1
            continue
        if I.cls == "salu":
            if op in ("s_mov_b32", "s_movk_i32"): setd(o[0], _val(o[1], S))
            elif op in ("s_add_u32", "s_add_i32", "s_sub_u32", "s_sub_i32", "s_mul_i32", "s_lshl_b32", "s_lshr_b32", "s_and_b32", "s_or_b32", "s_xor_b32", "s_min_u32", "s_max_u32", "s_mul_hi_u32", "s_andn2_b32", "s_lshl1_add_u32", "s_lshl2_add_u32", "s_lshl3_add_u32", "s_lshl4_add_u32", "s_bfe_u32"):
                a, b = _val(o[1], S), _val(o[2], S)
                if a is None or b is None:
                    setd(o[0], None)
                    if op not in ("s_mul_i32", "s_mul_hi_u32"): scc = None
                else:
                    if op in ("s_add_u32", "s_add_i32"): r = a + b; scc = int(r > M)
                    elif op in ("s_sub_u32", "s_sub_i32"): r = a - b; scc = int(r < 0)
                    elif op == "s_mul_i32": r = a * b
                    elif op == "s_mul_hi_u32": r = (a * b) >> 32
                    elif op == "s_lshl_b32": r = a << (b & 31); scc = int((r & M) != 0)
                    elif op == "s_lshr_b32": r = a >> (b & 31); scc = int(r != 0)
                    elif op == "s_and_b32": r = a & b; scc = int(r != 0)
                    elif op == "s_andn2_b32": r = a & ~b; scc = int((r & M) != 0)
                    elif op == "s_or_b32": r = a | b; scc = int(r != 0)
                    elif op == "s_xor_b32": r = a ^ b; scc = int(r != 0)
                    elif op == "s_min_u32": r = min(a, b); scc = int(a < b)
                    elif op == "s_max_u32": r = max(a, b); scc = int(a > b)
                    elif op == "s_bfe_u32": r = (a >> (b & 31)) & ((1 << ((b >> 16) & 127)) - 1); scc = int(r != 0)
                    elif op.startswith("s_lshl") and op.endswith("add_u32"): r = (a << int(op[6])) + b; scc = int(r > M)
                    setd(o[0], r)
            elif op == "s_addk_i32":
                a = _val(o[0], S); b = int(o[1], 0)
                setd(o[0], None if a is None else a + b); scc = None
            elif op == "s_cselect_b32":
                if scc is None: setd(o[0], None)
                else: setd(o[0], _val(o[1] if scc else o[2], S))
            elif op.startswith("s_cmp_"):
                a, b = _val(o[0], S), _val(o[1], S)
                if a is None or b is None: scc = None
                else:
                    c = op[6:]
                    if c.endswith("i32"):
                        a = a - (1 << 32) if a >> 31 else a; b = b - (1 << 32) if b >> 31 else b
                    c = c[:-4]
                    scc = int({"eq": a == b, "lg": a != b, "lt": a < b, "le": a <= b, "gt": a > b, "ge": a >= b}[c])
            elif op == "s_bitcmp1_b32":
                a, b = _val(o[0], S), _val(o[1], S)
                scc = None if a is None else (a >> b) & 1
            elif op == "s_bitcmp0_b32":
                a, b = _val(o[0], S), _val(o[1], S)
                scc = None if a is None else 1 - ((a >> b) & 1)
            elif op in ("s_waitcnt", "s_nop", "s_barrier", "s_setprio", "s_sleep"): pass
            else:
                clobber()
                if op not in ("s_mov_b64",): scc = None
        else:
            clobber()
        pc += 1

def waitcnt_parse(I):
    vm = lg = None
    m = re.search(r"vmcnt\((\d+)\)", I.text)
    if m: vm = int(m.group(1))
    m = re.search(r"lgkmcnt\((\d+)\)", I.text)
    if m: lg = int(m.group(1))
    return vm, lg

def check_trace(tr, verbose=True):
    probs = []
    last_valu_w = {}
    last_trans_w = {}
    last_dot_w = {}
    last_mfma_w = {}
    last_mfma_c = {}
    last_valu_sw = {}
    last_salu_m0 = -100
    last_store_data = {}
    last_sdwa_w = {}
    vm_q, lg_q = [], []
    pend = {}
    pos = 0
    def P(msg, I, J=None):
        probs.append(f"line {I.line}: {I.text}  :: {msg}" + (f"  [producer line {J.line}: {J.text}]" if J else ""))
    smem_out = False
    for I in tr:
        op = I.op
        isv = lambda r: r[0] in "va"
        for r in I.src + I.dst:
            if r in pend:
                J = pend[r]
                if J is I: continue
                if r in I.dst and r not in I.src and I.cls == J.cls and I.cls in ("ds",):
                    continue
                P(f"register {r} has outstanding load (missing waitcnt)", I, J)
                del pend[r]
        def need(tbl, regs, n, msg):
            for r in regs:
                if r in tbl:
                    p, J = tbl[r]
                    d = pos - p - 1
                    if d < n: P(f"{msg}: {d} wait states < {n} on {r}", I, J); return
        vsrc = [r for r in I.src if isv(r)]
        vdst = [r for r in I.dst if isv(r)]
        ssrc = [r for r in I.src if r[0] == "s"]
        if I.cls == "mfma":
            need(last_valu_w, vsrc, 2, "VALU write -> MFMA read")
            for r in I.srcA + I.srcB:
                if r in last_mfma_w:
                    p, J = last_mfma_w[r]; n = 12 if J.passes == 8 else 8
                    if pos - p - 1 < n: P(f"MFMA D -> MFMA A/B {pos-p-1}<{n}", I, J); break
            if I.srcC:
                for r in I.srcC:
                    if r in last_mfma_w:
                        p, J = last_mfma_w[r]
                        if J.dst == I.srcC and J.passes == I.passes: continue
                        n = 10 if J.passes == 8 else 6
                        if pos - p - 1 < n: P(f"MFMA D -> MFMA C overlap {pos-p-1}<{n}", I, J); break
            for r in I.dst:
                if r in last_mfma_w and r not in I.srcC:
                    p, J = last_mfma_w[r]
                    n = 10 if J.passes == 8 else 6
                    if J.passes != I.passes and pos - p - 1 < n: P("MFMA WAW different shape", I, J); break
        elif I.cls == "valu":
            for r in vsrc + vdst:
                if r in last_mfma_w:
                    p, J = last_mfma_w[r]; n = 12 if J.passes == 8 else 8
                    if pos - p - 1 < n: P(f"MFMA D -> VALU {pos-p-1}<{n} on {r}", I, J); break
            for r in vdst:
                if r in last_mfma_c:
                    p, J = last_mfma_c[r]; n = 7 if J.passes == 8 else 3
                    if pos - p - 1 < n: P(f"MFMA reads C -> VALU write WAR {pos-p-1}<{n} on {r}", I, J); break
            if op not in TRANS: need(last_trans_w, vsrc, 1, "trans -> VALU use")
            else: need(last_trans_w, vsrc, 1, "trans -> trans use (conservative)")
            if op in ("v_readfirstlane_b32", "v_readlane_b32"): need(last_valu_w, vsrc, 1, "VALU write -> readlane")
            if op.startswith("v_permlane"): need(last_valu_w, vsrc, 2, "VALU write -> permlane")
            if "dpp" in op or "row_" in I.mods or "quad_perm" in I.mods: need(last_valu_w, vsrc, 2, "VALU write -> DPP")
            need(last_valu_sw, ssrc, 2, "VALU writes SGPR -> VALU reads")
            need(last_sdwa_w, vsrc, 1, "SDWA/opsel result -> VALU")
            for r in vsrc + vdst:
                if r in last_dot_w:
                    p, J = last_dot_w[r]
                    if J.op == op and r in I.dst and I.ops[0] == J.ops[0] and not any(r in parse_operand(x) for x in I.ops[1:3]): continue
                    if pos - p - 1 < 3: P(f"DOT write -> other use {pos-p-1}<3 on {r}", I, J); break
            for r in vdst:
                if r in last_store_data and pos - last_store_data[r][0] - 1 < 2:
                    P("wide store data WAR (VALU write <2)", I, last_store_data[r][1]); break
        elif I.cls in ("vmem", "ds"):
            for r in vsrc + vdst:
                if r in last_mfma_w:
                    p, J = last_mfma_w[r]; n = 12 if J.passes == 8 else 8
                    if pos - p - 1 < n: P(f"MFMA D -> mem op {pos-p-1}<{n} on {r}", I, J); break
            need(last_dot_w, vsrc, 3, "DOT write -> mem read")
            if I.cls == "vmem":
                need(last_valu_sw, ssrc, 5, "VALU writes SGPR -> VMEM reads")
                if ("s", "m0") in I.src and pos - last_salu_m0 - 1 < 1: P("M0 write -> LDS-DMA <1", I)
            for r in vdst:
                if r in last_store_data and pos - last_store_data[r][0] - 1 < 1:
                    P("wide store data WAR (<1)", I, last_store_data[r][1]); break
        elif I.cls == "salu":
            need(last_valu_sw, ssrc, 1, "VALU writes SGPR -> SALU reads (conservative 1)")
        if I.cls == "valu":
            for r in vdst:
                last_valu_w[r] = (pos, I)
                last_trans_w.pop(r, None); last_dot_w.pop(r, None); last_mfma_w.pop(r, None); last_sdwa_w.pop(r, None)
                if op in TRANS: last_trans_w[r] = (pos, I)
                if op.startswith("v_dot"): last_dot_w[r] = (pos, I)
                if "sdwa" in op or "op_sel" in I.mods and not op.startswith("v_pk"): last_sdwa_w[r] = (pos, I)
            for r in I.dst:
                if r[0] == "s": last_valu_sw[r] = (pos, I)
        elif I.cls == "mfma":
            for r in vdst:
                last_mfma_w[r] = (pos, I); last_valu_w.pop(r, None); last_trans_w.pop(r, None); last_dot_w.pop(r, None)
            for r in I.srcC: last_mfma_c[r] = (pos, I)
        elif I.cls == "salu":
            for r in I.dst:
                if r == ("s", "m0"): last_salu_m0 = pos
                last_valu_sw.pop(r, None)
        if I.cls in ("vmem", "ds"):
            for r in vdst:
                last_valu_w.pop(r, None); last_trans_w.pop(r, None); last_mfma_w.pop(r, None); last_dot_w.pop(r, None)
        if I.cls == "vmem" and ("store" in op or "atomic" in op) and ("x3" in op or "x4" in op):
            data = parse_operand(I.ops[0]) if op.startswith("buffer") else parse_operand(I.ops[1])
            for r in data: last_store_data[r] = (pos, I)
        if I.cls == "ds" and op in ("ds_write_b128", "ds_write_b96"):
            pass
        if I.cls == "vmem":
            vm_q.append((I, list(vdst)))
            for r in vdst: pend[r] = I
            if len(vm_q) > 63: P("vmcnt overflow (>63 outstanding)", I)
        elif I.cls == "ds":
            lg_q.append((I, list(vdst)))
            for r in vdst: pend[r] = I
        elif I.cls == "smem":
            lg_q.append((I, list(I.dst))); smem_out = True
            for r in I.dst: pend[r] = I
        if op == "s_waitcnt":
            vm, lg = waitcnt_parse(I)
            if vm is not None:
                while len(vm_q) > vm:
                    J, regs = vm_q.pop(0)
                    for r in regs:
                        if pend.get(r) is J: del pend[r]
            if lg is not None:
                if smem_out and lg != 0: P("lgkmcnt(N>0) with SMEM outstanding", I)
                while len(lg_q) > lg:
                    J, regs = lg_q.pop(0)
                    for r in regs:
                        if pend.get(r) is J: del pend[r]
                if lg == 0: smem_out = False
        pos += (int(I.ops[0], 0) + 1) if op == "s_nop" else 1
    seen, out = set(), []
    for p in probs:
        if p not in seen:
            seen.add(p); out.append(p)
    return out
```

```python
from asmlib import *
MB = 1 << 20
WS_Q, WS_K, WS_V = 0, 2*MB, 4*MB
WS_A2 = 8*MB
WS_WT = 18*MB
WS_PART = 21*MB
WS_SIZE = 0x10000000
ARG_X, ARG_WQKV, ARG_WO, ARG_BX, ARG_W1, ARG_B1, ARG_W2, ARG_OUT, ARG_DBG, ARG_WS = [8*i for i in range(10)]

def kernel_header(a, name):
    a(".text")
    a(f".globl {name}")
    a(".p2align 8")
    a(f".type {name},@function")
    a(f"{name}:")

def kernel_desc(a, name, nvgpr, nsgpr=96, nagpr=0):
    acc = (nvgpr + 3)//4*4
    a('.section .rodata,"a"')
    a(".p2align 6")
    a(f".amdhsa_kernel {name}")
    a(f"  .amdhsa_next_free_vgpr {acc + nagpr}")
    a(f"  .amdhsa_next_free_sgpr {nsgpr}")
    a(f"  .amdhsa_accum_offset {acc}")
    a("  .amdhsa_group_segment_fixed_size 0")
    a("  .amdhsa_kernarg_size 80")
    a("  .amdhsa_user_sgpr_count 2")
    a("  .amdhsa_user_sgpr_kernarg_segment_ptr 1")
    a("  .amdhsa_system_sgpr_workgroup_id_x 1")
    a("  .amdhsa_float_denorm_mode_32 3")
    a("  .amdhsa_ieee_mode 0")
    a(".end_amdhsa_kernel")

def srd(a, s, base_s, size):
    a(f"s_mov_b32 s{s}, s{base_s}")
    a(f"s_and_b32 s{s+1}, s{base_s+1}, 0xffff")
    a(f"s_mov_b32 s{s+2}, {size:#x}")
    a(f"s_mov_b32 s{s+3}, 0x00020000")
```

```python
from common import *
import math, struct
K1_LDS = 163840
def f2u(x): return struct.unpack("<I", struct.pack("<f", x))[0]
LOG2E = 1.4426950408889634
LN2 = 0.6931471805599453
QSCALE = 0.25*LOG2E

def weave(main, fill, start, end):
    out = []
    n = end - start
    k = 0
    for g, gap in enumerate(main):
        out += gap
        if start <= g < end:
            upto = (len(fill)*(g-start+1) + n - 1)//n
            out += fill[k:upto]; k = upto
    out += fill[k:]
    return out

def gen_k1(a, name, stamps=False, exp={}):
    kernel_header(a, name)
    X = 128; ACC = 16; E = 32; WB = 48; T = 64
    SEL = 96; BIAS = 100; XAUG = 104; RTOK = 108
    vL16, vWa, vWbase, vSt, vR, vB2, vC1 = 1, 2, 3, 4, 5, 6, 7
    t8, t9, t10, t11 = 8, 9, 10, 11
    sW, sRB, sCS, sG0, sN, sTile = 32, 33, 34, 35, 36, 37
    sJ, sG, sSt, sSt2, sRS, sNP = 38, 39, 40, 41, 44, 45
    SX, SWm, SWS, SB1, SWO, SW2 = 8, 12, 16, 20, 24, 28
    a("s_cmp_ge_u32 s2, 256")
    a(f"s_cbranch_scc1 {name}_end")
    a("s_load_dwordx4 s[48:51], s[0:1], 0")
    a("s_load_dwordx2 s[52:53], s[0:1], 16")
    a("s_load_dwordx4 s[56:59], s[0:1], 32")
    a("s_load_dwordx2 s[60:61], s[0:1], 48")
    a(f"s_load_dwordx2 s[62:63], s[0:1], {ARG_WS}")
    if stamps:
        a(f"s_load_dwordx2 s[70:71], s[0:1], {ARG_DBG}")
        a("s_memtime s[72:73]")
    a(f"v_lshrrev_b32 v{t8}, 6, v0")
    a(f"v_and_b32 v{vL16}, 63, v0")
    a(f"v_readfirstlane_b32 s{sW}, v{t8}")
    a(f"v_lshlrev_b32 v{vL16}, 4, v{vL16}")
    a("s_and_b32 s3, s2, 1")
    a("s_lshl_b32 s3, s3, 3")
    a("s_lshr_b32 s4, s2, 3")
    a("s_and_b32 s5, s4, 7")
    a(f"s_add_u32 s{sRB}, s3, s5")
    a("s_and_b32 s3, s2, 7")
    a("s_lshr_b32 s3, s3, 1")
    a("s_lshl_b32 s3, s3, 2")
    a("s_lshr_b32 s4, s4, 3")
    a(f"s_add_u32 s{sCS}, s3, s4")
    a(f"s_sub_u32 s3, s{sCS}, 8")
    a("s_and_b32 s3, s3, 7")
    a("s_lshl_b32 s4, s3, 2")
    a("s_lshr_b32 s5, 0x55677666, s4")
    a("s_and_b32 s5, s5, 15")
    a("s_lshl_b32 s4, s3, 3")
    a("s_mov_b32 s6, 0x120c0600")
    a("s_mov_b32 s7, 0x2b262019")
    a("s_lshr_b64 s[6:7], s[6:7], s4")
    a("s_and_b32 s6, s6, 255")
    a(f"s_mul_i32 s4, s{sCS}, 7")
    a(f"s_cmp_lt_u32 s{sCS}, 8")
    a(f"s_cselect_b32 s{sG0}, s4, s6")
    a(f"s_cselect_b32 s{sN}, 7, s5")
    a(f"s_movk_i32 s4, 3072")
    a(f"s_cselect_b32 s{sRS}, 3584, s4")
    a(f"s_and_b32 s3, s{sG0}, 1")
    a(f"s_add_u32 s3, s3, s{sN}")
    a("s_add_u32 s3, s3, 1")
    a(f"s_lshr_b32 s{sNP}, s3, 1")
    a(f"s_lshl_b32 s{sTile}, s{sRB}, 2")
    a(f"s_add_u32 s{sTile}, s{sTile}, s{sW}")
    a("s_waitcnt lgkmcnt(0)")
    srd(a, SX, 48, 2048*1024)
    a(f"s_cmp_lt_u32 s{sCS}, 8")
    a("s_cselect_b32 s4, s56, s50")
    a("s_cselect_b32 s5, s57, s51")
    a(f"s_mov_b32 s{SWm}, s4")
    a(f"s_and_b32 s{SWm+1}, s5, 0xffff")
    a(f"s_lshl_b32 s{SWm+2}, s{sRS}, 9")
    a(f"s_mov_b32 s{SWm+3}, 0x00020000")
    srd(a, SWS, 62, WS_SIZE)
    a(f"s_cmp_ge_u32 s{sW}, 4")
    a(f"s_cbranch_scc1 {name}_loader")
    a(f"s_lshl_b32 s3, s{sW}, 15")
    a("s_add_u32 s3, s3, 32768")
    a(f"s_lshl_b32 s4, s{sTile}, 15")
    for r in range(32):
        if r % 4 == 0:
            a(f"s_add_u32 m0, s3, {r*1024}")
            a(f"s_add_u32 s5, s4, {r*1024}")
        tv = t8 if r % 2 == 0 else t9
        a(f"v_xor_b32 v{tv}, {(r & 15)*16}, v{vL16}")
        a(f"buffer_load_dwordx4 v{tv}, s[{SX}:{SX+3}], s5 offen offset:{(r%4)*1024} lds")
    a(f"v_and_b32 v{t8}, 31, v0")
    a(f"v_bfe_u32 v{t9}, v0, 5, 1")
    a(f"v_lshlrev_b32 v{t9}, 3, v{t9}")
    a(f"v_sub_u32 v{t8}, v{t8}, v{t9}")
    a(f"v_mov_b32 v{t10}, 0x3f80")
    a(f"v_mov_b32 v{t11}, 0x3f800000")
    for r in range(4):
        a(f"v_mov_b32 v{SEL+r}, 0")
        a(f"v_cmp_eq_u32 vcc, {2*r}, v{t8}")
        a("s_nop 1")
        a(f"v_cndmask_b32 v{SEL+r}, v{SEL+r}, v{t10}, vcc")
        a(f"v_cmp_eq_u32 vcc, {2*r+1}, v{t8}")
        a("s_nop 1")
        a(f"v_cndmask_b32 v{SEL+r}, v{SEL+r}, v{t11}, vcc")
    for r in range(1, 4):
        a(f"v_mov_b32 v{BIAS+r}, 0")
        a(f"v_mov_b32 v{XAUG+r}, 0")
    a(f"v_mov_b32 v{BIAS}, 0")
    a(f"v_and_b32 v{t8}, 31, v0")
    a(f"v_lshlrev_b32 v{t9}, 10, v{t8}")
    a(f"v_and_b32 v{t8}, 15, v0")
    a(f"v_bfe_u32 v{t10}, v0, 5, 1")
    a(f"v_xor_b32 v{t8}, v{t8}, v{t10}")
    a(f"v_lshlrev_b32 v{t8}, 4, v{t8}")
    a(f"v_add_u32 v{t9}, v{t9}, v{t8}")
    a(f"v_add_u32 v{t9}, s3, v{t9}")
    for b in range(8): a(f"v_xor_b32 v{T+b}, {32*b}, v{t9}")
    a(f"v_bfe_u32 v{t8}, v0, 5, 1")
    a(f"v_lshlrev_b32 v{t8}, 2, v{t8}")
    a(f"v_bfe_u32 v{t10}, v0, 2, 2")
    a(f"v_add_u32 v{t8}, v{t8}, v{t10}")
    a(f"v_lshlrev_b32 v{t8}, 7, v{t8}")
    a(f"v_bfe_u32 v{t10}, v0, 4, 1")
    a(f"v_lshlrev_b32 v{t10}, 1, v{t10}")
    a(f"v_bfe_u32 v{t11}, v0, 1, 1")
    a(f"v_add_u32 v{t10}, v{t10}, v{t11}")
    a(f"v_bfe_u32 v{t11}, v0, 3, 1")
    a(f"v_lshlrev_b32 v{t11}, 2, v{t11}")
    a(f"v_xor_b32 v{t10}, v{t10}, v{t11}")
    a(f"v_lshlrev_b32 v{t10}, 4, v{t10}")
    a(f"v_add_u32 v{t8}, v{t8}, v{t10}")
    a(f"v_and_b32 v{t10}, 1, v0")
    a(f"v_lshlrev_b32 v{t10}, 3, v{t10}")
    a(f"v_add_u32 v{vWbase}, v{t8}, v{t10}")
    a(f"v_mov_b32 v{t11}, 0x3f803f80")
    for i in range(4): a(f"v_mov_b32 v{ACC+i}, 0")
    a("s_waitcnt vmcnt(0)")
    if stamps: a("s_memtime s[74:75]")
    def rd(s):
        aa, b = s // 8, s % 8
        a(f"ds_read_b128 {vr(X+4*s,4)}, v{T+b} offset:{256*aa}")
    for s in range(12): rd(s)
    for s in range(32):
        if s + 12 < 32: rd(s + 12)
        a(f"s_waitcnt lgkmcnt({min(12, 31-s)})")
        for r in range(4): a(f"v_dot2c_f32_bf16 v{ACC+r}, v{X+4*s+r}, v{t11}")
    a("s_barrier")
    a("s_nop 1")
    a(f"v_add_f32 v{ACC}, v{ACC}, v{ACC+1}")
    a(f"v_add_f32 v{ACC+2}, v{ACC+2}, v{ACC+3}")
    a(f"v_add_f32 v{ACC}, v{ACC}, v{ACC+2}")
    a(f"v_mov_b32 v{ACC+1}, v{ACC}")
    a("s_nop 1")
    a(f"v_permlane32_swap_b32 v{ACC}, v{ACC+1}")
    a("s_nop 1")
    a(f"v_add_f32 v{ACC}, v{ACC}, v{ACC+1}")
    a(f"v_mul_f32 v{ACC}, {f2u(1.0/512):#x}, v{ACC}")
    a(f"v_cvt_pk_bf16_f32 v{ACC}, v{ACC}, v{ACC}")
    a(f"v_lshlrev_b32 v{ACC}, 16, v{ACC}")
    NEG = T
    for i in range(16): a(f"v_sub_f32 v{NEG+i}, 0, v{ACC}")
    SQ = t8
    for i in range(4): a(f"v_mov_b32 v{SQ+i}, 0")
    DB = [ACC, E, 80]
    def cM(s): a(f"v_mfma_f32_32x32x16_bf16 {vr(DB[s%3],16)}, {vr(SEL,4)}, {vr(X+4*s,4)}, {vr(NEG,16)}")
    def cC(s):
        for r in range(4): a(f"v_cvt_pk_bf16_f32 v{X+4*s+r}, v{DB[s%3]+2*r}, v{DB[s%3]+2*r+1}")
    def cD(s):
        for r in range(4): a(f"v_dot2c_f32_bf16 v{SQ+r}, v{X+4*s+r}, v{X+4*s+r}")
    cM(0); cM(1)
    a("s_nop 7")
    for s in range(32):
        if s + 2 < 32: cM(s + 2)
        else: a("s_nop 0")
        if s == 0: a("s_nop 3")
        cC(s)
        if s >= 1: cD(s - 1)
        else: a("s_nop 3")
    a("s_nop 0")
    cD(31)
    a("s_nop 2")
    a(f"v_add_f32 v{SQ}, v{SQ}, v{SQ+1}")
    a(f"v_add_f32 v{SQ+2}, v{SQ+2}, v{SQ+3}")
    a(f"v_add_f32 v{SQ}, v{SQ}, v{SQ+2}")
    a(f"v_mov_b32 v{SQ+1}, v{SQ}")
    a("s_nop 1")
    a(f"v_permlane32_swap_b32 v{SQ}, v{SQ+1}")
    a("s_nop 1")
    a(f"v_add_f32 v{SQ}, v{SQ}, v{SQ+1}")
    a(f"v_mul_f32 v{SQ}, {f2u(1.0/512):#x}, v{SQ}")
    a(f"v_cvt_pk_bf16_f32 v{SQ}, v{SQ}, v{SQ}")
    a(f"v_lshlrev_b32 v{SQ}, 16, v{SQ}")
    a(f"v_add_f32 v{SQ}, {f2u(1e-5):#x}, v{SQ}")
    a(f"v_cvt_pk_bf16_f32 v{SQ}, v{SQ}, v{SQ}")
    a(f"v_lshlrev_b32 v{SQ}, 16, v{SQ}")
    a(f"v_sqrt_f32 v{SQ}, v{SQ}")
    a("s_nop 0")
    a(f"v_cvt_pk_bf16_f32 v{SQ+1}, v{SQ}, v{SQ}")
    a(f"v_and_b32 v{SQ+1}, 0xffff, v{SQ+1}")
    a(f"v_lshlrev_b32 v{SQ}, 16, v{SQ+1}")
    a(f"v_rcp_f32 v{vR}, v{SQ}")
    a(f"v_bfe_u32 v{SQ+2}, v0, 5, 1")
    a(f"v_cmp_eq_u32 vcc, 0, v{SQ+2}")
    a("s_nop 1")
    a(f"v_cndmask_b32 v{XAUG}, 0, v{SQ+1}, vcc")
    if stamps: a("s_memtime s[76:77]")
    a(f"s_mov_b32 s{sJ}, 0")
    a(f"s_mov_b32 s{sG}, s{sG0}")
    a(f"s_mov_b32 s{sSt}, 0x7ff00000")
    a(f"s_mov_b32 s{sSt2}, 0x7ff00000")
    a(f"s_cmp_lt_u32 s{sCS}, 8")
    a(f"s_cbranch_scc1 {name}_F")
    a(f"s_cmp_lt_u32 s{sCS}, 13")
    a(f"s_cbranch_scc1 {name}_QK")
    a(f"s_branch {name}_V")

    def epilogue(ty):
        L = []
        P = T + 16
        if ty == "F":
            t, e, w = T, T+4, T+8
            for q in range(4):
                Eq = E + 4*q
                L += [f"v_mul_f32 v{t+i}, v{Eq+i}, v{vR}" for i in range(4)]
                L += [f"v_exp_f32 v{e+i}, v{t+i}" for i in range(4)]
                L += [f"v_add_f32 v{e+i}, 1.0, v{e+i}" for i in range(4)]
                L += [f"v_fma_f32 v{w+i}, v{e+i}, v{e+i}, 1.0" for i in range(4)]
                L += [f"v_rcp_f32 v{w+i}, v{w+i}" for i in range(4)]
                L += [f"v_fmaak_f32 v{w+i}, v{w+i}, v{vC1}, {f2u(LN2):#x}" for i in range(4)]
                L += [f"v_mul_f32 v{t+i}, v{t+i}, v{w+i}" for i in range(4)]
                L += [f"v_cvt_pk_bf16_f32 v{P+2*q+i}, v{t+2*i}, v{t+2*i+1}" for i in range(2)]
                if q == 1: L += [f"buffer_store_dwordx4 {vr(P,4)}, v{vSt}, s[{SWS}:{SWS+3}], s{sSt} offen"]
                if q == 3: L += [f"buffer_store_dwordx4 {vr(P+4,4)}, v{vSt}, s[{SWS}:{SWS+3}], s{sSt} offen offset:1024"]
        elif ty == "QK":
            for q in range(4):
                Eq = E + 4*q
                L += [f"v_mul_f32 v{T+i}, v{Eq+i}, v{vC1}" for i in range(4)]
                L += [f"v_cvt_pk_bf16_f32 v{P+2*q+i}, v{T+2*i}, v{T+2*i+1}" for i in range(2)]
                if q == 1: L += [f"buffer_store_dwordx4 {vr(P,4)}, v{vSt}, s[{SWS}:{SWS+3}], s{sSt} offen"]
                if q == 3: L += [f"buffer_store_dwordx4 {vr(P+4,4)}, v{vSt}, s[{SWS}:{SWS+3}], s{sSt2} offen"]
        else:
            for q in range(4):
                Eq = E + 4*q
                L += [f"v_mul_f32 v{T+i}, v{Eq+i}, v{RTOK+4*q+i}" for i in range(4)]
                L += [f"v_cvt_pk_bf16_f32 v{P+2*q+i}, v{T+2*i}, v{T+2*i+1}" for i in range(2)]
                if q == 1: L += [f"buffer_store_dwordx4 {vr(P,4)}, v{vSt}, s[{SWS}:{SWS+3}], s{sSt} offen"]
                if q == 3: L += [f"buffer_store_dwordx4 {vr(P+4,4)}, v{vSt}, s[{SWS}:{SWS+3}], s{sSt} offen offset:512"]
        return L

    def store_addr(ty):
        L = []
        if ty == "F":
            L += [f"s_mul_i32 s3, s{sTile}, 144", f"s_lshl_b32 s4, s{sG}, 1", "s_add_u32 s3, s3, s4", "s_add_u32 s3, s3, 32", "s_lshl_b32 s3, s3, 10", f"s_add_u32 s{sSt}, s3, {WS_A2}"]
        elif ty == "QK":
            L += [f"s_and_b32 s3, s{sG}, 15", "s_lshl_b32 s3, s3, 17", f"s_lshl_b32 s4, s{sTile}, 10", "s_add_u32 s3, s3, s4",
                  f"s_lshr_b32 s4, s{sG}, 4", "s_lshl_b32 s4, s4, 21", f"s_add_u32 s{sSt}, s3, s4", f"s_add_u32 s{sSt2}, s{sSt}, 65536",
                  f"s_cmp_lt_u32 s{sG}, 16", f"s_cselect_b32 s3, {f2u(QSCALE):#x}, 1.0", f"v_mul_f32 v{vC1}, s3, v{vR}"]
        else:
            L += [f"s_sub_u32 s3, s{sG}, 32", "s_lshl_b32 s3, s3, 17", f"s_lshl_b32 s4, s{sTile}, 10", "s_add_u32 s3, s3, s4", f"s_add_u32 s{sSt}, s3, {WS_V}"]
        return L

    def group_loop(ty):
        a(f"{name}_{ty}:")
        if ty == "F":
            a(f"v_mul_f32 v{vR}, {f2u(LOG2E):#x}, v{vR}")
            a(f"v_mov_b32 v{vC1}, {f2u(-2.0*struct.unpack('<f', struct.pack('<f', LN2))[0]):#x}")
            a(f"v_mov_b32 v{vSt}, v{vL16}")
            a(f"v_and_b32 v{vB2}, 31, v0")
            a(f"v_lshlrev_b32 v{vB2}, 1, v{vB2}")
            srd(a, SB1, 58, 1792*2)
        elif ty == "QK":
            a(f"v_mov_b32 v{vSt}, v{vL16}")
            a(f"v_mov_b32 v{vC1}, 0")
        else:
            a(f"s_lshl_b32 s3, s{sW}, 7")
            a(f"s_add_u32 s3, s3, {150*1024}")
            a(f"v_and_b32 v{t8}, 31, v0")
            a(f"v_lshlrev_b32 v{t8}, 2, v{t8}")
            a(f"v_add_u32 v{t8}, s3, v{t8}")
            a(f"ds_write_b32 v{t8}, v{vR}")
            a(f"v_bfe_u32 v{t9}, v0, 5, 1")
            a(f"v_lshlrev_b32 v{t9}, 4, v{t9}")
            a(f"v_add_u32 v{t9}, s3, v{t9}")
            a("s_waitcnt lgkmcnt(0)")
            for q in range(4): a(f"ds_read_b128 {vr(RTOK+4*q,4)}, v{t9} offset:{32*q}")
            a(f"v_bfe_u32 v{t8}, v0, 4, 1")
            a(f"v_lshlrev_b32 v{t8}, 16, v{t8}")
            a(f"v_bfe_u32 v{t9}, v0, 5, 1")
            a(f"v_lshlrev_b32 v{t9}, 8, v{t9}")
            a(f"v_add_u32 v{t8}, v{t8}, v{t9}")
            a(f"v_and_b32 v{t9}, 15, v0")
            a(f"v_lshlrev_b32 v{t9}, 4, v{t9}")
            a(f"v_add_u32 v{vSt}, v{t8}, v{t9}")
            a("s_waitcnt lgkmcnt(0)")
        a("s_barrier")
        a(f"{name}_{ty}_loop:")
        a(f"s_cmp_eq_u32 s{sJ}, 0")
        a(f"s_cbranch_scc1 {name}_{ty}_nobar")
        a(f"s_bitcmp1_b32 s{sG}, 0")
        a(f"s_cbranch_scc1 {name}_{ty}_nobar")
        a("s_barrier")
        a(f"{name}_{ty}_nobar:")
        a(f"s_lshr_b32 s3, s{sG}, 1")
        a(f"s_lshr_b32 s4, s{sG0}, 1")
        a("s_sub_u32 s3, s3, s4")
        a("s_and_b32 s3, s3, 1")
        a("s_lshl_b32 s3, s3, 16")
        a(f"s_and_b32 s4, s{sG}, 1")
        a("s_lshl_b32 s4, s4, 6")
        a(f"v_xor_b32 v{vWa}, s4, v{vWbase}")
        a(f"v_add_u32 v{vWa}, s3, v{vWa}")
        if ty == "F":
            a(f"s_lshl_b32 s4, s{sG}, 6")
            a(f"buffer_load_ushort v{BIAS}, v{vB2}, s[{SB1}:{SB1+3}], s4 offen")
        def rdW(s):
            b = WB + 4*(s % 4)
            return [f"ds_read_b64_tr_b16 {vr(b,2)}, v{vWa} offset:{s*2048}", f"ds_read_b64_tr_b16 {vr(b+2,2)}, v{vWa} offset:{s*2048+1024}"]
        a.extend(rdW(0) + rdW(1))
        gaps = []
        for s in range(32):
            g = []
            g.append(f"s_waitcnt lgkmcnt({2 if s < 31 else 0})")
            b = WB + 4*(s % 4)
            last = (s == 31 and ty != "F")
            D = E if last else ACC
            C = "0" if s == 0 else vr(ACC,16)
            if ty == "V": g.append(f"v_mfma_f32_32x32x16_bf16 {vr(D,16)}, {vr(X+4*s,4)}, {vr(b,4)}, {C}")
            else:         g.append(f"v_mfma_f32_32x32x16_bf16 {vr(D,16)}, {vr(b,4)}, {vr(X+4*s,4)}, {C}")
            if s + 2 < 32: g += rdW(s + 2)
            gaps.append(g)
        epi = epilogue(ty)
        if exp.get("noweave"):
            a("s_nop 15"); a.extend(epi)
            for g in gaps: a.extend(g)
        else:
            a.extend(weave(gaps, epi, 2, 29))
        if ty == "F":
            a("s_waitcnt vmcnt(2)")
            a(f"v_mfma_f32_32x32x16_bf16 {vr(E,16)}, {vr(BIAS,4)}, {vr(XAUG,4)}, {vr(ACC,16)}")
        a.extend(store_addr(ty))
        a(f"s_add_u32 s{sJ}, s{sJ}, 1")
        a(f"s_add_u32 s{sG}, s{sG}, 1")
        a(f"s_cmp_lt_u32 s{sJ}, s{sN}")
        a(f"s_cbranch_scc1 {name}_{ty}_loop")
        a("s_nop 15")
        a.extend(epi)
        a(f"s_branch {name}_fin")
    for ty in ("F", "QK", "V"): group_loop(ty)

    a(f"{name}_loader:")
    sU, sP, sK, sM = 46, 47, 64, 65
    vD = 2
    a(f"s_sub_u32 s{sU}, s{sW}, 4")
    a(f"v_bfe_u32 v3, v0, 3, 3")
    a(f"v_mul_lo_u32 v{vD}, s{sRS}, v3")
    a(f"v_and_b32 v3, 7, v0")
    a(f"v_bfe_u32 v4, v0, 4, 1")
    a(f"v_lshlrev_b32 v4, 2, v4")
    a(f"v_xor_b32 v3, v3, v4")
    a(f"v_lshlrev_b32 v3, 4, v3")
    a(f"v_add_u32 v{vD}, v{vD}, v3")
    a(f"s_lshr_b32 s{sP}, s{sG0}, 1")
    a(f"s_lshl_b32 s{sP}, s{sP}, 7")
    a(f"s_lshl_b32 s66, s{sRS}, 4")
    a(f"s_lshl_b32 s67, s{sRS}, 3")
    a(f"s_mul_i32 s67, s67, s{sU}")
    def dma_rows(lbl, i0, n, slot_s):
        a(f"s_mul_i32 s3, s66, {i0}")
        a(f"s_add_u32 s3, s3, s67")
        a(f"s_add_u32 s3, s3, s{sP}")
        a(f"s_lshl_b32 s4, s{sU}, 10")
        a(f"s_add_u32 s4, s4, {slot_s}")
        a(f"s_add_u32 s4, s4, {i0*2048}")
        a(f"s_mov_b32 s5, {n}")
        a(f"{lbl}:")
        a("s_mov_b32 m0, s4")
        a("s_add_u32 s4, s4, 2048")
        a(f"buffer_load_dwordx4 v{vD}, s[{SWm}:{SWm+3}], s3 offen lds")
        a("s_add_u32 s3, s3, s66")
        a("s_sub_u32 s5, s5, 1")
        a("s_cmp_lg_u32 s5, 0")
        a(f"s_cbranch_scc1 {lbl}")
    dma_rows(f"{name}_l0", 0, 16, "0")
    srd(a, SWO, 52, 512*1024)
    srd(a, SW2, 60, 1792*1024)
    a("s_waitcnt vmcnt(0)")
    a("s_barrier          ; B1")
    dma_rows(f"{name}_l1", 16, 16, "0")
    a(f"s_add_u32 s{sP}, s{sP}, 128")
    dma_rows(f"{name}_l2", 0, 32, "65536")
    a("s_waitcnt vmcnt(32)")
    a("s_barrier          ; B2")
    a("s_lshr_b32 s68, s2, 4")
    a("s_and_b32 s69, s2, 15")
    a("s_mul_i32 s69, s69, 9")
    a(f"s_add_u32 s69, s69, s{sU}")
    a(f"s_sub_u32 s42, 5, s{sU}")
    a(f"v_bfe_u32 v3, v0, 2, 4")
    a(f"v_lshlrev_b32 v3, 10, v3")
    a(f"v_and_b32 v4, 3, v0")
    a(f"v_lshlrev_b32 v4, 4, v4")
    a(f"v_add_u32 v5, v3, v4")
    a(f"v_bfe_u32 v3, v0, 5, 1")
    a(f"v_lshlrev_b32 v3, 2, v3")
    a(f"v_bfe_u32 v4, v0, 2, 2")
    a(f"v_add_u32 v3, v3, v4")
    a(f"v_lshlrev_b32 v3, 6, v3")
    a(f"v_bfe_u32 v4, v0, 4, 1")
    a(f"v_lshlrev_b32 v4, 5, v4")
    a(f"v_add_u32 v3, v3, v4")
    a(f"v_and_b32 v4, 3, v0")
    a(f"v_lshlrev_b32 v4, 3, v4")
    a(f"v_add_u32 v3, v3, v4")
    a(f"s_lshl_b32 s3, s{sU}, 13")
    a(f"s_add_u32 s43, s3, {128*1024}")
    a(f"v_add_u32 v6, s43, v3")
    a(f"v_and_b32 v7, 63, v0")
    a(f"v_lshlrev_b32 v7, 4, v7")
    a("s_mov_b32 s80, s69")
    a("s_mov_b32 s81, s42")
    a("s_mov_b32 s82, s43")
    a(f"{name}_sj:")
    a("s_mov_b32 m0, s82")
    a("s_lshl_b32 s4, s68, 6")
    a("s_cmp_lt_u32 s80, 32")
    a(f"s_cbranch_scc0 {name}_sj2")
    a("s_lshl_b32 s3, s80, 14")
    a("s_add_u32 s3, s3, s4")
    a(f"buffer_load_dwordx4 v5, s[{SWO}:{SWO+3}], s3 offen lds")
    a(f"s_branch {name}_sj3")
    a(f"{name}_sj2:")
    a("s_sub_u32 s3, s80, 32")
    a("s_lshl_b32 s3, s3, 14")
    a("s_add_u32 s3, s3, s4")
    a(f"buffer_load_dwordx4 v5, s[{SW2}:{SW2+3}], s3 offen lds")
    a(f"{name}_sj3:")
    a("s_add_u32 s80, s80, 2")
    a("s_add_u32 s82, s82, 1024")
    a("s_sub_u32 s81, s81, 1")
    a("s_cmp_lg_u32 s81, 0")
    a(f"s_cbranch_scc1 {name}_sj")
    a(f"s_mov_b32 s{sK}, 1")
    a(f"{name}_lp:")
    a("s_waitcnt vmcnt(0)")
    a("s_barrier")
    a(f"s_add_u32 s{sK}, s{sK}, 1")
    a(f"s_cmp_ge_u32 s{sK}, s{sNP}")
    a(f"s_cbranch_scc1 {name}_sjfin")
    a(f"s_add_u32 s{sP}, s{sP}, 128")
    a(f"s_and_b32 s{sM}, s{sK}, 1")
    a(f"s_lshl_b32 s{sM}, s{sM}, 16")
    dma_rows(f"{name}_l3", 0, 32, f"s{sM}")
    a(f"s_branch {name}_lp")
    a(f"{name}_sjfin:")
    a("ds_read_b64_tr_b16 v[8:9], v6")
    a("ds_read_b64_tr_b16 v[10:11], v6 offset:512")
    a("s_mul_i32 s3, s68, 144")
    a("s_add_u32 s3, s3, s69")
    a("s_lshl_b32 s3, s3, 10")
    a(f"s_add_u32 s3, s3, {WS_WT}")
    a("v_add_u32 v6, 1024, v6")
    a("s_waitcnt lgkmcnt(0)")
    a(f"buffer_store_dwordx4 v[8:11], v7, s[{SWS}:{SWS+3}], s3 offen")
    a("s_add_u32 s69, s69, 2")
    a("s_sub_u32 s42, s42, 1")
    a("s_cmp_lg_u32 s42, 0")
    a("s_nop 0")
    a(f"s_cbranch_scc1 {name}_sjfin")
    a(f"{name}_fin:")
    if stamps:
        a("s_waitcnt vmcnt(0) lgkmcnt(0)")
        a("s_memtime s[78:79]")
        a("s_waitcnt lgkmcnt(0)")
        a("s_lshl_b32 s3, s2, 3")
        a(f"s_add_u32 s3, s3, s{sW}")
        a("s_lshl_b32 s3, s3, 4")
        a("s_add_u32 s3, s3, 0x10000")
        a("v_mov_b32 v8, s72"); a("v_mov_b32 v9, s74"); a("v_mov_b32 v10, s76"); a("v_mov_b32 v11, s78")
        a("v_mov_b32 v12, s3")
        a("v_cmp_eq_u32 vcc, 0, v1")
        a("s_and_saveexec_b64 s[4:5], vcc")
        a(f"s_cbranch_execz {name}_end")
        a("global_store_dwordx4 v12, v[8:11], s[70:71]")
    a(f"{name}_end:")
    a("s_endpgm")
    kernel_desc(a, name, 256)

CS_TABLE = [(7*c, 7) for c in range(8)] + list(zip([0,6,12,18,25,32,38,43], [6,6,6,7,7,6,5,5]))
if __name__ == "__main__":
    a = Asm()
    a('.amdgcn_target "amdgcn-amd-amdhsa--gfx950"')
    gen_k1(a, "lnqkv_kernel")
    txt = a.text()
    ins, labels = parse_kernel(txt, "lnqkv_kernel")
    tot = 0
    for wg in (0, 2+8*8, 4, 6, 6+8*8, 6+16*8, 6+24*8, 4+24*8):
        cs = ((wg & 7) >> 1)*4 + ((wg >> 3) >> 3)
        g0, n = CS_TABLE[cs]
        for wave in (0, 4, 5):
            tr = trace(ins, labels, {2: wg, "wave": wave, "g0": g0, "n": n})
            pr = check_trace(tr)
            nb = sum(1 for I in tr if I.op == "s_barrier")
            print("wg", wg, "cs", cs, "wave", wave, "trace len", len(tr), "barriers", nb, "problems", len(pr))
            for p in pr[:8]: print("  ", p)
    open("k1.s", "w").write(txt)
```

```python
from common import *
K2_LDS = 147456
def gen_k2(a, name="attn_kernel", stamps=False, exp={}):
    kernel_header(a, name)
    Q, KB, VB, P, S, O, C = 8, [12, 16], [20, 28], 36, [48, 64], 80, 96
    vL16, vK, vV, vInc, vT, vT2 = 1, 2, 3, 4, 5, 6
    sW, sHead, sQt, sI, sG, sL = 16, 17, 18, 20, 21, 22
    a("s_cmp_ge_u32 s2, 256")
    a(f"s_cbranch_scc1 {name}_end")
    a(f"s_load_dwordx2 s[4:5], s[0:1], {ARG_WS}")
    if stamps:
        a(f"s_load_dwordx2 s[40:41], s[0:1], {ARG_DBG}")
        a("s_memtime s[42:43]")
    a(f"v_lshrrev_b32 v{vT}, 6, v0")
    a(f"v_and_b32 v{vL16}, 63, v0")
    a(f"v_readfirstlane_b32 s{sW}, v{vT}")
    a(f"v_lshlrev_b32 v{vL16}, 4, v{vL16}")
    a("s_and_b32 s17, s2, 7")
    a("s_lshr_b32 s18, s2, 3")
    a("s_and_b32 s19, s18, 3")
    a("s_lshl_b32 s17, s17, 2")
    a(f"s_add_u32 s{sHead}, s17, s19")
    a("s_lshr_b32 s18, s18, 2")
    a("s_lshl_b32 s18, s18, 3")
    a(f"s_add_u32 s{sQt}, s18, s{sW}")
    a(f"s_lshl_b32 s23, s{sHead}, 16")
    a(f"s_lshl_b32 s24, s{sQt}, 10")
    a("s_add_u32 s24, s24, s23")
    a(f"s_lshl_b32 s{sL}, s{sW}, 10")
    a(f"s_add_u32 s{sG}, s23, s{sL}")
    a(f"s_add_u32 s{sG}, s{sG}, {WS_K}")
    a("s_waitcnt lgkmcnt(0)")
    srd(a, 8, 4, WS_SIZE)
    a(f"buffer_load_dwordx4 {vr(Q,4)}, v{vL16}, s[8:11], s24 offen")
    def dma_stage():
        a(f"s_mov_b32 m0, s{sL}")
        a(f"s_add_u32 s25, s{sG}, {WS_V-WS_K}")
        a(f"buffer_load_dwordx4 v{vL16}, s[8:11], s{sG} offen lds")
        a(f"s_add_u32 m0, s{sL}, 65536")
        a(f"s_add_u32 s{sL}, s{sL}, 8192")
        a(f"buffer_load_dwordx4 v{vL16}, s[8:11], s25 offen lds")
        a(f"s_add_u32 s{sG}, s{sG}, 8192")
    for _ in range(2): dma_stage()
    a(f"v_lshlrev_b32 v{vT}, 4, v0")
    a(f"v_add_u32 v{vT}, 131072, v{vT}")
    for i in range(4):
        a(f"v_mov_b32 v{P+i}, 0x3f803f80")
    a(f"ds_write_b128 v{vT}, {vr(P,4)}")
    a(f"ds_write_b128 v{vT}, {vr(P,4)} offset:8192")
    a(f"v_mov_b32 v{vK}, v{vL16}")
    a(f"v_and_b32 v{vT}, 15, v0")
    a(f"v_lshlrev_b32 v{vT}, 4, v{vT}")
    a(f"v_and_b32 v{vT2}, 32, v0")
    a(f"v_lshlrev_b32 v{vT2}, 3, v{vT2}")
    a(f"v_add_u32 v{vT}, v{vT}, v{vT2}")
    a(f"v_add_u32 v{vV}, 65536, v{vT}")
    a(f"v_and_b32 v{vT}, 31, v0")
    a(f"v_subrev_u32 v{vT2}, 20, v{vT}")
    a(f"v_cmp_gt_u32 vcc, 8, v{vT2}")
    a(f"v_mov_b32 v{vT2}, 131072")
    a(f"v_mov_b32 v{vInc}, {131072+64}")
    a(f"v_cndmask_b32 v{vT2}, v{vT2}, v{vInc}, vcc")
    a(f"v_cmp_gt_u32 vcc, 16, v{vT}")
    a(f"v_mov_b32 v{vInc}, 0")
    a(f"v_mov_b32 v{vT}, 8192")
    a(f"v_cndmask_b32 v{vV}, v{vT2}, v{vV}, vcc")
    a(f"v_cndmask_b32 v{vInc}, v{vInc}, v{vT}, vcc")
    for i in range(16):
        a(f"v_mov_b32 v{O+i}, 0")
    for i in range(4):
        a(f"v_mov_b32 v{P+4+i}, 0")
        a(f"v_mov_b32 v{VB[1]+4+i}, 0")
    a("s_waitcnt vmcnt(2) lgkmcnt(0)")
    a("s_barrier")
    a(f"ds_read_b128 {vr(KB[0],4)}, v{vK}")
    a(f"ds_read_b128 {vr(KB[1],4)}, v{vK} offset:1024")
    a(f"ds_read_b128 {vr(VB[0],4)}, v{vV}")
    a(f"ds_read_b128 {vr(VB[0]+4,4)}, v{vV} offset:512")
    a(f"s_mov_b32 s{sI}, 0")
    a("s_waitcnt lgkmcnt(3)")
    a(f"v_mfma_f32_32x32x16_bf16 {vr(S[0],16)}, {vr(KB[0],4)}, {vr(Q,4)}, 0")
    if stamps:
        a("s_memtime s[44:45]")
    a("s_nop 15")
    a(f"s_lshr_b32 s31, s{sW}, 2")
    if exp.get("prio"):
        a(f"s_cmp_ge_u32 s{sW}, 4")
        a(f"s_cbranch_scc0 {name}_np")
        a("s_setprio 1")
        a(f"{name}_np:")
    a(".p2align 6")
    a(f"{name}_loop:")
    order = exp.get("order", 0)
    for p in range(8):
        cur, nxt = p & 1, (p & 1) ^ 1
        Sc, Sn = S[cur], S[nxt]
        E = lambda lo, hi: [f"v_exp_f32 v{Sc+i}, v{Sc+i}" for i in range(lo, hi)]
        Cv = lambda lo, hi: [f"v_cvt_pk_bf16_f32 v{P+i}, v{Sc+2*i}, v{Sc+2*i+1}" for i in range(lo, hi)]
        QK = [f"v_mfma_f32_32x32x16_bf16 {vr(Sn,16)}, {vr(KB[nxt],4)}, {vr(Q,4)}, 0"]
        PV1 = [f"v_mfma_f32_32x32x16_bf16 {vr(O,16)}, {vr(VB[nxt]+4,4)}, {vr(P+4,4)}, {vr(O,16)}"]
        PV0 = [f"v_mfma_f32_32x32x16_bf16 {vr(O,16)}, {vr(VB[cur],4)}, {vr(P,4)}, {vr(O,16)}"]
        RK = [f"ds_read_b128 {vr(KB[cur],4)}, v{vK} offset:{(p+2)*1024}"]
        RV0 = [f"ds_read_b128 {vr(VB[nxt],4)}, v{vV} offset:{(p+1)*1024}"]
        RV1 = [f"ds_read_b128 {vr(VB[nxt]+4,4)}, v{vV} offset:{(p+1)*1024+512}"]
        W = ["s_waitcnt lgkmcnt(0)"]
        if exp.get("noread"): RK = RV0 = RV1 = []
        if exp.get("nowait"): W = []
        if exp.get("nomfma"): QK = PV0 = PV1 = []
        sync = []
        if p == 0 and exp.get("altprio"):
            n = exp["altprio"]
            a(f"s_add_u32 s30, s{sI}, s31")
            a("s_and_b32 s30, s30, 1")
            a("s_cmp_eq_u32 s30, 0")
            a(f"s_cbranch_scc1 {name}_p0")
            a("s_setprio 1")
            a(f"s_branch {name}_p1")
            a(f"{name}_p0:")
            a("s_setprio 0")
            a(f"{name}_p1:")
        if p == 4 and exp.get("altprio") == 2:
            a("s_cmp_eq_u32 s30, 0")
            a(f"s_cbranch_scc1 {name}_q0")
            a("s_setprio 0")
            a(f"s_branch {name}_q1")
            a(f"{name}_q0:")
            a("s_setprio 1")
            a(f"{name}_q1:")
        a.extend(W + QK)
        if exp.get("burst"):
            if p in (0, 2, 4):
                if p == 0: a(f"s_cmp_eq_u32 s{sI}, 0")
                a(f"s_cbranch_scc1 {name}_dma{p}")
                a(f"{name}_dmaret{p}:")
            if p == 6:
                a(f"s_cmp_lt_u32 s{sI}, 2")
                a(f"s_cbranch_scc1 {name}_sync")
                a(f"{name}_syncret:")
        elif p == 6:
            a("s_waitcnt vmcnt(0)")
            a("s_barrier")
            a(f"s_cmp_ge_u32 s{sI}, 6")
            a(f"s_cbranch_scc1 {name}_nodma")
            dma_stage()
            a(f"{name}_nodma:")
        if order == 0:
            a.extend(RK + E(0,4) + PV1 + RV0 + RV1 + E(4,8) + Cv(0,4) + E(8,10) + PV0 + E(10,16) + Cv(4,8))
        elif order == 1:
            a.extend(E(0,1) + RK + E(1,4) + PV1 + E(4,5) + RV0 + E(5,6) + RV1 + E(6,8) + Cv(0,4) + E(8,10) + PV0 + E(10,16) + Cv(4,8))
        elif order == 2:
            seq = E(0,1) + RK + E(1,4) + PV1 + E(4,5) + RV0 + E(5,6) + RV1 + Cv(0,1) + E(6,7) + Cv(1,2) + E(7,8) + Cv(2,3) + E(8,9) + Cv(3,4) + E(9,11) + PV0 + E(11,12) + Cv(4,5) + E(12,13) + E(13,14) + Cv(5,6) + E(14,16) + Cv(6,7) + Cv(7,8)
            a.extend(seq)
        elif order == 3:
            a.extend(E(0,2) + RK + E(2,4) + PV1 + RV0 + E(4,6) + RV1 + E(6,16) + Cv(0,4) + Cv(4,6) + PV0 + Cv(6,8))
    a(f"v_add_u32 v{vK}, 8192, v{vK}")
    a(f"v_add_u32 v{vV}, v{vInc}, v{vV}")
    a(f"s_add_u32 s{sI}, s{sI}, 1")
    a(f"s_cmp_lt_u32 s{sI}, 8")
    a(f"s_cbranch_scc1 {name}_loop")
    a("s_waitcnt lgkmcnt(0)")
    a(f"v_mfma_f32_32x32x16_bf16 {vr(O,16)}, {vr(VB[1]+4,4)}, {vr(P+4,4)}, {vr(O,16)}")
    if stamps:
        a("s_memtime s[46:47]")
    a("s_nop 15")
    a(f"v_mul_f32 v{vT}, 0, v{O}")
    for i in range(1, 8): a(f"v_fmac_f32 v{vT}, 0, v{O+i}")
    a(f"v_add_f32 v{vT}, v{vT}, v{O+8}")
    a(f"s_mov_b32 s26, 0x21800000")
    a(f"s_mov_b32 s27, 0x5d800000")
    a(f"v_cmp_le_f32 s[28:29], s26, v{vT}")
    a(f"v_cmp_ge_f32 vcc, s27, v{vT}")
    a("s_nop 1")
    a("s_and_b64 s[28:29], s[28:29], vcc")
    a("s_cmp_eq_u64 s[28:29], exec")
    if not exp.get("noslow"): a(f"s_cbranch_scc0 {name}_slow")
    a(f"{name}_fin:")
    a(f"v_rcp_f32 v{vT}, v{O+8}")
    a(f"s_mul_i32 s24, s{sQt}, 144")
    a(f"s_add_u32 s24, s24, s{sHead}")
    a("s_lshl_b32 s24, s24, 10")
    a(f"s_add_u32 s24, s24, {WS_A2}")
    for i in range(8): a(f"v_mul_f32 v{O+i}, v{O+i}, v{vT}")
    for i in range(4): a(f"v_cvt_pk_bf16_f32 v{P+i}, v{O+2*i}, v{O+2*i+1}")
    a(f"buffer_store_dwordx4 {vr(P,4)}, v{vL16}, s[8:11], s24 offen")
    if stamps:
        a("s_waitcnt vmcnt(0) lgkmcnt(0)")
        a("s_memtime s[48:49]")
        a("s_waitcnt lgkmcnt(0)")
        a("s_lshl_b32 s30, s2, 3")
        a(f"s_add_u32 s30, s30, s{sW}")
        a("s_lshl_b32 s30, s30, 4")
        a("v_mov_b32 v8, s42"); a("v_mov_b32 v9, s44"); a("v_mov_b32 v10, s46"); a("v_mov_b32 v11, s48")
        a("v_mov_b32 v12, s30")
        a("v_cmp_eq_u32 vcc, 0, v1")
        a("s_and_saveexec_b64 s[32:33], vcc")
        a(f"s_cbranch_execz {name}_end")
        a("global_store_dwordx4 v12, v[8:11], s[40:41]")
    a(f"{name}_end:")
    a("s_endpgm")
    for p in ((0, 2, 4) if exp.get("burst") else ()):
        a(f"{name}_dma{p}:")
        dma_stage(); dma_stage()
        a(f"s_cmp_eq_u32 s{sI}, 0")
        a(f"s_branch {name}_dmaret{p}")
    if exp.get("burst"):
        a(f"{name}_sync:")
        a(f"s_cmp_eq_u32 s{sI}, 0")
        a(f"s_cbranch_scc1 {name}_sync0")
        a("s_waitcnt vmcnt(0)")
        a(f"{name}_sync0:")
        a("s_waitcnt vmcnt(12)")
        a("s_barrier")
        a(f"s_branch {name}_syncret")
    a(f"{name}_slow:")
    vSt = 7
    a(f"v_mov_b32 v{vK}, v{vL16}")
    a(f"v_mov_b32 v{vT}, 0xff800000")
    a(f"s_mov_b32 s{sI}, 0")
    a(f"{name}_slow1:")
    a(f"ds_read_b128 {vr(KB[0],4)}, v{vK}")
    a(f"v_add_u32 v{vK}, 1024, v{vK}")
    a("s_waitcnt lgkmcnt(0)")
    a(f"v_mfma_f32_32x32x16_bf16 {vr(S[0],16)}, {vr(KB[0],4)}, {vr(Q,4)}, 0")
    a("s_nop 15")
    for i in range(8): a(f"v_max3_f32 v{vT}, v{vT}, v{S[0]+2*i}, v{S[0]+2*i+1}")
    a(f"s_add_u32 s{sI}, s{sI}, 1")
    a(f"s_cmp_lt_u32 s{sI}, 64")
    a(f"s_cbranch_scc1 {name}_slow1")
    a(f"v_mov_b32 v{vT2}, v{vT}")
    a("s_nop 1")
    a(f"v_permlane32_swap_b32 v{vT}, v{vT2}")
    a("s_nop 1")
    a(f"v_max_f32 v{vT}, v{vT}, v{vT2}")
    for i in range(16): a(f"v_sub_f32 v{C+i}, 0, v{vT}")
    for i in range(16): a(f"v_mov_b32 v{O+i}, 0")
    a(f"v_mov_b32 v{vK}, v{vL16}")
    a(f"v_lshlrev_b32 v{vT2}, 3, v{vInc}")
    a(f"v_sub_u32 v{vV}, v{vV}, v{vT2}")
    a(f"v_lshrrev_b32 v{vSt}, 3, v{vInc}")
    a(f"s_mov_b32 s{sI}, 0")
    a(f"{name}_slow2:")
    a(f"ds_read_b128 {vr(KB[0],4)}, v{vK}")
    a(f"ds_read_b128 {vr(VB[0],4)}, v{vV}")
    a(f"ds_read_b128 {vr(VB[0]+4,4)}, v{vV} offset:512")
    a(f"v_add_u32 v{vK}, 1024, v{vK}")
    a(f"v_add_u32 v{vV}, v{vSt}, v{vV}")
    a("s_waitcnt lgkmcnt(0)")
    a(f"v_mfma_f32_32x32x16_bf16 {vr(S[0],16)}, {vr(KB[0],4)}, {vr(Q,4)}, {vr(C,16)}")
    a("s_nop 15")
    for i in range(16): a(f"v_exp_f32 v{S[0]+i}, v{S[0]+i}")
    a("s_nop 0")
    for i in range(8): a(f"v_cvt_pk_bf16_f32 v{P+i}, v{S[0]+2*i}, v{S[0]+2*i+1}")
    a("s_nop 1")
    a(f"v_mfma_f32_32x32x16_bf16 {vr(O,16)}, {vr(VB[0],4)}, {vr(P,4)}, {vr(O,16)}")
    a(f"v_mfma_f32_32x32x16_bf16 {vr(O,16)}, {vr(VB[0]+4,4)}, {vr(P+4,4)}, {vr(O,16)}")
    a(f"s_add_u32 s{sI}, s{sI}, 1")
    a(f"s_cmp_lt_u32 s{sI}, 64")
    a(f"s_cbranch_scc1 {name}_slow2")
    a("s_nop 15")
    a(f"s_branch {name}_fin")
    kernel_desc(a, name, 112)

if __name__ == "__main__":
    a = Asm()
    a('.amdgcn_target "amdgcn-amd-amdhsa--gfx950"')
    gen_k2(a)
    txt = a.text()
    ins, labels = parse_kernel(txt, "attn_kernel")
    for safe in (1, 0):
        tr = trace(ins, labels, {2: 5, "wave": 3, "$safe": safe})
        pr = check_trace(tr)
        print("safe", safe, "trace len", len(tr), "problems", len(pr))
        for p in pr[:20]: print("  ", p)
    open("k2.s", "w").write(txt)
```

```python
from common import *
K3_LDS = 4*17408
def gen_k3(a, name, stamps=False, exp={}):
    kernel_header(a, name)
    NK = 36; R = 9
    ACC = 16
    RING = 80
    vL16, vT0, vT1, vW0, vW1, vX, vA = 1, 2, 3, 4, 5, 6, 7
    XR = 224
    sW = 16
    a("s_cmp_ge_u32 s2, 256")
    a(f"s_cbranch_scc1 {name}_end")
    a(f"s_load_dwordx2 s[4:5], s[0:1], {ARG_WS}")
    a(f"s_load_dwordx2 s[6:7], s[0:1], {ARG_X}")
    a(f"s_load_dwordx2 s[20:21], s[0:1], {ARG_OUT}")
    if stamps:
        a(f"s_load_dwordx2 s[40:41], s[0:1], {ARG_DBG}")
        a("s_memtime s[42:43]")
    a(f"v_lshrrev_b32 v8, 6, v0")
    a(f"v_and_b32 v{vL16}, 63, v0")
    a(f"v_readfirstlane_b32 s{sW}, v8")
    a(f"v_lshlrev_b32 v{vL16}, 4, v{vL16}")
    a("s_and_b32 s17, s2, 7")
    a("s_lshr_b32 s18, s2, 3")
    a("s_and_b32 s19, s18, 3")
    a("s_lshl_b32 s17, s17, 2")
    a("s_add_u32 s17, s17, s19")
    a("s_lshr_b32 s18, s18, 2")
    a(f"s_mul_i32 s22, s17, {2*144*1024}")
    a(f"s_add_u32 s22, s22, {WS_A2}")
    a(f"s_mul_i32 s23, s18, {2*144*1024}")
    a(f"s_add_u32 s23, s23, {WS_WT}")
    a(f"s_mul_i32 s24, s{sW}, {NK*1024}")
    a(f"v_add_u32 v{vT0}, s22, v{vL16}")
    a(f"v_add_u32 v{vW0}, s23, v{vL16}")
    a(f"v_add_u32 v{vT1}, {144*1024}, v{vT0}")
    a(f"v_add_u32 v{vW1}, {144*1024}, v{vW0}")
    a(f"v_lshrrev_b32 v8, 2, v0")
    a(f"v_lshlrev_b32 v8, 10, v8")
    a(f"v_and_b32 v9, 3, v0")
    a(f"v_lshlrev_b32 v9, 5, v9")
    a(f"v_add_u32 v{vX}, v8, v9")
    a("s_lshl_b32 s25, s17, 16")
    a("s_lshl_b32 s26, s18, 7")
    a("s_add_u32 s25, s25, s26")
    a("s_waitcnt lgkmcnt(0)")
    srd(a, 8, 4, WS_SIZE)
    srd(a, 12, 6, 2048*1024)
    srd(a, 28, 20, 2048*1024)
    def loads(slot, imm):
        b = RING + slot*16
        for i, v in enumerate((vT0, vT1, vW0, vW1)):
            a(f"buffer_load_dwordx4 {vr(b+4*i,4)}, v{v}, s[8:11], s24 offen" + (f" offset:{imm}" if imm else ""))
    for i in range(R):
        loads(i, (i % 4)*1024)
        if i % 4 == 3: a("s_add_u32 s24, s24, 4096")
    a("s_add_u32 s24, s24, 1024")
    a(f"buffer_load_dwordx4 {vr(XR,4)}, v{vX}, s[12:15], s25 offen")
    a(f"buffer_load_dwordx4 {vr(XR+4,4)}, v{vX}, s[12:15], s25 offen offset:16")
    for i in range(64): a(f"v_mov_b32 v{ACC+i}, 0")
    def mfmas(slot):
        b = RING + slot*16
        for aa in range(2):
            for bb in range(2):
                d = ACC + (aa*2+bb)*16
                a(f"v_mfma_f32_32x32x16_bf16 {vr(d,16)}, {vr(b+8+4*aa,4)}, {vr(b+4*bb,4)}, {vr(d,16)}")
    a("s_mov_b32 s27, 0")
    a(f"{name}_loop:")
    for i in range(R):
        a(f"s_waitcnt vmcnt({4*(R-1)})")
        mfmas(i)
        loads(i, (i % 4)*1024)
        if i % 4 == 3: a("s_add_u32 s24, s24, 4096")
    a("s_add_u32 s24, s24, 1024")
    a("s_add_u32 s27, s27, 1")
    a(f"s_cmp_lt_u32 s27, {NK//R - 1}")
    a(f"s_cbranch_scc1 {name}_loop")
    for i in range(R):
        a(f"s_waitcnt vmcnt({4*(R-1-i)})")
        mfmas(i)
    if stamps: a("s_memtime s[44:45]")
    a(f"v_and_b32 v8, 31, v0")
    a(f"v_mul_u32_u24 v8, 272, v8")
    a(f"v_and_b32 v9, 32, v0")
    a(f"v_lshrrev_b32 v9, 1, v9")
    a(f"v_add_u32 v8, v8, v9")
    a(f"s_mul_i32 s26, s{sW}, 17408")
    a(f"v_add_u32 v{vA}, s26, v8")
    a("s_nop 7")
    for bb in range(2):
        for aa in range(2):
            d = ACC + (aa*2+bb)*16
            for q in range(4):
                a(f"ds_write_b128 v{vA}, {vr(d+4*q,4)} offset:{bb*32*272 + aa*128 + q*32}")
    a(f"v_lshrrev_b32 v8, 2, v0")
    a(f"v_mul_u32_u24 v8, 272, v8")
    a(f"v_and_b32 v9, 3, v0")
    a(f"v_lshlrev_b32 v9, 6, v9")
    a(f"v_add_u32 v{vA}, v8, v9")
    a("s_waitcnt lgkmcnt(0)")
    a("s_barrier")
    S = 80
    for w in range(4):
        for i in range(4):
            a(f"ds_read_b128 {vr(S+w*16+4*i,4)}, v{vA} offset:{w*17408 + i*16}")
        if w == 1: a("s_waitcnt lgkmcnt(4)")
    for i in range(8):
        a(f"v_lshlrev_b32 v{16+2*i}, 16, v{XR+i}")
        a(f"v_and_b32 v{17+2*i}, 0xffff0000, v{XR+i}")
    for w in range(4):
        a(f"s_waitcnt lgkmcnt({4*(3-w)})")
        for i in range(16): a(f"v_add_f32 v{16+i}, v{16+i}, v{S+w*16+i}")
    for i in range(8): a(f"v_cvt_pk_bf16_f32 v{32+i}, v{16+2*i}, v{17+2*i}")
    a(f"buffer_store_dwordx4 {vr(32,4)}, v{vX}, s[28:31], s25 offen")
    a(f"buffer_store_dwordx4 {vr(36,4)}, v{vX}, s[28:31], s25 offen offset:16")
    if stamps:
        a("s_waitcnt vmcnt(0) lgkmcnt(0)")
        a("s_memtime s[48:49]")
        a("s_waitcnt lgkmcnt(0)")
        a("s_lshl_b32 s30, s2, 3")
        a(f"s_add_u32 s30, s30, s{sW}")
        a("s_lshl_b32 s30, s30, 4")
        a("s_add_u32 s30, s30, 0x20000")
        a("v_mov_b32 v8, s42"); a("v_mov_b32 v9, s44"); a("v_mov_b32 v10, s44"); a("v_mov_b32 v11, s48")
        a("v_mov_b32 v12, s30")
        a("v_cmp_eq_u32 vcc, 0, v1")
        a("s_and_saveexec_b64 s[32:33], vcc")
        a(f"s_cbranch_execz {name}_end")
        a("global_store_dwordx4 v12, v[8:11], s[40:41]")
    a(f"{name}_end:")
    a("s_endpgm")
    kernel_desc(a, name, 232)

if __name__ == "__main__":
    a = Asm()
    a('.amdgcn_target "amdgcn-amd-amdhsa--gfx950"')
    gen_k3(a, "k3_kernel")
    txt = a.text()
    ins, labels = parse_kernel(txt, "k3_kernel")
    tr = trace(ins, labels, {2: 5, "wave": 3})
    pr = check_trace(tr)
    print("trace len", len(tr), "problems", len(pr))
    for p in pr[:20]: print("  ", p)
    open("k3.s", "w").write(txt)
```

```python
import sys, os
sys.path.insert(0, os.path.dirname(os.path.abspath(__file__)))
from common import *
import k1, k2, k3
NAME = "parallel_sum__softmax_full_mha__dense_activation_mish__prompt"
HEADER = """; Kernarg layout for this problem (80 bytes, ptrs only, base s[0:1]):
"""
def build(stamps=False, exp={}):
    a = Asm()
    K1, K2, K3 = "lnqkv_kernel", "attn_kernel", NAME + "_kernel"
    launches = [(K1, 384, k1.K1_LDS), (K2, 512, k2.K2_LDS), (K3, 256, k3.K3_LDS)]
    hdr = HEADER
    for (k, b, l) in launches:
        hdr += f"; @launch kernel={k} grid=(256,1,1) block=({b},1,1) lds={l}\n"
    a('.amdgcn_target "amdgcn-amd-amdhsa--gfx950"')
    k1.gen_k1(a, K1, stamps=stamps, exp=exp.get("k1", {}))
    k2.gen_k2(a, K2, stamps=stamps, exp=exp.get("k2", {}))
    k3.gen_k3(a, K3, stamps=stamps, exp=exp.get("k3", {}))
    return hdr + a.text(), launches
def check(txt):
    bad = 0
    K1, K2, K3 = "lnqkv_kernel", "attn_kernel", NAME + "_kernel"
    ins, labels = parse_kernel(txt, K1)
    for wg in [2*(c >> 2) + 64*(c & 3) for c in range(16)]:
        cs = ((wg & 7) >> 1)*4 + ((wg >> 3) >> 3)
        g0, n = k1.CS_TABLE[cs]
        nbs = set()
        for wave in (0, 4, 5):
            tr = trace(ins, labels, {2: wg, "wave": wave, "g0": g0, "n": n})
            pr = check_trace(tr); bad += len(pr)
            nbs.add(sum(1 for I in tr if I.op == "s_barrier"))
            for p in pr[:8]: print("  K1", wg, wave, p)
        if len(nbs) != 1: print("K1 barrier mismatch", wg, nbs); bad += 1
    ins, labels = parse_kernel(txt, K2)
    for safe in (1, 0):
        pr = check_trace(trace(ins, labels, {2: 5, "wave": 3, "$safe": safe})); bad += len(pr)
        for p in pr[:8]: print("  K2", p)
    ins, labels = parse_kernel(txt, K3)
    for wave in (0, 3):
        pr = check_trace(trace(ins, labels, {2: 5, "wave": wave})); bad += len(pr)
        for p in pr[:8]: print("  K3", p)
    return bad
if __name__ == "__main__":
    txt, _ = build()
    bad = check(txt)
    print("hazard problems:", bad)
    assert bad == 0
    out = "cdna_kernels/" + NAME + ".s"
    open(out, "w").write(txt)
    print("wrote", out, len(txt), "bytes")
```

```python
import sys, os, re
sys.path.insert(0, os.path.dirname(os.path.abspath(__file__)))
import build
from common import *
def instrument(txt, launches):
    out = txt
    for i, (k, b, l) in enumerate(launches):
        start = f"""  s_load_dwordx2 s[90:91], s[0:1], {ARG_DBG}
  s_memrealtime s[92:93]
  s_memtime s[86:87]
  s_waitcnt lgkmcnt(0)
  s_sub_u32 s90, s90, {512*i}
  s_subb_u32 s91, s91, 0
"""
        marker = f"  s_cbranch_scc1 {k}_end\n"
        j = out.index(marker, out.index(f"\n{k}:\n")) + len(marker)
        out = out[:j] + start + out[j:]
        end = f"""  s_waitcnt vmcnt(0) lgkmcnt(0)
  s_memrealtime s[94:95]
  s_memtime s[88:89]
  s_waitcnt lgkmcnt(0)
  s_mov_b64 exec, 1
  s_not_b32 s92, s92
  s_sub_u32 s88, s88, s86
  v_mov_b32 v2, 0
  v_mov_b32 v3, s92
  v_mov_b32 v4, s94
  v_mov_b32 v5, s88
  global_atomic_umax v2, v3, s[90:91] offset:{16*i}
  global_atomic_umax v2, v4, s[90:91] offset:{16*i+4}
  global_atomic_umax v2, v5, s[90:91] offset:{16*i+8}
  s_waitcnt vmcnt(0)
"""
        lab = f"{k}_end:\n"
        j = out.index("\n" + lab) + 1
        out = out[:j] + end + out[j:]
    return out
txt, launches = build.build(exp=eval(sys.argv[1]) if len(sys.argv) > 1 else {})
txt = instrument(txt, launches)
txt = txt.replace(".amdhsa_next_free_sgpr 96", ".amdhsa_next_free_sgpr 100")
os.makedirs("var", exist_ok=True)
open("diag.s", "w").write(txt)
print("ok")
```

```python
import sys, os, re
sys.path.insert(0, os.path.dirname(os.path.abspath(__file__)))
import build
from common import *
def instrument(txt, launches):
    out = txt
    for i, (k, b, l) in enumerate(launches):
        start = f"""  s_load_dwordx2 s[90:91], s[0:1], {ARG_DBG}
  s_load_dwordx2 s[84:85], s[0:1], {ARG_WS}
  s_memrealtime s[92:93]
  s_memtime s[86:87]
  s_waitcnt lgkmcnt(0)
  s_add_u32 s84, s84, 0x0f000000
  s_addc_u32 s85, s85, 0
"""
        marker = f"  s_cbranch_scc1 {k}_end\n"
        j = out.index(marker, out.index(f"\n{k}:\n")) + len(marker)
        out = out[:j] + start + out[j:]
        gather = ""
        if i == 2:
            gather = f"""  global_load_dwordx4 v[8:11], v2, s[84:85] sc0 sc1
  global_load_dwordx4 v[12:15], v2, s[84:85] offset:16 sc0 sc1
  s_waitcnt vmcnt(0)
  global_store_dwordx4 v2, v[8:11], s[90:91]
  global_store_dwordx4 v2, v[12:15], s[90:91] offset:16
  global_store_dwordx4 v2, v[4:7], s[90:91] offset:32
"""
        end = f"""  s_waitcnt vmcnt(0) lgkmcnt(0)
  s_memrealtime s[94:95]
  s_memtime s[88:89]
  s_waitcnt lgkmcnt(0)
  s_cmp_lg_u32 s2, WGSEL
  s_cbranch_scc1 {k}_end
  v_cmp_eq_u32 vcc, 0, v0
  s_and_saveexec_b64 s[82:83], vcc
  s_cbranch_execz {k}_end
  s_sub_u32 s88, s88, s86
  v_mov_b32 v2, 0
  v_mov_b32 v4, s92
  v_mov_b32 v5, s94
  v_mov_b32 v6, s88
  v_mov_b32 v7, {0x1111*(i+1)}
  global_store_dwordx4 v2, v[4:7], s[84:85] offset:{16*i}
  global_store_dword v2, v7, s[90:91] offset:{60-4*i}
{gather}  s_waitcnt vmcnt(0)
""".replace("WGSEL", os.environ.get("WGSEL", "0"))
        lab = f"{k}_end:\n"
        j = out.index("\n" + lab) + 1
        out = out[:j] + end + out[j:]
    return out
txt, launches = build.build(exp=eval(sys.argv[1]) if len(sys.argv) > 1 else {})
txt = instrument(txt, launches)
txt = txt.replace(".amdhsa_next_free_sgpr 96", ".amdhsa_next_free_sgpr 100")
os.makedirs("var", exist_ok=True)
open("diag.s", "w").write(txt)
print("ok")
```

```python
from asmlib import *
MB = 1 << 20
WS_Q, WS_K, WS_V = 0, 2*MB, 4*MB
WS_A2 = 8*MB
WS_WT = 18*MB
WS_PART = 21*MB
WS_SIZE = 0x10000000
ARG_X, ARG_WQKV, ARG_WO, ARG_BX, ARG_W1, ARG_B1, ARG_W2, ARG_OUT, ARG_DBG, ARG_WS = [8*i for i in range(10)]

def kernel_header(a, name):
    a(".text")
    a(f".globl {name}")
    a(".p2align 8")
    a(f".type {name},@function")
    a(f"{name}:")

def kernel_desc(a, name, nvgpr, nsgpr=96, nagpr=0):
    acc = (nvgpr + 3)//4*4
    a('.section .rodata,"a"')
    a(".p2align 6")
    a(f".amdhsa_kernel {name}")
    a(f"  .amdhsa_next_free_vgpr {acc + nagpr}")
    a(f"  .amdhsa_next_free_sgpr {nsgpr}")
    a(f"  .amdhsa_accum_offset {acc}")
    a("  .amdhsa_group_segment_fixed_size 0")
    a("  .amdhsa_kernarg_size 80")
    a("  .amdhsa_user_sgpr_count 2")
    a("  .amdhsa_user_sgpr_kernarg_segment_ptr 1")
    a("  .amdhsa_system_sgpr_workgroup_id_x 1")
    a("  .amdhsa_float_denorm_mode_32 3")
    a("  .amdhsa_ieee_mode 0")
    a(".end_amdhsa_kernel")

def srd(a, s, base_s, size):
    a(f"s_mov_b32 s{s}, s{base_s}")
    a(f"s_and_b32 s{s+1}, s{base_s+1}, 0xffff")
    a(f"s_mov_b32 s{s+2}, {size:#x}")
    a(f"s_mov_b32 s{s+3}, 0x00020000")

class Stamper:
    def __init__(self, a, on, vreg, slot, sreg=84):
        self.a, self.on, self.v, self.slot, self.s = a, on, vreg, slot, sreg
    def init(self):
        if not self.on: return
        a = self.a
        a(f"s_load_dwordx2 s[{self.s+2}:{self.s+3}], s[0:1], {ARG_DBG}")
        a(f"v_mov_b32 v{self.v}, 0")
        self(0)
    def __call__(self, idx):
        if not self.on: return
        a = self.a
        a(f"s_memtime s[{self.s}:{self.s+1}]")
        a("s_waitcnt lgkmcnt(0)")
        a(f"v_writelane_b32 v{self.v}, s{self.s}, {idx}")
    def dump(self, sW, endlabel):
        if not self.on: return
        a = self.a
        a("s_waitcnt vmcnt(0)")
        self(63)
        a(f"s_lshl_b32 s{self.s}, s2, 4")
        a(f"s_add_u32 s{self.s}, s{self.s}, s{sW}")
        a(f"s_lshl_b32 s{self.s}, s{self.s}, 8")
        a(f"s_add_u32 s{self.s}, s{self.s}, {self.slot*0x100000}")
        a(f"v_mbcnt_lo_u32_b32 v8, -1, 0")
        a(f"v_mbcnt_hi_u32_b32 v8, -1, v8")
        a(f"v_lshlrev_b32 v8, 2, v8")
        a(f"v_add_u32 v8, s{self.s}, v8")
        a(f"global_store_dword v8, v{self.v}, s[{self.s+2}:{self.s+3}]")
```

```python
from common import *
import math, struct
K1_LDS = 163840
def f2u(x): return struct.unpack("<I", struct.pack("<f", x))[0]
LOG2E = 1.4426950408889634
LN2 = 0.6931471805599453
QSCALE = 0.25*LOG2E

def weave(main, fill, start, end):
    out = []
    n = end - start
    k = 0
    for g, gap in enumerate(main):
        out += gap
        if start <= g < end:
            upto = (len(fill)*(g-start+1) + n - 1)//n
            out += fill[k:upto]; k = upto
    out += fill[k:]
    return out

def gen_k1(a, name, stamps=False, exp={}):
    kernel_header(a, name)
    X = 128; ACC = 16; E = 32; WB = 48; NWB = 6; T = 72
    SEL = 92; BIAS = 96; XAUG = 100; RTOK = 108
    PF = exp.get("pf", 4)
    SC = " sc1" if exp.get("sc1", 1) else ""
    vL16, vWa, vWbase, vSt, vR, vB2, vC1 = 1, 2, 3, 4, 5, 6, 7
    t8, t9, t10, t11 = 8, 9, 10, 11
    sW, sRB, sCS, sG0, sN, sTile = 32, 33, 34, 35, 36, 37
    sJ, sG, sSt, sSt2, sRS, sNP = 38, 39, 40, 41, 44, 45
    SX, SWm, SWS, SB1, SWO, SW2 = 8, 12, 16, 20, 24, 28
    a("s_cmp_ge_u32 s2, 256")
    a(f"s_cbranch_scc1 {name}_end")
    a("s_load_dwordx4 s[48:51], s[0:1], 0")
    a("s_load_dwordx2 s[52:53], s[0:1], 16")
    a("s_load_dwordx4 s[56:59], s[0:1], 32")
    a("s_load_dwordx2 s[60:61], s[0:1], 48")
    a(f"s_load_dwordx2 s[62:63], s[0:1], {ARG_WS}")
    ST = Stamper(a, stamps, 126, 1)
    ST.init()
    a(f"v_lshrrev_b32 v{t8}, 6, v0")
    a(f"v_and_b32 v{vL16}, 63, v0")
    a(f"v_readfirstlane_b32 s{sW}, v{t8}")
    a(f"v_lshlrev_b32 v{vL16}, 4, v{vL16}")
    a("s_and_b32 s3, s2, 1")
    a("s_lshl_b32 s3, s3, 3")
    a("s_lshr_b32 s4, s2, 3")
    a("s_and_b32 s5, s4, 7")
    a(f"s_add_u32 s{sRB}, s3, s5")
    a("s_and_b32 s3, s2, 7")
    a("s_lshr_b32 s3, s3, 1")
    a("s_lshl_b32 s3, s3, 2")
    a("s_lshr_b32 s4, s4, 3")
    a(f"s_add_u32 s{sCS}, s3, s4")
    a(f"s_sub_u32 s3, s{sCS}, 8")
    a("s_and_b32 s3, s3, 7")
    a("s_lshl_b32 s4, s3, 2")
    a("s_lshr_b32 s5, 0x55677666, s4")
    a("s_and_b32 s5, s5, 15")
    a("s_lshl_b32 s4, s3, 3")
    a("s_mov_b32 s6, 0x120c0600")
    a("s_mov_b32 s7, 0x2b262019")
    a("s_lshr_b64 s[6:7], s[6:7], s4")
    a("s_and_b32 s6, s6, 255")
    a(f"s_mul_i32 s4, s{sCS}, 7")
    a(f"s_cmp_lt_u32 s{sCS}, 8")
    a(f"s_cselect_b32 s{sG0}, s4, s6")
    a(f"s_cselect_b32 s{sN}, 7, s5")
    a(f"s_movk_i32 s4, 3072")
    a(f"s_cselect_b32 s{sRS}, 3584, s4")
    a(f"s_and_b32 s3, s{sG0}, 1")
    a(f"s_add_u32 s3, s3, s{sN}")
    a("s_add_u32 s3, s3, 1")
    a(f"s_lshr_b32 s{sNP}, s3, 1")
    a(f"s_lshl_b32 s{sTile}, s{sRB}, 2")
    a(f"s_add_u32 s{sTile}, s{sTile}, s{sW}")
    a("s_waitcnt lgkmcnt(0)")
    ST(1)
    srd(a, SX, 48, 2048*1024)
    a(f"s_cmp_lt_u32 s{sCS}, 8")
    a("s_cselect_b32 s4, s56, s50")
    a("s_cselect_b32 s5, s57, s51")
    a(f"s_mov_b32 s{SWm}, s4")
    a(f"s_and_b32 s{SWm+1}, s5, 0xffff")
    a(f"s_lshl_b32 s{SWm+2}, s{sRS}, 9")
    a(f"s_mov_b32 s{SWm+3}, 0x00020000")
    srd(a, SWS, 62, WS_SIZE)
    a(f"s_cmp_ge_u32 s{sW}, 4")
    a(f"s_cbranch_scc1 {name}_loader")
    a(f"s_lshl_b32 s3, s{sW}, 15")
    a("s_add_u32 s3, s3, 32768")
    a(f"s_lshl_b32 s4, s{sTile}, 15")
    a("s_lshr_b32 s6, s2, 6")
    a("s_and_b32 s6, s6, 3")
    a("s_lshl_b32 s6, s6, 3")
    a("s_mov_b32 s7, 4")
    a(f"{name}_xl:")
    a("s_lshl_b32 s5, s6, 10")
    a("s_add_u32 m0, s3, s5")
    a("s_and_b32 s42, s6, 8")
    a("s_lshl_b32 s42, s42, 4")
    a(f"v_xor_b32 v{t10}, s42, v{vL16}")
    a("s_add_u32 s5, s4, s5")
    for i in range(8):
        if i == 4:
            a("s_add_u32 m0, m0, 4096")
            a("s_add_u32 s5, s5, 4096")
        tv = t8 if i % 2 == 0 else t9
        if i == 0: tv = t10
        else: a(f"v_xor_b32 v{tv}, {i*16}, v{t10}")
        a(f"buffer_load_dwordx4 v{tv}, s[{SX}:{SX+3}], s5 offen offset:{(i%4)*1024} lds")
    a("s_add_u32 s6, s6, 8")
    a("s_and_b32 s6, s6, 31")
    a("s_sub_u32 s7, s7, 1")
    a("s_cmp_lg_u32 s7, 0")
    a(f"s_cbranch_scc1 {name}_xl")
    ST(2)
    a(f"v_and_b32 v{t8}, 31, v0")
    a(f"v_bfe_u32 v{t9}, v0, 5, 1")
    a(f"v_lshlrev_b32 v{t9}, 3, v{t9}")
    a(f"v_sub_u32 v{t8}, v{t8}, v{t9}")
    a(f"v_mov_b32 v{t10}, 0x3f80")
    a(f"v_mov_b32 v{t11}, 0x3f800000")
    for r in range(4):
        a(f"v_mov_b32 v{SEL+r}, 0")
        a(f"v_cmp_eq_u32 vcc, {2*r}, v{t8}")
        a("s_nop 1")
        a(f"v_cndmask_b32 v{SEL+r}, v{SEL+r}, v{t10}, vcc")
        a(f"v_cmp_eq_u32 vcc, {2*r+1}, v{t8}")
        a("s_nop 1")
        a(f"v_cndmask_b32 v{SEL+r}, v{SEL+r}, v{t11}, vcc")
    for r in range(1, 4):
        a(f"v_mov_b32 v{BIAS+r}, 0")
        a(f"v_mov_b32 v{XAUG+r}, 0")
    a(f"v_mov_b32 v{BIAS}, 0")
    a(f"v_and_b32 v{t8}, 31, v0")
    a(f"v_lshlrev_b32 v{t9}, 10, v{t8}")
    a(f"v_and_b32 v{t8}, 15, v0")
    a(f"v_bfe_u32 v{t10}, v0, 5, 1")
    a(f"v_xor_b32 v{t8}, v{t8}, v{t10}")
    a(f"v_lshlrev_b32 v{t8}, 4, v{t8}")
    a(f"v_add_u32 v{t9}, v{t9}, v{t8}")
    a(f"v_add_u32 v{t9}, s3, v{t9}")
    XA = 80
    for b in range(8): a(f"v_xor_b32 v{XA+b}, {32*b}, v{t9}")
    a(f"v_bfe_u32 v{t8}, v0, 5, 1")
    a(f"v_lshlrev_b32 v{t8}, 2, v{t8}")
    a(f"v_bfe_u32 v{t10}, v0, 2, 2")
    a(f"v_add_u32 v{t8}, v{t8}, v{t10}")
    a(f"v_lshlrev_b32 v{t8}, 7, v{t8}")
    a(f"v_bfe_u32 v{t10}, v0, 4, 1")
    a(f"v_lshlrev_b32 v{t10}, 1, v{t10}")
    a(f"v_bfe_u32 v{t11}, v0, 1, 1")
    a(f"v_add_u32 v{t10}, v{t10}, v{t11}")
    a(f"v_bfe_u32 v{t11}, v0, 3, 1")
    a(f"v_lshlrev_b32 v{t11}, 2, v{t11}")
    a(f"v_xor_b32 v{t10}, v{t10}, v{t11}")
    a(f"v_lshlrev_b32 v{t10}, 4, v{t10}")
    a(f"v_add_u32 v{t8}, v{t8}, v{t10}")
    a(f"v_and_b32 v{t10}, 1, v0")
    a(f"v_lshlrev_b32 v{t10}, 3, v{t10}")
    a(f"v_add_u32 v{vWbase}, v{t8}, v{t10}")
    a(f"v_mov_b32 v{t11}, 0x3f803f80")
    for i in range(16): a(f"v_mov_b32 v{ACC+i}, 0")
    a("s_waitcnt vmcnt(0)")
    ST(3)
    def rd(s):
        aa, b = s // 8, s % 8
        a(f"ds_read_b128 {vr(X+4*s,4)}, v{XA+b} offset:{256*aa}")
    for s in range(12): rd(s)
    for s in range(32):
        if s + 12 < 32: rd(s + 12)
        a(f"s_waitcnt lgkmcnt({min(12, 31-s)})")
        o = 4*(s & 1)
        for r in range(4):
            a(f"v_dot2c_f32_bf16 v{ACC+o+r}, v{X+4*s+r}, v{t11}")
            a(f"v_dot2c_f32_bf16 v{ACC+8+o+r}, v{X+4*s+r}, v{X+4*s+r}")
    ST(4)
    a("s_barrier")
    ST(5)
    a("s_nop 1")
    for st in (4, 2, 1):
        for i in range(st):
            a(f"v_add_f32 v{ACC+i}, v{ACC+i}, v{ACC+i+st}")
            a(f"v_add_f32 v{ACC+8+i}, v{ACC+8+i}, v{ACC+8+i+st}")
    a(f"v_mov_b32 v{ACC+1}, v{ACC}")
    a(f"v_mov_b32 v{ACC+9}, v{ACC+8}")
    a("s_nop 1")
    a(f"v_permlane32_swap_b32 v{ACC}, v{ACC+1}")
    a(f"v_permlane32_swap_b32 v{ACC+8}, v{ACC+9}")
    a("s_nop 1")
    a(f"v_add_f32 v{ACC}, v{ACC}, v{ACC+1}")
    a(f"v_add_f32 v{ACC+8}, v{ACC+8}, v{ACC+9}")
    a(f"v_mul_f32 v{ACC}, {f2u(1.0/512):#x}, v{ACC}")
    a(f"v_mul_f32 v{ACC+8}, {f2u(1.0/512):#x}, v{ACC+8}")
    a(f"v_cvt_pk_bf16_f32 v{ACC+1}, v{ACC}, v{ACC}")
    a(f"v_fma_f32 v{t8}, -v{ACC}, v{ACC}, v{ACC+8}")
    a(f"v_lshlrev_b32 v{ACC+1}, 16, v{ACC+1}")
    a(f"v_max_f32 v{t8}, 0, v{t8}")
    NEG = 48
    for i in range(16): a(f"v_sub_f32 v{NEG+i}, 0, v{ACC+1}")
    SQ = t8
    a(f"v_cvt_pk_bf16_f32 v{SQ}, v{SQ}, v{SQ}")
    a(f"v_lshlrev_b32 v{SQ}, 16, v{SQ}")
    a(f"v_add_f32 v{SQ}, {f2u(1e-5):#x}, v{SQ}")
    a(f"v_cvt_pk_bf16_f32 v{SQ}, v{SQ}, v{SQ}")
    a(f"v_lshlrev_b32 v{SQ}, 16, v{SQ}")
    a(f"v_sqrt_f32 v{SQ}, v{SQ}")
    a("s_nop 0")
    DB = [ACC, E, 64]
    def cM(s): a(f"v_mfma_f32_32x32x16_bf16 {vr(DB[s%3],16)}, {vr(SEL,4)}, {vr(X+4*s,4)}, {vr(NEG,16)}")
    def cC(s):
        for r in range(4): a(f"v_cvt_pk_bf16_f32 v{X+4*s+r}, v{DB[s%3]+2*r}, v{DB[s%3]+2*r+1}")
    a(f"v_cvt_pk_bf16_f32 v{SQ+1}, v{SQ}, v{SQ}")
    a(f"v_and_b32 v{SQ+1}, 0xffff, v{SQ+1}")
    cM(0)
    a(f"v_lshlrev_b32 v{SQ}, 16, v{SQ+1}")
    a(f"v_rcp_f32 v{vR}, v{SQ}")
    a(f"v_bfe_u32 v{SQ+2}, v0, 5, 1")
    a(f"v_cmp_eq_u32 vcc, 0, v{SQ+2}")
    cM(1)
    a("s_nop 0")
    a(f"v_cndmask_b32 v{XAUG}, 0, v{SQ+1}, vcc")
    a("s_nop 3")
    for s in range(32):
        if s + 2 < 32: cM(s + 2)
        else: a("s_nop 0")
        cC(s)
        a("s_nop 1")
    ST(6)
    a(f"s_mov_b32 s{sJ}, 0")
    a(f"s_mov_b32 s{sG}, s{sG0}")
    a(f"s_mov_b32 s{sSt}, 0x7ff00000")
    a(f"s_mov_b32 s{sSt2}, 0x7ff00000")
    a(f"s_cmp_lt_u32 s{sCS}, 8")
    a(f"s_cbranch_scc1 {name}_F")
    a(f"s_cmp_lt_u32 s{sCS}, 13")
    a(f"s_cbranch_scc1 {name}_QK")
    a(f"s_branch {name}_V")

    def epilogue(ty):
        L = []
        P = T + 12
        if ty == "F":
            t, e, w = T, T+4, T+8
            for q in range(4):
                Eq = E + 4*q
                L += [f"v_mul_f32 v{t+i}, v{Eq+i}, v{vR}" for i in range(4)]
                L += [f"v_exp_f32 v{e+i}, v{t+i}" for i in range(4)]
                L += [f"v_add_f32 v{e+i}, 1.0, v{e+i}" for i in range(4)]
                L += [f"v_fma_f32 v{w+i}, v{e+i}, v{e+i}, 1.0" for i in range(4)]
                L += [f"v_rcp_f32 v{w+i}, v{w+i}" for i in range(4)]
                L += [f"v_fmaak_f32 v{w+i}, v{w+i}, v{vC1}, {f2u(LN2):#x}" for i in range(4)]
                L += [f"v_mul_f32 v{t+i}, v{t+i}, v{w+i}" for i in range(4)]
                L += [f"v_cvt_pk_bf16_f32 v{P+2*q+i}, v{t+2*i}, v{t+2*i+1}" for i in range(2)]
                if q == 1: L += [f"buffer_store_dwordx4 {vr(P,4)}, v{vSt}, s[{SWS}:{SWS+3}], s{sSt} offen{SC}"]
                if q == 3: L += [f"buffer_store_dwordx4 {vr(P+4,4)}, v{vSt}, s[{SWS}:{SWS+3}], s{sSt} offen offset:1024{SC}"]
        elif ty == "QK":
            for q in range(4):
                Eq = E + 4*q
                L += [f"v_mul_f32 v{T+i}, v{Eq+i}, v{vC1}" for i in range(4)]
                L += [f"v_cvt_pk_bf16_f32 v{P+2*q+i}, v{T+2*i}, v{T+2*i+1}" for i in range(2)]
                if q == 1: L += [f"buffer_store_dwordx4 {vr(P,4)}, v{vSt}, s[{SWS}:{SWS+3}], s{sSt} offen{SC}"]
                if q == 3: L += [f"buffer_store_dwordx4 {vr(P+4,4)}, v{vSt}, s[{SWS}:{SWS+3}], s{sSt2} offen{SC}"]
        else:
            for q in range(4):
                Eq = E + 4*q
                L += [f"v_mul_f32 v{T+i}, v{Eq+i}, v{RTOK+4*q+i}" for i in range(4)]
                L += [f"v_cvt_pk_bf16_f32 v{P+2*q+i}, v{T+2*i}, v{T+2*i+1}" for i in range(2)]
                if q == 1: L += [f"buffer_store_dwordx4 {vr(P,4)}, v{vSt}, s[{SWS}:{SWS+3}], s{sSt} offen{SC}"]
                if q == 3: L += [f"buffer_store_dwordx4 {vr(P+4,4)}, v{vSt}, s[{SWS}:{SWS+3}], s{sSt} offen offset:512{SC}"]
        return L

    def store_addr(ty):
        L = []
        if ty == "F":
            L += [f"s_mul_i32 s3, s{sTile}, 144", f"s_lshl_b32 s4, s{sG}, 1", "s_add_u32 s3, s3, s4", "s_add_u32 s3, s3, 32", "s_lshl_b32 s3, s3, 10", f"s_add_u32 s{sSt}, s3, {WS_A2}"]
        elif ty == "QK":
            L += [f"s_and_b32 s3, s{sG}, 15", "s_lshl_b32 s3, s3, 17", f"s_lshl_b32 s4, s{sTile}, 10", "s_add_u32 s3, s3, s4",
                  f"s_lshr_b32 s4, s{sG}, 4", "s_lshl_b32 s4, s4, 21", f"s_add_u32 s{sSt}, s3, s4", f"s_add_u32 s{sSt2}, s{sSt}, 65536",
                  f"s_cmp_lt_u32 s{sG}, 16", f"s_cselect_b32 s3, {f2u(QSCALE):#x}, 1.0", f"v_mul_f32 v{vC1}, s3, v{vR}"]
        else:
            L += [f"s_sub_u32 s3, s{sG}, 32", "s_lshl_b32 s3, s3, 17", f"s_lshl_b32 s4, s{sTile}, 10", "s_add_u32 s3, s3, s4", f"s_add_u32 s{sSt}, s3, {WS_V}"]
        return L

    def group_loop(ty):
        a(f"{name}_{ty}:")
        if ty == "F":
            a(f"v_mul_f32 v{vR}, {f2u(LOG2E):#x}, v{vR}")
            a(f"v_mov_b32 v{vC1}, {f2u(-2.0*struct.unpack('<f', struct.pack('<f', LN2))[0]):#x}")
            a(f"v_mov_b32 v{vSt}, v{vL16}")
            a(f"v_and_b32 v{vB2}, 31, v0")
            a(f"v_lshlrev_b32 v{vB2}, 1, v{vB2}")
            srd(a, SB1, 58, 1792*2)
        elif ty == "QK":
            a(f"v_mov_b32 v{vSt}, v{vL16}")
            a(f"v_mov_b32 v{vC1}, 0")
        else:
            a(f"s_lshl_b32 s3, s{sW}, 7")
            a(f"s_add_u32 s3, s3, {150*1024}")
            a(f"v_and_b32 v{t8}, 31, v0")
            a(f"v_lshlrev_b32 v{t8}, 2, v{t8}")
            a(f"v_add_u32 v{t8}, s3, v{t8}")
            a(f"ds_write_b32 v{t8}, v{vR}")
            a(f"v_bfe_u32 v{t9}, v0, 5, 1")
            a(f"v_lshlrev_b32 v{t9}, 4, v{t9}")
            a(f"v_add_u32 v{t9}, s3, v{t9}")
            a("s_waitcnt lgkmcnt(0)")
            for q in range(4): a(f"ds_read_b128 {vr(RTOK+4*q,4)}, v{t9} offset:{32*q}")
            a(f"v_bfe_u32 v{t8}, v0, 4, 1")
            a(f"v_lshlrev_b32 v{t8}, 16, v{t8}")
            a(f"v_bfe_u32 v{t9}, v0, 5, 1")
            a(f"v_lshlrev_b32 v{t9}, 8, v{t9}")
            a(f"v_add_u32 v{t8}, v{t8}, v{t9}")
            a(f"v_and_b32 v{t9}, 15, v0")
            a(f"v_lshlrev_b32 v{t9}, 4, v{t9}")
            a(f"v_add_u32 v{vSt}, v{t8}, v{t9}")
            a("s_waitcnt lgkmcnt(0)")
        a("s_barrier")
        ST(7)
        a(f"{name}_{ty}_loop:")
        a(f"s_cmp_eq_u32 s{sJ}, 0")
        a(f"s_cbranch_scc1 {name}_{ty}_nobar")
        a(f"s_bitcmp1_b32 s{sG}, 0")
        a(f"s_cbranch_scc1 {name}_{ty}_nobar")
        a("s_barrier")
        a(f"{name}_{ty}_nobar:")
        a(f"s_lshr_b32 s3, s{sG}, 1")
        a(f"s_lshr_b32 s4, s{sG0}, 1")
        a("s_sub_u32 s3, s3, s4")
        a("s_and_b32 s3, s3, 1")
        a("s_lshl_b32 s3, s3, 16")
        a(f"s_and_b32 s4, s{sG}, 1")
        a("s_lshl_b32 s4, s4, 6")
        a(f"v_xor_b32 v{vWa}, s4, v{vWbase}")
        a(f"v_add_u32 v{vWa}, s3, v{vWa}")
        if ty == "F":
            a(f"s_lshl_b32 s4, s{sG}, 6")
            a(f"buffer_load_ushort v{BIAS}, v{vB2}, s[{SB1}:{SB1+3}], s4 offen")
        def rdW(s):
            b = WB + 4*(s % NWB)
            return [f"ds_read_b64_tr_b16 {vr(b,2)}, v{vWa} offset:{s*2048}", f"ds_read_b64_tr_b16 {vr(b+2,2)}, v{vWa} offset:{s*2048+1024}"]
        for s in range(PF): a.extend(rdW(s))
        gaps = []
        for s in range(32):
            g = []
            g.append(f"s_waitcnt lgkmcnt({2*min(PF-1, 31-s)})")
            b = WB + 4*(s % NWB)
            last = (s == 31 and ty != "F")
            D = E if last else ACC
            C = "0" if s == 0 else vr(ACC,16)
            if ty == "V": g.append(f"v_mfma_f32_32x32x16_bf16 {vr(D,16)}, {vr(X+4*s,4)}, {vr(b,4)}, {C}")
            else:         g.append(f"v_mfma_f32_32x32x16_bf16 {vr(D,16)}, {vr(b,4)}, {vr(X+4*s,4)}, {C}")
            if s + PF < 32: g += rdW(s + PF)
            gaps.append(g)
        epi = epilogue(ty)
        if exp.get("noweave"):
            a("s_nop 15"); a.extend(epi)
            for g in gaps: a.extend(g)
        else:
            a.extend(weave(gaps, epi, 2, 29))
        if ty == "F":
            a("s_waitcnt vmcnt(2)")
            a(f"v_mfma_f32_32x32x16_bf16 {vr(E,16)}, {vr(BIAS,4)}, {vr(XAUG,4)}, {vr(ACC,16)}")
        if stamps:
            a(f"s_add_u32 m0, s{sJ}, 8")
            a("s_memtime s[84:85]")
            a("s_waitcnt lgkmcnt(0)")
            a("s_nop 3")
            a("v_writelane_b32 v126, s84, m0")
        a.extend(store_addr(ty))
        a(f"s_add_u32 s{sJ}, s{sJ}, 1")
        a(f"s_add_u32 s{sG}, s{sG}, 1")
        a(f"s_cmp_lt_u32 s{sJ}, s{sN}")
        a(f"s_cbranch_scc1 {name}_{ty}_loop")
        a("s_nop 15")
        a.extend(epi)
        a(f"s_branch {name}_fin")
    for ty in ("F", "QK", "V"): group_loop(ty)

    a(f"{name}_loader:")
    sU, sP, sK, sM = 46, 47, 64, 65
    vD = 2
    a(f"s_sub_u32 s{sU}, s{sW}, 4")
    a(f"v_bfe_u32 v3, v0, 3, 3")
    a(f"v_mul_lo_u32 v{vD}, s{sRS}, v3")
    a(f"v_and_b32 v3, 7, v0")
    a(f"v_bfe_u32 v4, v0, 4, 1")
    a(f"v_lshlrev_b32 v4, 2, v4")
    a(f"v_xor_b32 v3, v3, v4")
    a(f"v_lshlrev_b32 v3, 4, v3")
    a(f"v_add_u32 v{vD}, v{vD}, v3")
    a(f"s_lshr_b32 s{sP}, s{sG0}, 1")
    a(f"s_lshl_b32 s{sP}, s{sP}, 7")
    a(f"s_lshl_b32 s66, s{sRS}, 4")
    a(f"s_lshl_b32 s67, s{sRS}, 3")
    a(f"s_mul_i32 s67, s67, s{sU}")
    a("s_lshr_b32 s43, s2, 3")
    a("s_and_b32 s43, s43, 7")
    def dma_rows(lbl, i0, n, slot_s):
        a(f"s_mul_i32 s6, s43, {n//8}")
        a(f"s_mov_b32 s5, {n}")
        a(f"s_lshl_b32 s7, s{sU}, 10")
        a(f"s_add_u32 s7, s7, {slot_s}")
        a(f"s_add_u32 s7, s7, {i0*2048}")
        a(f"s_mul_i32 s42, s66, {i0}")
        a(f"s_add_u32 s42, s42, s67")
        a(f"s_add_u32 s42, s42, s{sP}")
        a(f"{lbl}:")
        a("s_lshl_b32 s3, s6, 11")
        a("s_add_u32 m0, s7, s3")
        a("s_mul_i32 s3, s6, s66")
        a("s_add_u32 s3, s3, s42")
        a(f"buffer_load_dwordx4 v{vD}, s[{SWm}:{SWm+3}], s3 offen lds")
        a("s_add_u32 s6, s6, 1")
        a(f"s_and_b32 s6, s6, {n-1}")
        a("s_sub_u32 s5, s5, 1")
        a("s_cmp_lg_u32 s5, 0")
        a(f"s_cbranch_scc1 {lbl}")
    dma_rows(f"{name}_l0", 0, 16, "0")
    srd(a, SWO, 52, 512*1024)
    srd(a, SW2, 60, 1792*1024)
    ST(2)
    a("s_waitcnt vmcnt(0)")
    ST(3)
    a("s_barrier          ; B1")
    ST(5)
    dma_rows(f"{name}_l1", 16, 16, "0")
    if exp.get("touch", 1):
        a(f"v_and_b32 v8, 63, v0")
        a(f"s_lshl_b32 s3, s43, 7")
        a(f"s_lshl_b32 s4, s{sU}, 6")
        a("s_add_u32 s3, s3, s4")
        a(f"v_add_u32 v8, s3, v8")
        a(f"v_and_b32 v9, 511, v8")
        a(f"v_mul_lo_u32 v9, s{sRS}, v9")
        a(f"v_lshrrev_b32 v8, 9, v8")
        a(f"v_lshlrev_b32 v8, 7, v8")
        a(f"v_add_u32 v9, v9, v8")
        a(f"s_add_u32 s3, s{sP}, 256")
        a(f"buffer_load_dword v10, v9, s[{SWm}:{SWm+3}], s3 offen")
    a(f"s_add_u32 s{sP}, s{sP}, 128")
    dma_rows(f"{name}_l2", 0, 16, "65536")
    ST(6)
    a("s_waitcnt vmcnt(%d)" % (17 if exp.get("touch", 1) else 16))
    ST(4)
    a("s_barrier          ; B2")
    ST(7)
    dma_rows(f"{name}_l2b", 16, 16, "65536")
    a("s_lshr_b32 s68, s2, 4")
    a("s_and_b32 s69, s2, 15")
    a("s_mul_i32 s69, s69, 9")
    a(f"s_add_u32 s69, s69, s{sU}")
    a(f"s_sub_u32 s74, 5, s{sU}")
    a(f"v_bfe_u32 v3, v0, 2, 4")
    a(f"v_lshlrev_b32 v3, 10, v3")
    a(f"v_and_b32 v4, 3, v0")
    a(f"v_lshlrev_b32 v4, 4, v4")
    a(f"v_add_u32 v5, v3, v4")
    a(f"v_bfe_u32 v3, v0, 5, 1")
    a(f"v_lshlrev_b32 v3, 2, v3")
    a(f"v_bfe_u32 v4, v0, 2, 2")
    a(f"v_add_u32 v3, v3, v4")
    a(f"v_lshlrev_b32 v3, 6, v3")
    a(f"v_bfe_u32 v4, v0, 4, 1")
    a(f"v_lshlrev_b32 v4, 5, v4")
    a(f"v_add_u32 v3, v3, v4")
    a(f"v_and_b32 v4, 3, v0")
    a(f"v_lshlrev_b32 v4, 3, v4")
    a(f"v_add_u32 v3, v3, v4")
    a(f"s_lshl_b32 s3, s{sU}, 13")
    a(f"s_add_u32 s75, s3, {128*1024}")
    a(f"v_add_u32 v6, s75, v3")
    a(f"v_and_b32 v7, 63, v0")
    a(f"v_lshlrev_b32 v7, 4, v7")
    a("s_mov_b32 s80, s69")
    a("s_mov_b32 s81, s74")
    a("s_mov_b32 s82, s75")
    a(f"{name}_sj:")
    a("s_mov_b32 m0, s82")
    a("s_lshl_b32 s4, s68, 6")
    a("s_cmp_lt_u32 s80, 32")
    a(f"s_cbranch_scc0 {name}_sj2")
    a("s_lshl_b32 s3, s80, 14")
    a("s_add_u32 s3, s3, s4")
    a(f"buffer_load_dwordx4 v5, s[{SWO}:{SWO+3}], s3 offen lds")
    a(f"s_branch {name}_sj3")
    a(f"{name}_sj2:")
    a("s_sub_u32 s3, s80, 32")
    a("s_lshl_b32 s3, s3, 14")
    a("s_add_u32 s3, s3, s4")
    a(f"buffer_load_dwordx4 v5, s[{SW2}:{SW2+3}], s3 offen lds")
    a(f"{name}_sj3:")
    a("s_add_u32 s80, s80, 2")
    a("s_add_u32 s82, s82, 1024")
    a("s_sub_u32 s81, s81, 1")
    a("s_cmp_lg_u32 s81, 0")
    a(f"s_cbranch_scc1 {name}_sj")
    a(f"s_mov_b32 s{sK}, 1")
    a(f"{name}_lp:")
    a("s_waitcnt vmcnt(0)")
    if stamps:
        a(f"s_add_u32 m0, s{sK}, 16")
        a("s_memtime s[84:85]")
        a("s_waitcnt lgkmcnt(0)")
        a("s_nop 3")
        a("v_writelane_b32 v126, s84, m0")
    a("s_barrier")
    if stamps:
        a(f"s_add_u32 m0, s{sK}, 24")
        a("s_memtime s[84:85]")
        a("s_waitcnt lgkmcnt(0)")
        a("s_nop 3")
        a("v_writelane_b32 v126, s84, m0")
    a(f"s_add_u32 s{sK}, s{sK}, 1")
    a(f"s_cmp_ge_u32 s{sK}, s{sNP}")
    a(f"s_cbranch_scc1 {name}_sjfin")
    a(f"s_add_u32 s{sP}, s{sP}, 128")
    a(f"s_and_b32 s{sM}, s{sK}, 1")
    a(f"s_lshl_b32 s{sM}, s{sM}, 16")
    dma_rows(f"{name}_l3", 0, 32, f"s{sM}")
    a(f"s_branch {name}_lp")
    a(f"{name}_sjfin:")
    a("ds_read_b64_tr_b16 v[8:9], v6")
    a("ds_read_b64_tr_b16 v[10:11], v6 offset:512")
    a("s_mul_i32 s3, s68, 144")
    a("s_add_u32 s3, s3, s69")
    a("s_lshl_b32 s3, s3, 10")
    a(f"s_add_u32 s3, s3, {WS_WT}")
    a("v_add_u32 v6, 1024, v6")
    a("s_waitcnt lgkmcnt(0)")
    a(f"buffer_store_dwordx4 v[8:11], v7, s[{SWS}:{SWS+3}], s3 offen{SC}")
    a("s_add_u32 s69, s69, 2")
    a("s_sub_u32 s74, s74, 1")
    a("s_cmp_lg_u32 s74, 0")
    a("s_nop 0")
    a(f"s_cbranch_scc1 {name}_sjfin")
    a(f"{name}_fin:")
    ST.dump(sW, None)
    a(f"{name}_end:")
    a("s_endpgm")
    kernel_desc(a, name, 256)

CS_TABLE = [(7*c, 7) for c in range(8)] + list(zip([0,6,12,18,25,32,38,43], [6,6,6,7,7,6,5,5]))
if __name__ == "__main__":
    a = Asm()
    a('.amdgcn_target "amdgcn-amd-amdhsa--gfx950"')
    gen_k1(a, "lnqkv_kernel")
    txt = a.text()
    ins, labels = parse_kernel(txt, "lnqkv_kernel")
    tot = 0
    for wg in (0, 2+8*8, 4, 6, 6+8*8, 6+16*8, 6+24*8, 4+24*8):
        cs = ((wg & 7) >> 1)*4 + ((wg >> 3) >> 3)
        g0, n = CS_TABLE[cs]
        for wave in (0, 4, 5):
            tr = trace(ins, labels, {2: wg, "wave": wave, "g0": g0, "n": n})
            pr = check_trace(tr)
            nb = sum(1 for I in tr if I.op == "s_barrier")
            print("wg", wg, "cs", cs, "wave", wave, "trace len", len(tr), "barriers", nb, "problems", len(pr))
            for p in pr[:8]: print("  ", p)
    open("k1.s", "w").write(txt)
```

```python
from common import *
K2_LDS = 147456
def gen_k2(a, name="attn_kernel", stamps=False, exp={}):
    kernel_header(a, name)
    Q, KB, VB, P, S, O, C = 8, [12, 16], [20, 28], 36, [48, 64], 80, 96
    vL16, vK, vV, vInc, vT, vT2 = 1, 2, 3, 4, 5, 6
    sW, sHead, sQt, sI, sG, sL = 16, 17, 18, 20, 21, 22
    a("s_cmp_ge_u32 s2, 256")
    a(f"s_cbranch_scc1 {name}_end")
    a(f"s_load_dwordx2 s[4:5], s[0:1], {ARG_WS}")
    ST = Stamper(a, stamps, 120, 0)
    ST.init()
    a(f"v_lshrrev_b32 v{vT}, 6, v0")
    a(f"v_and_b32 v{vL16}, 63, v0")
    a(f"v_readfirstlane_b32 s{sW}, v{vT}")
    a(f"v_lshlrev_b32 v{vL16}, 4, v{vL16}")
    a("s_and_b32 s17, s2, 7")
    a("s_lshr_b32 s18, s2, 3")
    a("s_and_b32 s19, s18, 3")
    a("s_lshl_b32 s17, s17, 2")
    a(f"s_add_u32 s{sHead}, s17, s19")
    a("s_lshr_b32 s18, s18, 2")
    a("s_lshl_b32 s18, s18, 3")
    a(f"s_add_u32 s{sQt}, s18, s{sW}")
    a(f"s_lshl_b32 s23, s{sHead}, 16")
    a(f"s_lshl_b32 s24, s{sQt}, 10")
    a("s_add_u32 s24, s24, s23")
    a(f"s_lshl_b32 s{sL}, s{sW}, 10")
    a(f"s_add_u32 s{sG}, s23, s{sL}")
    a(f"s_add_u32 s{sG}, s{sG}, {WS_K}")
    a("s_waitcnt lgkmcnt(0)")
    srd(a, 8, 4, WS_SIZE)
    a(f"buffer_load_dwordx4 {vr(Q,4)}, v{vL16}, s[8:11], s24 offen")
    def dma_stage():
        a(f"s_mov_b32 m0, s{sL}")
        a(f"s_add_u32 s25, s{sG}, {WS_V-WS_K}")
        a(f"buffer_load_dwordx4 v{vL16}, s[8:11], s{sG} offen lds")
        a(f"s_add_u32 m0, s{sL}, 65536")
        a(f"s_add_u32 s{sL}, s{sL}, 8192")
        a(f"buffer_load_dwordx4 v{vL16}, s[8:11], s25 offen lds")
        a(f"s_add_u32 s{sG}, s{sG}, 8192")
    for _ in range(2): dma_stage()
    a(f"v_lshlrev_b32 v{vT}, 4, v0")
    a(f"v_add_u32 v{vT}, 131072, v{vT}")
    for i in range(4):
        a(f"v_mov_b32 v{P+i}, 0x3f803f80")
    a(f"ds_write_b128 v{vT}, {vr(P,4)}")
    a(f"ds_write_b128 v{vT}, {vr(P,4)} offset:8192")
    a(f"v_mov_b32 v{vK}, v{vL16}")
    a(f"v_and_b32 v{vT}, 15, v0")
    a(f"v_lshlrev_b32 v{vT}, 4, v{vT}")
    a(f"v_and_b32 v{vT2}, 32, v0")
    a(f"v_lshlrev_b32 v{vT2}, 3, v{vT2}")
    a(f"v_add_u32 v{vT}, v{vT}, v{vT2}")
    a(f"v_add_u32 v{vV}, 65536, v{vT}")
    a(f"v_and_b32 v{vT}, 31, v0")
    a(f"v_subrev_u32 v{vT2}, 20, v{vT}")
    a(f"v_cmp_gt_u32 vcc, 8, v{vT2}")
    a(f"v_mov_b32 v{vT2}, 131072")
    a(f"v_mov_b32 v{vInc}, {131072+64}")
    a(f"v_cndmask_b32 v{vT2}, v{vT2}, v{vInc}, vcc")
    a(f"v_cmp_gt_u32 vcc, 16, v{vT}")
    a(f"v_mov_b32 v{vInc}, 0")
    a(f"v_mov_b32 v{vT}, 8192")
    a(f"v_cndmask_b32 v{vV}, v{vT2}, v{vV}, vcc")
    a(f"v_cndmask_b32 v{vInc}, v{vInc}, v{vT}, vcc")
    for i in range(16):
        a(f"v_mov_b32 v{O+i}, 0")
    for i in range(4):
        a(f"v_mov_b32 v{P+4+i}, 0")
        a(f"v_mov_b32 v{VB[1]+4+i}, 0")
    a("s_waitcnt vmcnt(2) lgkmcnt(0)")
    a("s_barrier")
    a(f"ds_read_b128 {vr(KB[0],4)}, v{vK}")
    a(f"ds_read_b128 {vr(KB[1],4)}, v{vK} offset:1024")
    a(f"ds_read_b128 {vr(VB[0],4)}, v{vV}")
    a(f"ds_read_b128 {vr(VB[0]+4,4)}, v{vV} offset:512")
    a(f"s_mov_b32 s{sI}, 0")
    a("s_waitcnt lgkmcnt(3)")
    a(f"v_mfma_f32_32x32x16_bf16 {vr(S[0],16)}, {vr(KB[0],4)}, {vr(Q,4)}, 0")
    a("s_nop 15")
    ST(1)
    a(f"s_lshr_b32 s31, s{sW}, 2")
    if exp.get("prio"):
        a(f"s_cmp_ge_u32 s{sW}, 4")
        a(f"s_cbranch_scc0 {name}_np")
        a("s_setprio 1")
        a(f"{name}_np:")
    a(".p2align 6")
    a(f"{name}_loop:")
    order = exp.get("order", 0)
    for p in range(8):
        cur, nxt = p & 1, (p & 1) ^ 1
        Sc, Sn = S[cur], S[nxt]
        E = lambda lo, hi: [f"v_exp_f32 v{Sc+i}, v{Sc+i}" for i in range(lo, hi)]
        Cv = lambda lo, hi: [f"v_cvt_pk_bf16_f32 v{P+i}, v{Sc+2*i}, v{Sc+2*i+1}" for i in range(lo, hi)]
        QK = [f"v_mfma_f32_32x32x16_bf16 {vr(Sn,16)}, {vr(KB[nxt],4)}, {vr(Q,4)}, 0"]
        PV1 = [f"v_mfma_f32_32x32x16_bf16 {vr(O,16)}, {vr(VB[nxt]+4,4)}, {vr(P+4,4)}, {vr(O,16)}"]
        PV0 = [f"v_mfma_f32_32x32x16_bf16 {vr(O,16)}, {vr(VB[cur],4)}, {vr(P,4)}, {vr(O,16)}"]
        RK = [f"ds_read_b128 {vr(KB[cur],4)}, v{vK} offset:{(p+2)*1024}"]
        RV0 = [f"ds_read_b128 {vr(VB[nxt],4)}, v{vV} offset:{(p+1)*1024}"]
        RV1 = [f"ds_read_b128 {vr(VB[nxt]+4,4)}, v{vV} offset:{(p+1)*1024+512}"]
        W = ["s_waitcnt lgkmcnt(0)"]
        if exp.get("noread"): RK = RV0 = RV1 = []
        if exp.get("nowait"): W = []
        if exp.get("nomfma"): QK = PV0 = PV1 = []
        sync = []
        if p == 0 and exp.get("altprio"):
            n = exp["altprio"]
            a(f"s_add_u32 s30, s{sI}, s31")
            a("s_and_b32 s30, s30, 1")
            a("s_cmp_eq_u32 s30, 0")
            a(f"s_cbranch_scc1 {name}_p0")
            a("s_setprio 1")
            a(f"s_branch {name}_p1")
            a(f"{name}_p0:")
            a("s_setprio 0")
            a(f"{name}_p1:")
        if p == 4 and exp.get("altprio") == 2:
            a("s_cmp_eq_u32 s30, 0")
            a(f"s_cbranch_scc1 {name}_q0")
            a("s_setprio 0")
            a(f"s_branch {name}_q1")
            a(f"{name}_q0:")
            a("s_setprio 1")
            a(f"{name}_q1:")
        a.extend(W + QK)
        if exp.get("burst"):
            if p in (0, 2, 4):
                if p == 0: a(f"s_cmp_eq_u32 s{sI}, 0")
                a(f"s_cbranch_scc1 {name}_dma{p}")
                a(f"{name}_dmaret{p}:")
            if p == 6:
                a(f"s_cmp_lt_u32 s{sI}, 2")
                a(f"s_cbranch_scc1 {name}_sync")
                a(f"{name}_syncret:")
        elif p == 6:
            a("s_waitcnt vmcnt(0)")
            a("s_barrier")
            a(f"s_cmp_ge_u32 s{sI}, 6")
            a(f"s_cbranch_scc1 {name}_nodma")
            dma_stage()
            a(f"{name}_nodma:")
        if order == 0:
            a.extend(RK + E(0,4) + PV1 + RV0 + RV1 + E(4,8) + Cv(0,4) + E(8,10) + PV0 + E(10,16) + Cv(4,8))
        elif order == 1:
            a.extend(E(0,1) + RK + E(1,4) + PV1 + E(4,5) + RV0 + E(5,6) + RV1 + E(6,8) + Cv(0,4) + E(8,10) + PV0 + E(10,16) + Cv(4,8))
        elif order == 2:
            seq = E(0,1) + RK + E(1,4) + PV1 + E(4,5) + RV0 + E(5,6) + RV1 + Cv(0,1) + E(6,7) + Cv(1,2) + E(7,8) + Cv(2,3) + E(8,9) + Cv(3,4) + E(9,11) + PV0 + E(11,12) + Cv(4,5) + E(12,13) + E(13,14) + Cv(5,6) + E(14,16) + Cv(6,7) + Cv(7,8)
            a.extend(seq)
        elif order == 3:
            a.extend(E(0,2) + RK + E(2,4) + PV1 + RV0 + E(4,6) + RV1 + E(6,16) + Cv(0,4) + Cv(4,6) + PV0 + Cv(6,8))
    a(f"v_add_u32 v{vK}, 8192, v{vK}")
    a(f"v_add_u32 v{vV}, v{vInc}, v{vV}")
    a(f"s_add_u32 s{sI}, s{sI}, 1")
    a(f"s_cmp_lt_u32 s{sI}, 8")
    a(f"s_cbranch_scc1 {name}_loop")
    a("s_waitcnt lgkmcnt(0)")
    a(f"v_mfma_f32_32x32x16_bf16 {vr(O,16)}, {vr(VB[1]+4,4)}, {vr(P+4,4)}, {vr(O,16)}")
    a("s_nop 15")
    ST(2)
    a(f"v_mul_f32 v{vT}, 0, v{O}")
    for i in range(1, 8): a(f"v_fmac_f32 v{vT}, 0, v{O+i}")
    a(f"v_add_f32 v{vT}, v{vT}, v{O+8}")
    a(f"s_mov_b32 s26, 0x21800000")
    a(f"s_mov_b32 s27, 0x5d800000")
    a(f"v_cmp_le_f32 s[28:29], s26, v{vT}")
    a(f"v_cmp_ge_f32 vcc, s27, v{vT}")
    a("s_nop 1")
    a("s_and_b64 s[28:29], s[28:29], vcc")
    a("s_cmp_eq_u64 s[28:29], exec")
    if not exp.get("noslow"): a(f"s_cbranch_scc0 {name}_slow")
    a(f"{name}_fin:")
    a(f"v_rcp_f32 v{vT}, v{O+8}")
    a(f"s_mul_i32 s24, s{sQt}, 144")
    a(f"s_add_u32 s24, s24, s{sHead}")
    a("s_lshl_b32 s24, s24, 10")
    a(f"s_add_u32 s24, s24, {WS_A2}")
    for i in range(8): a(f"v_mul_f32 v{O+i}, v{O+i}, v{vT}")
    for i in range(4): a(f"v_cvt_pk_bf16_f32 v{P+i}, v{O+2*i}, v{O+2*i+1}")
    a(f"buffer_store_dwordx4 {vr(P,4)}, v{vL16}, s[8:11], s24 offen")
    ST.dump(sW, None)
    a(f"{name}_end:")
    a("s_endpgm")
    for p in ((0, 2, 4) if exp.get("burst") else ()):
        a(f"{name}_dma{p}:")
        dma_stage(); dma_stage()
        a(f"s_cmp_eq_u32 s{sI}, 0")
        a(f"s_branch {name}_dmaret{p}")
    if exp.get("burst"):
        a(f"{name}_sync:")
        a(f"s_cmp_eq_u32 s{sI}, 0")
        a(f"s_cbranch_scc1 {name}_sync0")
        a("s_waitcnt vmcnt(0)")
        a(f"{name}_sync0:")
        a("s_waitcnt vmcnt(12)")
        a("s_barrier")
        a(f"s_branch {name}_syncret")
    a(f"{name}_slow:")
    vSt = 7
    a(f"v_mov_b32 v{vK}, v{vL16}")
    a(f"v_mov_b32 v{vT}, 0xff800000")
    a(f"s_mov_b32 s{sI}, 0")
    a(f"{name}_slow1:")
    a(f"ds_read_b128 {vr(KB[0],4)}, v{vK}")
    a(f"v_add_u32 v{vK}, 1024, v{vK}")
    a("s_waitcnt lgkmcnt(0)")
    a(f"v_mfma_f32_32x32x16_bf16 {vr(S[0],16)}, {vr(KB[0],4)}, {vr(Q,4)}, 0")
    a("s_nop 15")
    for i in range(8): a(f"v_max3_f32 v{vT}, v{vT}, v{S[0]+2*i}, v{S[0]+2*i+1}")
    a(f"s_add_u32 s{sI}, s{sI}, 1")
    a(f"s_cmp_lt_u32 s{sI}, 64")
    a(f"s_cbranch_scc1 {name}_slow1")
    a(f"v_mov_b32 v{vT2}, v{vT}")
    a("s_nop 1")
    a(f"v_permlane32_swap_b32 v{vT}, v{vT2}")
    a("s_nop 1")
    a(f"v_max_f32 v{vT}, v{vT}, v{vT2}")
    for i in range(16): a(f"v_sub_f32 v{C+i}, 0, v{vT}")
    for i in range(16): a(f"v_mov_b32 v{O+i}, 0")
    a(f"v_mov_b32 v{vK}, v{vL16}")
    a(f"v_lshlrev_b32 v{vT2}, 3, v{vInc}")
    a(f"v_sub_u32 v{vV}, v{vV}, v{vT2}")
    a(f"v_lshrrev_b32 v{vSt}, 3, v{vInc}")
    a(f"s_mov_b32 s{sI}, 0")
    a(f"{name}_slow2:")
    a(f"ds_read_b128 {vr(KB[0],4)}, v{vK}")
    a(f"ds_read_b128 {vr(VB[0],4)}, v{vV}")
    a(f"ds_read_b128 {vr(VB[0]+4,4)}, v{vV} offset:512")
    a(f"v_add_u32 v{vK}, 1024, v{vK}")
    a(f"v_add_u32 v{vV}, v{vSt}, v{vV}")
    a("s_waitcnt lgkmcnt(0)")
    a(f"v_mfma_f32_32x32x16_bf16 {vr(S[0],16)}, {vr(KB[0],4)}, {vr(Q,4)}, {vr(C,16)}")
    a("s_nop 15")
    for i in range(16): a(f"v_exp_f32 v{S[0]+i}, v{S[0]+i}")
    a("s_nop 0")
    for i in range(8): a(f"v_cvt_pk_bf16_f32 v{P+i}, v{S[0]+2*i}, v{S[0]+2*i+1}")
    a("s_nop 1")
    a(f"v_mfma_f32_32x32x16_bf16 {vr(O,16)}, {vr(VB[0],4)}, {vr(P,4)}, {vr(O,16)}")
    a(f"v_mfma_f32_32x32x16_bf16 {vr(O,16)}, {vr(VB[0]+4,4)}, {vr(P+4,4)}, {vr(O,16)}")
    a(f"s_add_u32 s{sI}, s{sI}, 1")
    a(f"s_cmp_lt_u32 s{sI}, 64")
    a(f"s_cbranch_scc1 {name}_slow2")
    a("s_nop 15")
    a(f"s_branch {name}_fin")
    kernel_desc(a, name, 128 if stamps else 112)

if __name__ == "__main__":
    a = Asm()
    a('.amdgcn_target "amdgcn-amd-amdhsa--gfx950"')
    gen_k2(a)
    txt = a.text()
    ins, labels = parse_kernel(txt, "attn_kernel")
    for safe in (1, 0):
        tr = trace(ins, labels, {2: 5, "wave": 3, "$safe": safe})
        pr = check_trace(tr)
        print("safe", safe, "trace len", len(tr), "problems", len(pr))
        for p in pr[:20]: print("  ", p)
    open("k2.s", "w").write(txt)
```

```python
from common import *
K3_LDS = 4*17408
def gen_k3(a, name, stamps=False, exp={}):
    kernel_header(a, name)
    NK = 36; R = 9
    ACC = 16
    RING = 80
    vL16, vT0, vT1, vW0, vW1, vX, vA = 1, 2, 3, 4, 5, 6, 7
    XR = 224
    sW = 16
    a("s_cmp_ge_u32 s2, 256")
    a(f"s_cbranch_scc1 {name}_end")
    a(f"s_load_dwordx2 s[4:5], s[0:1], {ARG_WS}")
    a(f"s_load_dwordx2 s[6:7], s[0:1], {ARG_X}")
    a(f"s_load_dwordx2 s[20:21], s[0:1], {ARG_OUT}")
    ST = Stamper(a, stamps, 240, 2)
    ST.init()
    a(f"v_lshrrev_b32 v8, 6, v0")
    a(f"v_and_b32 v{vL16}, 63, v0")
    a(f"v_readfirstlane_b32 s{sW}, v8")
    a(f"v_lshlrev_b32 v{vL16}, 4, v{vL16}")
    a("s_and_b32 s17, s2, 7")
    a("s_lshr_b32 s18, s2, 3")
    a("s_and_b32 s19, s18, 3")
    a("s_lshl_b32 s17, s17, 2")
    a("s_add_u32 s17, s17, s19")
    a("s_lshr_b32 s18, s18, 2")
    a(f"s_mul_i32 s22, s17, {2*144*1024}")
    a(f"s_add_u32 s22, s22, {WS_A2}")
    a(f"s_mul_i32 s23, s18, {2*144*1024}")
    a(f"s_add_u32 s23, s23, {WS_WT}")
    a(f"s_mul_i32 s24, s{sW}, {NK*1024}")
    a(f"v_add_u32 v{vT0}, s22, v{vL16}")
    a(f"v_add_u32 v{vW0}, s23, v{vL16}")
    a(f"v_add_u32 v{vT1}, {144*1024}, v{vT0}")
    a(f"v_add_u32 v{vW1}, {144*1024}, v{vW0}")
    a(f"v_lshrrev_b32 v8, 2, v0")
    a(f"v_lshlrev_b32 v8, 10, v8")
    a(f"v_and_b32 v9, 3, v0")
    a(f"v_lshlrev_b32 v9, 5, v9")
    a(f"v_add_u32 v{vX}, v8, v9")
    a("s_lshl_b32 s25, s17, 16")
    a("s_lshl_b32 s26, s18, 7")
    a("s_add_u32 s25, s25, s26")
    a("s_waitcnt lgkmcnt(0)")
    srd(a, 8, 4, WS_SIZE)
    srd(a, 12, 6, 2048*1024)
    srd(a, 28, 20, 2048*1024)
    def loads(slot, imm):
        b = RING + slot*16
        for i, v in enumerate((vT0, vT1, vW0, vW1)):
            a(f"buffer_load_dwordx4 {vr(b+4*i,4)}, v{v}, s[8:11], s24 offen" + (f" offset:{imm}" if imm else ""))
    for i in range(R):
        loads(i, (i % 4)*1024)
        if i % 4 == 3: a("s_add_u32 s24, s24, 4096")
    a("s_add_u32 s24, s24, 1024")
    a(f"buffer_load_dwordx4 {vr(XR,4)}, v{vX}, s[12:15], s25 offen")
    a(f"buffer_load_dwordx4 {vr(XR+4,4)}, v{vX}, s[12:15], s25 offen offset:16")
    for i in range(64): a(f"v_mov_b32 v{ACC+i}, 0")
    def mfmas(slot):
        b = RING + slot*16
        for aa in range(2):
            for bb in range(2):
                d = ACC + (aa*2+bb)*16
                a(f"v_mfma_f32_32x32x16_bf16 {vr(d,16)}, {vr(b+8+4*aa,4)}, {vr(b+4*bb,4)}, {vr(d,16)}")
    ST(1)
    a("s_mov_b32 s27, 0")
    a(f"{name}_loop:")
    for i in range(R):
        a(f"s_waitcnt vmcnt({4*(R-1)})")
        mfmas(i)
        loads(i, (i % 4)*1024)
        if i % 4 == 3: a("s_add_u32 s24, s24, 4096")
    a("s_add_u32 s24, s24, 1024")
    a("s_add_u32 s27, s27, 1")
    a(f"s_cmp_lt_u32 s27, {NK//R - 1}")
    a(f"s_cbranch_scc1 {name}_loop")
    for i in range(R):
        a(f"s_waitcnt vmcnt({4*(R-1-i)})")
        mfmas(i)
    ST(2)
    a(f"v_and_b32 v8, 31, v0")
    a(f"v_mul_u32_u24 v8, 272, v8")
    a(f"v_and_b32 v9, 32, v0")
    a(f"v_lshrrev_b32 v9, 1, v9")
    a(f"v_add_u32 v8, v8, v9")
    a(f"s_mul_i32 s26, s{sW}, 17408")
    a(f"v_add_u32 v{vA}, s26, v8")
    a("s_nop 7")
    for bb in range(2):
        for aa in range(2):
            d = ACC + (aa*2+bb)*16
            for q in range(4):
                a(f"ds_write_b128 v{vA}, {vr(d+4*q,4)} offset:{bb*32*272 + aa*128 + q*32}")
    a(f"v_lshrrev_b32 v8, 2, v0")
    a(f"v_mul_u32_u24 v8, 272, v8")
    a(f"v_and_b32 v9, 3, v0")
    a(f"v_lshlrev_b32 v9, 6, v9")
    a(f"v_add_u32 v{vA}, v8, v9")
    a("s_waitcnt lgkmcnt(0)")
    a("s_barrier")
    S = 80
    for w in range(4):
        for i in range(4):
            a(f"ds_read_b128 {vr(S+w*16+4*i,4)}, v{vA} offset:{w*17408 + i*16}")
        if w == 1: a("s_waitcnt lgkmcnt(4)")
    for i in range(8):
        a(f"v_lshlrev_b32 v{16+2*i}, 16, v{XR+i}")
        a(f"v_and_b32 v{17+2*i}, 0xffff0000, v{XR+i}")
    for w in range(4):
        a(f"s_waitcnt lgkmcnt({4*(3-w)})")
        for i in range(16): a(f"v_add_f32 v{16+i}, v{16+i}, v{S+w*16+i}")
    for i in range(8): a(f"v_cvt_pk_bf16_f32 v{32+i}, v{16+2*i}, v{17+2*i}")
    a(f"buffer_store_dwordx4 {vr(32,4)}, v{vX}, s[28:31], s25 offen")
    a(f"buffer_store_dwordx4 {vr(36,4)}, v{vX}, s[28:31], s25 offen offset:16")
    ST.dump(sW, None)
    a(f"{name}_end:")
    a("s_endpgm")
    kernel_desc(a, name, 248 if stamps else 232)

if __name__ == "__main__":
    a = Asm()
    a('.amdgcn_target "amdgcn-amd-amdhsa--gfx950"')
    gen_k3(a, "k3_kernel")
    txt = a.text()
    ins, labels = parse_kernel(txt, "k3_kernel")
    tr = trace(ins, labels, {2: 5, "wave": 3})
    pr = check_trace(tr)
    print("trace len", len(tr), "problems", len(pr))
    for p in pr[:20]: print("  ", p)
    open("k3.s", "w").write(txt)
```

```python
from common import *
LDS_K, LDS_V, LDS_ONES, LDS_RED, LDS_FLAG = 0, 65536, 131072, 141312, 141312+16384
K2_LDS = LDS_FLAG + 64
NGW = 4
def gen_k2(a, name="attn_kernel", stamps=False, exp={}):
    kernel_header(a, name)
    Q, KB, VB, P, S, O, C = 8, [12, 16], [20, 28], 36, [48, 64], 80, 96
    vL16, vK, vV, vInc, vT, vT2 = 1, 2, 3, 4, 5, 6
    sW, sHead, sQt, sI, sG, sL = 16, 17, 18, 20, 21, 22
    SC = " sc1" if exp.get("sc1", 1) else ""
    a("s_cmp_ge_u32 s2, 256")
    a(f"s_cbranch_scc1 {name}_end")
    a(f"s_load_dwordx2 s[4:5], s[0:1], {ARG_WS}")
    ST = Stamper(a, stamps, 160, 0)
    ST.init()
    a(f"v_lshrrev_b32 v{vT}, 6, v0")
    a(f"v_and_b32 v{vL16}, 63, v0")
    a(f"v_readfirstlane_b32 s{sW}, v{vT}")
    a(f"v_lshlrev_b32 v{vL16}, 4, v{vL16}")
    a("s_and_b32 s17, s2, 7")
    a("s_lshr_b32 s18, s2, 3")
    a("s_and_b32 s19, s18, 3")
    a("s_lshl_b32 s26, s17, 2")
    a(f"s_add_u32 s{sHead}, s26, s19")
    a("s_lshr_b32 s27, s18, 2")
    a(f"s_lshl_b32 s23, s{sHead}, 16")
    a(f"s_cmp_ge_u32 s{sW}, 8")
    a(f"s_cbranch_scc1 {name}_G")
    a("s_lshl_b32 s18, s27, 3")
    a(f"s_add_u32 s{sQt}, s18, s{sW}")
    a(f"s_lshl_b32 s24, s{sQt}, 10")
    a("s_add_u32 s24, s24, s23")
    a(f"s_lshl_b32 s{sL}, s{sW}, 10")
    a(f"s_add_u32 s{sG}, s23, s{sL}")
    a(f"s_add_u32 s{sG}, s{sG}, {WS_K}")
    a("s_waitcnt lgkmcnt(0)")
    srd(a, 8, 4, WS_SIZE)
    a(f"buffer_load_dwordx4 {vr(Q,4)}, v{vL16}, s[8:11], s24 offen")
    a(f"s_mov_b32 m0, s{sL}")
    a(f"s_add_u32 s25, s{sG}, {WS_V-WS_K}")
    a(f"buffer_load_dwordx4 v{vL16}, s[8:11], s{sG} offen lds")
    a(f"s_add_u32 m0, s{sL}, {LDS_V}")
    a("s_nop 0")
    a(f"buffer_load_dwordx4 v{vL16}, s[8:11], s25 offen lds")
    a(f"v_lshlrev_b32 v{vT}, 4, v0")
    a(f"v_add_u32 v{vT}, {LDS_ONES}, v{vT}")
    for i in range(4):
        a(f"v_mov_b32 v{P+i}, 0x3f803f80")
    a(f"ds_write_b128 v{vT}, {vr(P,4)}")
    a(f"ds_write_b128 v{vT}, {vr(P,4)} offset:2048")
    a(f"v_mov_b32 v{vK}, v{vL16}")
    a(f"v_and_b32 v{vT}, 15, v0")
    a(f"v_lshlrev_b32 v{vT}, 4, v{vT}")
    a(f"v_and_b32 v{vT2}, 32, v0")
    a(f"v_lshlrev_b32 v{vT2}, 3, v{vT2}")
    a(f"v_add_u32 v{vT}, v{vT}, v{vT2}")
    a(f"v_add_u32 v{vV}, {LDS_V}, v{vT}")
    a(f"v_and_b32 v{vT}, 31, v0")
    a(f"v_subrev_u32 v{vT2}, 20, v{vT}")
    a(f"v_cmp_gt_u32 vcc, 8, v{vT2}")
    a(f"v_mov_b32 v{vT2}, {LDS_ONES}")
    a(f"v_mov_b32 v{vInc}, {LDS_ONES+64}")
    a(f"v_cndmask_b32 v{vT2}, v{vT2}, v{vInc}, vcc")
    a(f"v_cmp_gt_u32 vcc, 16, v{vT}")
    a(f"v_mov_b32 v{vInc}, 0")
    a(f"v_mov_b32 v{vT}, 8192")
    a(f"v_cndmask_b32 v{vV}, v{vT2}, v{vV}, vcc")
    a(f"v_cndmask_b32 v{vInc}, v{vInc}, v{vT}, vcc")
    for i in range(16):
        a(f"v_mov_b32 v{O+i}, 0")
    for i in range(4):
        a(f"v_mov_b32 v{P+4+i}, 0")
        a(f"v_mov_b32 v{VB[1]+4+i}, 0")
    a("s_waitcnt vmcnt(0) lgkmcnt(0)")
    a("s_barrier")
    a(f"ds_read_b128 {vr(KB[0],4)}, v{vK}")
    a(f"ds_read_b128 {vr(KB[1],4)}, v{vK} offset:1024")
    a(f"ds_read_b128 {vr(VB[0],4)}, v{vV}")
    a(f"ds_read_b128 {vr(VB[0]+4,4)}, v{vV} offset:512")
    a(f"s_mov_b32 s{sI}, 0")
    a("s_waitcnt lgkmcnt(3)")
    a(f"v_mfma_f32_32x32x16_bf16 {vr(S[0],16)}, {vr(KB[0],4)}, {vr(Q,4)}, 0")
    a("s_nop 15")
    ST(1)
    if exp.get("aprio"): a(f"s_setprio {exp['aprio']}")
    if exp.get("yprio"):
        a(f"s_cmp_ge_u32 s{sW}, 4")
        a(f"s_cbranch_scc0 {name}_np")
        a(f"s_setprio {exp['yprio']}")
        a(f"{name}_np:")
    a(".p2align 6")
    a(f"{name}_loop:")
    for p in range(8):
        cur, nxt = p & 1, (p & 1) ^ 1
        Sc, Sn = S[cur], S[nxt]
        E = lambda lo, hi: [f"v_exp_f32 v{Sc+i}, v{Sc+i}" for i in range(lo, hi)]
        Cv = lambda lo, hi: [f"v_cvt_pk_bf16_f32 v{P+i}, v{Sc+2*i}, v{Sc+2*i+1}" for i in range(lo, hi)]
        QK = [f"v_mfma_f32_32x32x16_bf16 {vr(Sn,16)}, {vr(KB[nxt],4)}, {vr(Q,4)}, 0"]
        PV1 = [f"v_mfma_f32_32x32x16_bf16 {vr(O,16)}, {vr(VB[nxt]+4,4)}, {vr(P+4,4)}, {vr(O,16)}"]
        PV0 = [f"v_mfma_f32_32x32x16_bf16 {vr(O,16)}, {vr(VB[cur],4)}, {vr(P,4)}, {vr(O,16)}"]
        RK = [f"ds_read_b128 {vr(KB[cur],4)}, v{vK} offset:{(p+2)*1024}"]
        RV0 = [f"ds_read_b128 {vr(VB[nxt],4)}, v{vV} offset:{(p+1)*1024}"]
        RV1 = [f"ds_read_b128 {vr(VB[nxt]+4,4)}, v{vV} offset:{(p+1)*1024+512}"]
        a.extend(["s_waitcnt lgkmcnt(0)"] + QK)
        if p == 6:
            a(f"s_cmp_lt_u32 s{sI}, 3")
            a(f"s_cbranch_scc1 {name}_sync")
            a(f"{name}_syncret:")
        order = exp.get("order", 0)
        if exp.get("noread"): RK = RV0 = RV1 = []
        if order == 0:
            a.extend(RK + E(0,4) + PV1 + RV0 + RV1 + E(4,8) + Cv(0,4) + E(8,10) + PV0 + E(10,16) + Cv(4,8))
        elif order == 1:
            a.extend(RK + RV0 + E(0,4) + PV1 + RV1 + E(4,8) + Cv(0,4) + E(8,10) + PV0 + E(10,16) + Cv(4,8))
        elif order == 2:
            a.extend(RK + E(0,3) + PV1 + RV0 + RV1 + E(3,16) + Cv(0,4) + Cv(4,6) + PV0 + Cv(6,8))
        elif order == 3:
            a.extend(RK + E(0,4) + ["s_setprio 1"] + PV1 + RV0 + RV1 + ["s_setprio 0"] + E(4,8) + Cv(0,4) + E(8,10) + PV0 + E(10,16) + Cv(4,8))
    if exp.get("altprio"):
        a(f"s_lshr_b32 s30, s{sW}, 2")
        a(f"s_add_u32 s30, s30, s{sI}")
        a("s_and_b32 s30, s30, 1")
        a("s_cmp_eq_u32 s30, 0")
        a(f"s_cbranch_scc1 {name}_ap0")
        a("s_setprio 0")
        a(f"s_branch {name}_ap1")
        a(f"{name}_ap0:")
        a("s_setprio 1")
        a(f"{name}_ap1:")
    if stamps and exp.get("itstamp"):
        a(f"s_add_u32 m0, s{sI}, 8")
        a("s_memtime s[84:85]")
        a("s_waitcnt lgkmcnt(0)")
        a("s_nop 3")
        a("v_writelane_b32 v160, s84, m0")
    a(f"v_add_u32 v{vK}, 8192, v{vK}")
    a(f"v_add_u32 v{vV}, v{vInc}, v{vV}")
    a(f"s_add_u32 s{sI}, s{sI}, 1")
    a(f"s_cmp_lt_u32 s{sI}, 8")
    a(f"s_cbranch_scc1 {name}_loop")
    a("s_waitcnt lgkmcnt(0)")
    a(f"v_mfma_f32_32x32x16_bf16 {vr(O,16)}, {vr(VB[1]+4,4)}, {vr(P+4,4)}, {vr(O,16)}")
    a("s_nop 15")
    ST(2)
    a(f"v_mul_f32 v{vT}, 0, v{O}")
    for i in range(1, 8): a(f"v_fmac_f32 v{vT}, 0, v{O+i}")
    a(f"v_add_f32 v{vT}, v{vT}, v{O+8}")
    a(f"s_mov_b32 s26, 0x21800000")
    a(f"s_mov_b32 s27, 0x5d800000")
    a(f"v_cmp_le_f32 s[28:29], s26, v{vT}")
    a(f"v_cmp_ge_f32 vcc, s27, v{vT}")
    a("s_nop 1")
    a("s_and_b64 s[28:29], s[28:29], vcc")
    a("s_cmp_eq_u64 s[28:29], exec")
    a(f"s_cbranch_scc0 {name}_slow")
    a(f"{name}_fin:")
    a(f"v_rcp_f32 v{vT}, v{O+8}")
    a(f"s_mul_i32 s24, s{sQt}, 144")
    a(f"s_add_u32 s24, s24, s{sHead}")
    a("s_lshl_b32 s24, s24, 10")
    a(f"s_add_u32 s24, s24, {WS_A2}")
    for i in range(8): a(f"v_mul_f32 v{O+i}, v{O+i}, v{vT}")
    for i in range(4): a(f"v_cvt_pk_bf16_f32 v{P+i}, v{O+2*i}, v{O+2*i+1}")
    a(f"buffer_store_dwordx4 {vr(P,4)}, v{vL16}, s[8:11], s24 offen{SC}")
    a(f"{name}_done:")
    ST.dump(sW, None)
    a(f"{name}_end:")
    a("s_endpgm")
    a(f"{name}_sync:")
    a(f"s_cmp_eq_u32 s{sI}, 1")
    a(f"s_cbranch_scc1 {name}_syncret")
    a("s_barrier")
    a(f"s_branch {name}_syncret")
    a(f"{name}_slow:")
    vSt = 7
    a(f"v_mov_b32 v{vK}, v{vL16}")
    a(f"v_mov_b32 v{vT}, 0xff800000")
    a(f"s_mov_b32 s{sI}, 0")
    a(f"{name}_slow1:")
    a(f"ds_read_b128 {vr(KB[0],4)}, v{vK}")
    a(f"v_add_u32 v{vK}, 1024, v{vK}")
    a("s_waitcnt lgkmcnt(0)")
    a(f"v_mfma_f32_32x32x16_bf16 {vr(S[0],16)}, {vr(KB[0],4)}, {vr(Q,4)}, 0")
    a("s_nop 15")
    for i in range(8): a(f"v_max3_f32 v{vT}, v{vT}, v{S[0]+2*i}, v{S[0]+2*i+1}")
    a(f"s_add_u32 s{sI}, s{sI}, 1")
    a(f"s_cmp_lt_u32 s{sI}, 64")
    a(f"s_cbranch_scc1 {name}_slow1")
    a(f"v_mov_b32 v{vT2}, v{vT}")
    a("s_nop 1")
    a(f"v_permlane32_swap_b32 v{vT}, v{vT2}")
    a("s_nop 1")
    a(f"v_max_f32 v{vT}, v{vT}, v{vT2}")
    for i in range(16): a(f"v_sub_f32 v{C+i}, 0, v{vT}")
    for i in range(16): a(f"v_mov_b32 v{O+i}, 0")
    a(f"v_mov_b32 v{vK}, v{vL16}")
    a(f"v_lshlrev_b32 v{vT2}, 3, v{vInc}")
    a(f"v_sub_u32 v{vV}, v{vV}, v{vT2}")
    a(f"v_lshrrev_b32 v{vSt}, 3, v{vInc}")
    a(f"s_mov_b32 s{sI}, 0")
    a(f"{name}_slow2:")
    a(f"ds_read_b128 {vr(KB[0],4)}, v{vK}")
    a(f"ds_read_b128 {vr(VB[0],4)}, v{vV}")
    a(f"ds_read_b128 {vr(VB[0]+4,4)}, v{vV} offset:512")
    a(f"v_add_u32 v{vK}, 1024, v{vK}")
    a(f"v_add_u32 v{vV}, v{vSt}, v{vV}")
    a("s_waitcnt lgkmcnt(0)")
    a(f"v_mfma_f32_32x32x16_bf16 {vr(S[0],16)}, {vr(KB[0],4)}, {vr(Q,4)}, {vr(C,16)}")
    a("s_nop 15")
    for i in range(16): a(f"v_exp_f32 v{S[0]+i}, v{S[0]+i}")
    a("s_nop 0")
    for i in range(8): a(f"v_cvt_pk_bf16_f32 v{P+i}, v{S[0]+2*i}, v{S[0]+2*i+1}")
    a("s_nop 1")
    a(f"v_mfma_f32_32x32x16_bf16 {vr(O,16)}, {vr(VB[0],4)}, {vr(P,4)}, {vr(O,16)}")
    a(f"v_mfma_f32_32x32x16_bf16 {vr(O,16)}, {vr(VB[0]+4,4)}, {vr(P+4,4)}, {vr(O,16)}")
    a(f"s_add_u32 s{sI}, s{sI}, 1")
    a(f"s_cmp_lt_u32 s{sI}, 64")
    a(f"s_cbranch_scc1 {name}_slow2")
    a("s_nop 15")
    a(f"s_branch {name}_fin")
    a(f"{name}_G:")
    sU = 30
    ACC, RING, R = 16, 80, 4
    vT0, vT1, vW0, vW1, vA = 2, 3, 4, 5, 6
    a(f"s_sub_u32 s{sU}, s{sW}, 8")
    a(f"s_lshl_b32 s{sL}, s{sU}, 11")
    a(f"s_add_u32 s{sL}, s{sL}, 8192")
    a(f"s_add_u32 s{sG}, s23, s{sL}")
    a(f"s_add_u32 s{sG}, s{sG}, {WS_K}")
    a("s_waitcnt lgkmcnt(0)")
    srd(a, 8, 4, WS_SIZE)
    def stage():
        a(f"s_mov_b32 m0, s{sL}")
        a(f"s_add_u32 s25, s{sG}, {WS_V-WS_K}")
        a(f"buffer_load_dwordx4 v{vL16}, s[8:11], s{sG} offen lds")
        a(f"buffer_load_dwordx4 v{vL16}, s[8:11], s{sG} offen offset:1024 lds")
        a(f"s_add_u32 m0, s{sL}, {LDS_V}")
        a(f"s_add_u32 s{sL}, s{sL}, 8192")
        a(f"buffer_load_dwordx4 v{vL16}, s[8:11], s25 offen lds")
        a(f"buffer_load_dwordx4 v{vL16}, s[8:11], s25 offen offset:1024 lds")
        a(f"s_add_u32 s{sG}, s{sG}, 8192")
    stage()
    a(f"v_mov_b32 v8, {LDS_FLAG}")
    a(f"v_mov_b32 v9, 0")
    a(f"ds_write_b32 v8, v9")
    a("s_waitcnt lgkmcnt(0)")
    a("s_barrier          ; Ba")
    stage()
    a("s_waitcnt vmcnt(0)")
    a("s_barrier          ; Bb")
    a("s_mov_b32 s28, 5")
    a(f"{name}_Gst:")
    stage()
    a("s_sub_u32 s28, s28, 1")
    a("s_cmp_lg_u32 s28, 0")
    a(f"s_cbranch_scc1 {name}_Gst")
    a(f"s_mul_i32 s22, s{sHead}, {2*144*1024}")
    a(f"s_add_u32 s22, s22, {WS_A2}")
    a(f"s_mul_i32 s23, s27, {2*144*1024}")
    a(f"s_add_u32 s23, s23, {WS_WT}")
    a(f"s_mul_i32 s24, s{sU}, {28*1024}")
    a(f"s_add_u32 s24, s24, {32*1024}")
    a(f"v_add_u32 v{vT0}, s22, v{vL16}")
    a(f"v_add_u32 v{vW0}, s23, v{vL16}")
    a(f"v_add_u32 v{vT1}, {144*1024}, v{vT0}")
    a(f"v_add_u32 v{vW1}, {144*1024}, v{vW0}")
    if exp.get("gprio", 1): a(f"s_setprio {exp.get('gprio', 1)}")
    ST(1)
    def loads(slot):
        b = RING + slot*16
        for i, v in enumerate((vT0, vT1, vW0, vW1)):
            a(f"buffer_load_dwordx4 {vr(b+4*i,4)}, v{v}, s[8:11], s24 offen offset:{slot*1024}")
    gap = exp.get("ggap", 1)
    def mfmas(slot, first=False):
        b = RING + slot*16
        for aa in range(2):
            for bb in range(2):
                d = ACC + (aa*2+bb)*16
                a(f"v_mfma_f32_32x32x16_bf16 {vr(d,16)}, {vr(b+8+4*aa,4)}, {vr(b+4*bb,4)}, {vr(d,16)}")
                if gap == 1: a("s_nop 15")
                if gap == 2: a("s_sleep 1")
                if gap == 3: a("s_sleep 2")
    if not exp.get("nogemm"):
        for i in range(R): loads(i)
        a("s_add_u32 s24, s24, 4096")
        for i in range(64): a(f"v_mov_b32 v{ACC+i}, 0")
        a("s_mov_b32 s28, 6")
        a(f"{name}_Gl:")
        for i in range(R):
            a(f"s_waitcnt vmcnt({4*(R-1)})")
            mfmas(i)
            loads(i)
        a("s_add_u32 s24, s24, 4096")
        a("s_cmp_lg_u32 s28, 6")
        a(f"s_cbranch_scc1 {name}_Gnb")
        a("s_barrier          ; Bc")
        a(f"{name}_Gnb:")
        a("s_sub_u32 s28, s28, 1")
        a("s_cmp_lg_u32 s28, 0")
        a(f"s_cbranch_scc1 {name}_Gl")
        for i in range(R):
            a(f"s_waitcnt vmcnt({4*(R-1-i)})")
            mfmas(i)
    else:
        a("s_waitcnt vmcnt(0)")
        a("s_barrier          ; Bc")
        for i in range(64): a(f"v_mov_b32 v{ACC+i}, 0")
    ST(2)
    a(f"v_add_u32 v{vA}, {LDS_RED}, v{vL16}")
    a(f"v_mov_b32 v8, {LDS_FLAG}")
    a(f"s_cmp_eq_u32 s{sU}, 0")
    a(f"s_cbranch_scc1 {name}_Gw")
    a(f"{name}_Gspin:")
    a("ds_read_b32 v9, v8")
    a("s_waitcnt lgkmcnt(0)")
    a(f"v_readfirstlane_b32 s28, v9")
    a("s_nop 1")
    a(f"s_cmp_eq_u32 s28, s{sU}")
    a(f"s_cbranch_scc1 {name}_Ggo")
    a("s_sleep 8")
    a(f"s_branch {name}_Gspin")
    a(f"{name}_Ggo:")
    for half in range(2):
        for q in range(8): a(f"ds_read_b128 {vr(RING+4*q,4)}, v{vA} offset:{(half*8+q)*1024}")
        for q in range(8):
            a(f"s_waitcnt lgkmcnt({7-q})")
            for i in range(4): a(f"v_add_f32 v{ACC+32*half+4*q+i}, v{ACC+32*half+4*q+i}, v{RING+4*q+i}")
    a(f"s_cmp_eq_u32 s{sU}, 3")
    a(f"s_cbranch_scc1 {name}_Gout")
    a(f"{name}_Gw:")
    a("s_nop 7")
    for q in range(16): a(f"ds_write_b128 v{vA}, {vr(ACC+4*q,4)} offset:{q*1024}")
    a(f"s_add_u32 s28, s{sU}, 1")
    a(f"v_mov_b32 v9, s28")
    a("s_waitcnt lgkmcnt(0)")
    a("ds_write_b32 v8, v9")
    a("s_waitcnt lgkmcnt(0)")
    a(f"s_branch {name}_done")
    a(f"{name}_Gout:")
    a(f"s_lshl_b32 s22, s{sHead}, 3")
    a("s_add_u32 s22, s22, s27")
    a("s_lshl_b32 s22, s22, 14")
    a(f"s_add_u32 s22, s22, {WS_PART}")
    for q in range(16):
        if q % 4 == 0 and q: a("s_add_u32 s22, s22, 4096")
        a(f"buffer_store_dwordx4 {vr(ACC+4*q,4)}, v{vL16}, s[8:11], s22 offen offset:{(q%4)*1024}{SC}")
    a(f"s_branch {name}_done")
    kernel_desc(a, name, 168)

if __name__ == "__main__":
    a = Asm()
    a('.amdgcn_target "amdgcn-amd-amdhsa--gfx950"')
    gen_k2(a)
    txt = a.text()
    ins, labels = parse_kernel(txt, "attn_kernel")
    for (wave, safe) in ((3, 1), (3, 0), (8, 1), (9, 1), (11, 1)):
        tr = trace(ins, labels, {2: 5, "wave": wave, "$safe": safe, "$flag": max(wave-8, 0)})
        pr = check_trace(tr)
        print("wave", wave, "safe", safe, "trace len", len(tr), "barriers", sum(1 for I in tr if I.op == "s_barrier"), "problems", len(pr))
        for p in pr[:20]: print("  ", p)
    open("k2b.s", "w").write(txt)
```

```python
from common import *
K3_LDS = 4*17408
def gen_k3(a, name, stamps=False, exp={}):
    kernel_header(a, name)
    NK = 8
    ACC = 16
    RING = 80
    vL16, vT0, vT1, vW0, vW1, vX, vA = 1, 2, 3, 4, 5, 6, 7
    XR = 208
    sW = 16
    a("s_cmp_ge_u32 s2, 256")
    a(f"s_cbranch_scc1 {name}_end")
    a(f"s_load_dwordx2 s[4:5], s[0:1], {ARG_WS}")
    a(f"s_load_dwordx2 s[6:7], s[0:1], {ARG_X}")
    a(f"s_load_dwordx2 s[20:21], s[0:1], {ARG_OUT}")
    ST = Stamper(a, stamps, 220, 2)
    ST.init()
    a(f"v_lshrrev_b32 v8, 6, v0")
    a(f"v_and_b32 v{vL16}, 63, v0")
    a(f"v_readfirstlane_b32 s{sW}, v8")
    a(f"v_lshlrev_b32 v{vL16}, 4, v{vL16}")
    a("s_and_b32 s17, s2, 7")
    a("s_lshr_b32 s18, s2, 3")
    a("s_and_b32 s19, s18, 3")
    a("s_lshl_b32 s17, s17, 2")
    a("s_add_u32 s17, s17, s19")
    a("s_lshr_b32 s18, s18, 2")
    a(f"s_mul_i32 s22, s17, {2*144*1024}")
    a(f"s_add_u32 s22, s22, {WS_A2}")
    a(f"s_mul_i32 s23, s18, {2*144*1024}")
    a(f"s_add_u32 s23, s23, {WS_WT}")
    a(f"s_lshl_b32 s24, s{sW}, 13")
    a(f"v_add_u32 v{vT0}, s22, v{vL16}")
    a(f"v_add_u32 v{vW0}, s23, v{vL16}")
    a(f"v_add_u32 v{vT1}, {144*1024}, v{vT0}")
    a(f"v_add_u32 v{vW1}, {144*1024}, v{vW0}")
    a("s_lshl_b32 s26, s17, 3")
    a("s_add_u32 s26, s26, s18")
    a("s_lshl_b32 s26, s26, 14")
    a(f"s_lshl_b32 s27, s{sW}, 12")
    a("s_add_u32 s26, s26, s27")
    a(f"s_add_u32 s26, s26, {WS_PART}")
    a(f"v_lshrrev_b32 v8, 2, v0")
    a(f"v_lshlrev_b32 v8, 10, v8")
    a(f"v_and_b32 v9, 3, v0")
    a(f"v_lshlrev_b32 v9, 5, v9")
    a(f"v_add_u32 v{vX}, v8, v9")
    a("s_lshl_b32 s25, s17, 16")
    a("s_lshl_b32 s27, s18, 7")
    a("s_add_u32 s25, s25, s27")
    a("s_waitcnt lgkmcnt(0)")
    srd(a, 8, 4, WS_SIZE)
    srd(a, 12, 6, 2048*1024)
    srd(a, 28, 20, 2048*1024)
    def loads(slot, imm):
        b = RING + slot*16
        for i, v in enumerate((vT0, vT1, vW0, vW1)):
            a(f"buffer_load_dwordx4 {vr(b+4*i,4)}, v{v}, s[8:11], s24 offen" + (f" offset:{imm}" if imm else ""))
    for i in range(NK):
        loads(i, (i % 4)*1024)
        if i % 4 == 3: a("s_add_u32 s24, s24, 4096")
    PT = 212
    for w in range(4):
        a(f"s_cmp_lg_u32 s{sW}, {w}")
        a(f"s_cbranch_scc1 {name}_z{w}")
        for q in range(4): a(f"buffer_load_dwordx4 {vr(ACC+16*w+4*q,4)}, v{vL16}, s[8:11], s26 offen offset:{q*1024}")
        a(f"s_branch {name}_n{w}")
        a(f"{name}_z{w}:")
        for i in range(16): a(f"v_mov_b32 v{ACC+16*w+i}, 0")
        a(f"{name}_n{w}:")
    a(f"buffer_load_dwordx4 {vr(XR,4)}, v{vX}, s[12:15], s25 offen")
    a(f"buffer_load_dwordx4 {vr(XR+4,4)}, v{vX}, s[12:15], s25 offen offset:16")
    ST(1)
    a("s_waitcnt vmcnt(2)")
    def mfmas(slot):
        b = RING + slot*16
        for aa in range(2):
            for bb in range(2):
                d = ACC + (aa*2+bb)*16
                a(f"v_mfma_f32_32x32x16_bf16 {vr(d,16)}, {vr(b+8+4*aa,4)}, {vr(b+4*bb,4)}, {vr(d,16)}")
    for i in range(NK): mfmas(i)
    ST(2)
    a(f"v_and_b32 v8, 31, v0")
    a(f"v_mul_u32_u24 v8, 272, v8")
    a(f"v_and_b32 v9, 32, v0")
    a(f"v_lshrrev_b32 v9, 1, v9")
    a(f"v_add_u32 v8, v8, v9")
    a(f"s_mul_i32 s26, s{sW}, 17408")
    a(f"v_add_u32 v{vA}, s26, v8")
    a("s_nop 7")
    for bb in range(2):
        for aa in range(2):
            d = ACC + (aa*2+bb)*16
            for q in range(4):
                a(f"ds_write_b128 v{vA}, {vr(d+4*q,4)} offset:{bb*32*272 + aa*128 + q*32}")
    a(f"v_lshrrev_b32 v8, 2, v0")
    a(f"v_mul_u32_u24 v8, 272, v8")
    a(f"v_and_b32 v9, 3, v0")
    a(f"v_lshlrev_b32 v9, 6, v9")
    a(f"v_add_u32 v{vA}, v8, v9")
    a("s_waitcnt lgkmcnt(0)")
    a("s_barrier")
    S = 80
    for w in range(4):
        for i in range(4):
            a(f"ds_read_b128 {vr(S+w*16+4*i,4)}, v{vA} offset:{w*17408 + i*16}")
        if w == 1: a("s_waitcnt lgkmcnt(4)")
    a("s_waitcnt vmcnt(0)")
    for i in range(8):
        a(f"v_lshlrev_b32 v{16+2*i}, 16, v{XR+i}")
        a(f"v_and_b32 v{17+2*i}, 0xffff0000, v{XR+i}")
    for w in range(4):
        a(f"s_waitcnt lgkmcnt({4*(3-w)})")
        for i in range(16): a(f"v_add_f32 v{16+i}, v{16+i}, v{S+w*16+i}")
    for i in range(8): a(f"v_cvt_pk_bf16_f32 v{32+i}, v{16+2*i}, v{17+2*i}")
    a(f"buffer_store_dwordx4 {vr(32,4)}, v{vX}, s[28:31], s25 offen")
    a(f"buffer_store_dwordx4 {vr(36,4)}, v{vX}, s[28:31], s25 offen offset:16")
    ST.dump(sW, None)
    a(f"{name}_end:")
    a("s_endpgm")
    kernel_desc(a, name, 224 if stamps else 216)

if __name__ == "__main__":
    a = Asm()
    a('.amdgcn_target "amdgcn-amd-amdhsa--gfx950"')
    gen_k3(a, "k3_kernel")
    txt = a.text()
    ins, labels = parse_kernel(txt, "k3_kernel")
    for w in (0, 3):
        tr = trace(ins, labels, {2: 5, "wave": w})
        pr = check_trace(tr)
        print("trace len", len(tr), "problems", len(pr))
        for p in pr[:20]: print("  ", p)
    open("k3b.s", "w").write(txt)
```

```python
import sys, os
sys.path.insert(0, os.path.dirname(os.path.abspath(__file__)))
from common import *
import k1, k2, k3, k2b, k3b
NAME = "parallel_sum__softmax_full_mha__dense_activation_mish__prompt"
HEADER = """; Kernarg layout for this problem (80 bytes, ptrs only, base s[0:1]):
"""
def build(stamps=False, exp={}):
    a = Asm()
    K1, K2, K3 = "lnqkv_kernel", "attn_kernel", NAME + "_kernel"
    planb = exp.get("planb", 1)
    m2, m3 = (k2b, k3b) if planb else (k2, k3)
    launches = [(K1, 384, k1.K1_LDS), (K2, 768 if planb else 512, m2.K2_LDS), (K3, 256, m3.K3_LDS)]
    hdr = HEADER
    for (k, b, l) in launches:
        hdr += f"; @launch kernel={k} grid=(256,1,1) block=({b},1,1) lds={l}\n"
    a('.amdgcn_target "amdgcn-amd-amdhsa--gfx950"')
    k1.gen_k1(a, K1, stamps=stamps, exp=exp.get("k1", {}))
    m2.gen_k2(a, K2, stamps=stamps, exp=exp.get("k2", {}))
    m3.gen_k3(a, K3, stamps=stamps, exp=exp.get("k3", {}))
    return hdr + a.text(), launches
def check(txt):
    bad = 0
    K1, K2, K3 = "lnqkv_kernel", "attn_kernel", NAME + "_kernel"
    ins, labels = parse_kernel(txt, K1)
    for wg in [2*(c >> 2) + 64*(c & 3) for c in range(16)]:
        cs = ((wg & 7) >> 1)*4 + ((wg >> 3) >> 3)
        g0, n = k1.CS_TABLE[cs]
        nbs = set()
        for wave in (0, 4, 5):
            tr = trace(ins, labels, {2: wg, "wave": wave, "g0": g0, "n": n})
            pr = check_trace(tr); bad += len(pr)
            nbs.add(sum(1 for I in tr if I.op == "s_barrier"))
            for p in pr[:8]: print("  K1", wg, wave, p)
        if len(nbs) != 1: print("K1 barrier mismatch", wg, nbs); bad += 1
    ins, labels = parse_kernel(txt, K2)
    nbs = set()
    waves = [(3, 1), (3, 0)] + ([(8, 1), (9, 1), (11, 1)] if (K2 + "_G") in labels else [])
    for (wave, safe) in waves:
        tr = trace(ins, labels, {2: 5, "wave": wave, "$safe": safe, "$flag": max(wave-8, 0)})
        pr = check_trace(tr); bad += len(pr)
        nbs.add(sum(1 for I in tr if I.op == "s_barrier"))
        for p in pr[:8]: print("  K2", p)
    if len(nbs) != 1: print("K2 barrier mismatch", nbs); bad += 1
    ins, labels = parse_kernel(txt, K3)
    for wave in (0, 3):
        pr = check_trace(trace(ins, labels, {2: 5, "wave": wave})); bad += len(pr)
        for p in pr[:8]: print("  K3", p)
    return bad
if __name__ == "__main__":
    txt, _ = build()
    bad = check(txt)
    print("hazard problems:", bad)
    assert bad == 0
    out = "cdna_kernels/" + NAME + ".s"
    open(out, "w").write(txt)
    print("wrote", out, len(txt), "bytes")
```

```python
from asmlib import *
MB = 1 << 20
WS_Q, WS_K, WS_V = 0, 2*MB, 4*MB
WS_A2 = 8*MB
WS_WT = 18*MB
WS_PART = 21*MB
WS_CNT = 26*MB
WS_SIZE = 0x10000000
ARG_X, ARG_WQKV, ARG_WO, ARG_BX, ARG_W1, ARG_B1, ARG_W2, ARG_OUT, ARG_DBG, ARG_WS = [8*i for i in range(10)]

def kernel_header(a, name):
    a(".text")
    a(f".globl {name}")
    a(".p2align 8")
    a(f".type {name},@function")
    a(f"{name}:")

def kernel_desc(a, name, nvgpr, nsgpr=96, nagpr=0):
    acc = (nvgpr + 3)//4*4
    a('.section .rodata,"a"')
    a(".p2align 6")
    a(f".amdhsa_kernel {name}")
    a(f"  .amdhsa_next_free_vgpr {acc + nagpr}")
    a(f"  .amdhsa_next_free_sgpr {nsgpr}")
    a(f"  .amdhsa_accum_offset {acc}")
    a("  .amdhsa_group_segment_fixed_size 0")
    a("  .amdhsa_kernarg_size 80")
    a("  .amdhsa_user_sgpr_count 2")
    a("  .amdhsa_user_sgpr_kernarg_segment_ptr 1")
    a("  .amdhsa_system_sgpr_workgroup_id_x 1")
    a("  .amdhsa_float_denorm_mode_32 3")
    a("  .amdhsa_ieee_mode 0")
    a(".end_amdhsa_kernel")

def srd(a, s, base_s, size):
    a(f"s_mov_b32 s{s}, s{base_s}")
    a(f"s_and_b32 s{s+1}, s{base_s+1}, 0xffff")
    a(f"s_mov_b32 s{s+2}, {size:#x}")
    a(f"s_mov_b32 s{s+3}, 0x00020000")

class Stamper:
    def __init__(self, a, on, vreg, slot, sreg=84):
        self.a, self.on, self.v, self.slot, self.s = a, on, vreg, slot, sreg
    def init(self):
        if not self.on: return
        a = self.a
        a(f"s_load_dwordx2 s[{self.s+2}:{self.s+3}], s[0:1], {ARG_DBG}")
        a(f"v_mov_b32 v{self.v}, 0")
        self(0)
    def __call__(self, idx):
        if not self.on: return
        a = self.a
        a(f"s_memtime s[{self.s}:{self.s+1}]")
        a("s_waitcnt lgkmcnt(0)")
        a(f"v_writelane_b32 v{self.v}, s{self.s}, {idx}")
    def dump(self, sW, endlabel):
        if not self.on: return
        a = self.a
        a("s_waitcnt vmcnt(0)")
        self(63)
        a(f"s_lshl_b32 s{self.s}, s2, 4")
        a(f"s_add_u32 s{self.s}, s{self.s}, s{sW}")
        a(f"s_lshl_b32 s{self.s}, s{self.s}, 8")
        a(f"s_add_u32 s{self.s}, s{self.s}, {self.slot*0x100000}")
        a(f"v_mbcnt_lo_u32_b32 v8, -1, 0")
        a(f"v_mbcnt_hi_u32_b32 v8, -1, v8")
        a(f"v_lshlrev_b32 v8, 2, v8")
        a(f"v_add_u32 v8, s{self.s}, v8")
        a(f"global_store_dword v8, v{self.v}, s[{self.s+2}:{self.s+3}]")

def code_prefetch(a, name, vtmp, vdst, spair, nbytes_label_end):
    a(f"s_getpc_b64 s[{spair}:{spair+1}]")
    a(f"{name}_pc:")
    a(f"s_sub_u32 s{spair}, s{spair}, {name}_pc-{name}")
    a(f"s_subb_u32 s{spair+1}, s{spair+1}, 0")
    a(f"v_mbcnt_lo_u32_b32 v{vtmp}, -1, 0")
    a(f"v_mbcnt_hi_u32_b32 v{vtmp}, -1, v{vtmp}")
    a(f"v_lshlrev_b32 v{vtmp}, 7, v{vtmp}")
    return f"{nbytes_label_end}-{name}"
def code_prefetch_loads(a, name, vtmp, vt2, vdst, spair, endlabel, n):
    for i in range(n):
        a(f"v_add_u32 v{vt2}, {i*8192}, v{vtmp}")
        a(f"v_min_u32 v{vt2}, {endlabel}-{name}-4, v{vt2}")
        a(f"global_load_dword v{vdst+i}, v{vt2}, s[{spair}:{spair+1}]")
```

```python
from common import *
import math, struct
K1_LDS = 163840
def f2u(x): return struct.unpack("<I", struct.pack("<f", x))[0]
LOG2E = 1.4426950408889634
LN2 = 0.6931471805599453
QSCALE = 0.25*LOG2E
F_G0 = [0, 6, 12, 18, 24, 30, 36, 41, 46, 51]
F_N  = [6, 6, 6, 6, 6, 6, 5, 5, 5, 5]
CS_TABLE = list(zip(F_G0, F_N)) + [(8*i, 8) for i in range(6)]
def wg_decode(wg):
    x, idx = wg & 7, wg >> 3
    return 4*(x >> 1) + (idx & 3), 8*(x & 1) + (idx >> 2)

def weave(pre, main, fill, npre, start, end):
    out = list(pre) + fill[:npre]
    rest = fill[npre:]
    n = end - start
    k = 0
    for g, gap in enumerate(main):
        out += gap
        if start <= g < end:
            upto = (len(rest)*(g-start+1) + n - 1)//n
            out += rest[k:upto]; k = upto
    out += rest[k:]
    return out

def gen_k1(a, name, stamps=False, exp={}):
    kernel_header(a, name)
    X = 128; ACC = 16; E = 32; WB = 48; NWB = 6; T = 72
    BIAS = 96; XAUG = 100; SEL = 104; RTOK = 108
    PF = exp.get("pf", 4)
    SC = " sc1" if exp.get("sc1", 1) else ""
    vL16, vWa, vSt, vR, vB2, vC1 = 1, 2, 4, 5, 6, 7
    t8, t9, t10, t11 = 8, 9, 10, 11
    vXA, vXB = 12, 13
    XNT = " nt" if exp.get("xnt") else ""
    TNT = " nt" if exp.get("tnt") else ""
    sW, sRB, sCS, sG0, sN, sTile = 32, 33, 34, 35, 36, 37
    sJ, sG, sSt, sStN, sRS, sNP, sStep = 38, 39, 40, 41, 44, 45, 46
    SX, SWm, SWS, SB1, SWO, SW2 = 8, 12, 16, 20, 24, 28
    a("s_cmp_ge_u32 s2, 256")
    a(f"s_cbranch_scc1 {name}_end")
    a("s_load_dwordx4 s[48:51], s[0:1], 0")
    a("s_load_dwordx2 s[52:53], s[0:1], 16")
    a("s_load_dwordx4 s[56:59], s[0:1], 32")
    a("s_load_dwordx2 s[60:61], s[0:1], 48")
    a(f"s_load_dwordx2 s[62:63], s[0:1], {ARG_WS}")
    ST = Stamper(a, stamps, 126, 1)
    ST.init()
    a(f"v_lshrrev_b32 v{t8}, 6, v0")
    a(f"v_and_b32 v{vL16}, 63, v0")
    a(f"v_readfirstlane_b32 s{sW}, v{t8}")
    a(f"v_lshlrev_b32 v{vL16}, 4, v{vL16}")
    a("s_lshr_b32 s4, s2, 3")
    a("s_bfe_u32 s3, s2, 0x20001")
    a("s_lshl_b32 s3, s3, 2")
    a("s_and_b32 s5, s4, 3")
    a(f"s_add_u32 s{sRB}, s3, s5")
    a("s_and_b32 s3, s2, 1")
    a("s_lshl_b32 s3, s3, 3")
    a("s_lshr_b32 s4, s4, 2")
    a(f"s_add_u32 s{sCS}, s3, s4")
    a(f"s_mul_i32 s4, s{sCS}, 6")
    a(f"s_sub_u32 s5, s{sCS}, 6")
    a(f"s_cmp_ge_u32 s{sCS}, 6")
    a("s_cselect_b32 s5, s5, 0")
    a("s_cselect_b32 s6, 5, 6")
    a("s_sub_u32 s4, s4, s5")
    a(f"s_sub_u32 s5, s{sCS}, 10")
    a("s_lshl_b32 s5, s5, 3")
    a(f"s_cmp_lt_u32 s{sCS}, 10")
    a(f"s_cselect_b32 s{sG0}, s4, s5")
    a(f"s_cselect_b32 s{sN}, s6, 8")
    a(f"s_movk_i32 s4, 3072")
    a(f"s_cselect_b32 s{sRS}, 3584, s4")
    a(f"s_and_b32 s3, s{sG0}, 1")
    a(f"s_add_u32 s3, s3, s{sN}")
    a("s_add_u32 s3, s3, 1")
    a(f"s_lshr_b32 s{sNP}, s3, 1")
    a(f"s_lshl_b32 s{sTile}, s{sRB}, 2")
    a(f"s_add_u32 s{sTile}, s{sTile}, s{sW}")
    a("s_waitcnt lgkmcnt(0)")
    ST(1)
    a(f"s_cmp_ge_u32 s{sW}, 4")
    a(f"s_cbranch_scc1 {name}_loader")
    srd(a, SX, 48, 2048*1024)
    a(f"v_bfe_u32 v{t8}, v0, 3, 3")
    a(f"v_lshlrev_b32 v{t8}, 10, v{t8}")
    a(f"v_and_b32 v{t9}, 7, v0")
    a(f"v_bfe_u32 v{t10}, v0, 4, 2")
    a(f"v_xor_b32 v{t9}, v{t9}, v{t10}")
    a(f"v_lshlrev_b32 v{t9}, 4, v{t9}")
    a(f"v_add_u32 v{vXA}, v{t8}, v{t9}")
    a(f"v_xor_b32 v{vXB}, 64, v{vXA}")
    a(f"s_lshl_b32 s3, s{sW}, 15")
    a("s_add_u32 s3, s3, 32768")
    a(f"s_lshl_b32 s4, s{sTile}, 15")
    def xchunk():
        for rg in range(4):
            a(f"s_add_u32 m0, s6, {rg*1024}" if rg else "s_mov_b32 m0, s6")
            a(f"s_add_u32 s5, s7, {rg*8192}" if rg else "s_mov_b32 s5, s7")
            a(f"buffer_load_dwordx4 v{vXA if rg % 2 == 0 else vXB}, s[{SX}:{SX+3}], s5 offen{XNT} lds")
        a("s_add_u32 s6, s6, 4096")
        a("s_add_u32 s7, s7, 128")
    a("s_mov_b32 s6, s3")
    a("s_mov_b32 s7, s4")
    NUP = exp.get("nup", 4)
    a(f"s_mov_b32 s42, {NUP}")
    a(f"{name}_xl:")
    xchunk()
    a("s_sub_u32 s42, s42, 1")
    a("s_cmp_lg_u32 s42, 0")
    a(f"s_cbranch_scc1 {name}_xl")
    ST(2)
    srd(a, SWS, 62, WS_SIZE)
    a(f"v_and_b32 v{t8}, 31, v0")
    a(f"v_bfe_u32 v{t9}, v0, 5, 1")
    a(f"v_lshlrev_b32 v{t9}, 3, v{t9}")
    a(f"v_sub_u32 v{t8}, v{t8}, v{t9}")
    a(f"v_mov_b32 v{t10}, 0x3f80")
    a(f"v_mov_b32 v{t11}, 0x3f800000")
    for r in range(4):
        a(f"v_cmp_eq_u32 vcc, {2*r}, v{t8}")
        a(f"v_cmp_eq_u32 s[42:43], {2*r+1}, v{t8}")
        a(f"v_mov_b32 v{SEL+r}, 0")
        a(f"v_mov_b32 v{BIAS+r}, 0")
        a(f"v_cndmask_b32 v{SEL+r}, v{SEL+r}, v{t10}, vcc")
        a(f"v_cndmask_b32 v{SEL+r}, v{SEL+r}, v{t11}, s[42:43]")
        a(f"v_mov_b32 v{XAUG+r}, 0")
    XA = 80
    a(f"v_bfe_u32 v{t8}, v0, 3, 2")
    a(f"v_lshlrev_b32 v{t8}, 10, v{t8}")
    a(f"v_and_b32 v{t9}, 7, v0")
    a(f"v_lshlrev_b32 v{t9}, 7, v{t9}")
    a(f"v_add_u32 v{t8}, v{t8}, v{t9}")
    a(f"v_bfe_u32 v{t9}, v0, 1, 3")
    a(f"v_bfe_u32 v{t10}, v0, 5, 1")
    a(f"v_xor_b32 v{t9}, v{t9}, v{t10}")
    a(f"v_lshlrev_b32 v{t9}, 4, v{t9}")
    a(f"v_add_u32 v{t8}, v{t8}, v{t9}")
    a(f"v_add_u32 v{t8}, s3, v{t8}")
    for j in range(4): a(f"v_xor_b32 v{XA+j}, {32*j}, v{t8}")
    a(f"v_bfe_u32 v{t8}, v0, 5, 1")
    a(f"v_lshlrev_b32 v{t8}, 2, v{t8}")
    a(f"v_bfe_u32 v{t10}, v0, 2, 2")
    a(f"v_add_u32 v{t8}, v{t8}, v{t10}")
    a(f"v_lshlrev_b32 v{t8}, 7, v{t8}")
    a(f"v_bfe_u32 v{t10}, v0, 4, 1")
    a(f"v_lshlrev_b32 v{t10}, 1, v{t10}")
    a(f"v_bfe_u32 v{t11}, v0, 1, 1")
    a(f"v_add_u32 v{t10}, v{t10}, v{t11}")
    a(f"v_bfe_u32 v{t11}, v0, 3, 1")
    a(f"v_lshlrev_b32 v{t11}, 2, v{t11}")
    a(f"v_xor_b32 v{t10}, v{t10}, v{t11}")
    a(f"v_lshlrev_b32 v{t10}, 4, v{t10}")
    a(f"v_add_u32 v{t8}, v{t8}, v{t10}")
    a(f"v_and_b32 v{t10}, 1, v0")
    a(f"v_lshlrev_b32 v{t10}, 3, v{t10}")
    a(f"v_add_u32 v{vWa}, v{t8}, v{t10}")
    a(f"s_and_b32 s42, s{sG0}, 1")
    a("s_lshl_b32 s42, s42, 6")
    a(f"v_xor_b32 v{vWa}, s42, v{vWa}")
    a(f"v_mov_b32 v{t11}, 0x3f803f80")
    for i in range(16): a(f"v_mov_b32 v{ACC+i}, 0")
    def rdchunk(c):
        for j in range(4): a(f"ds_read_b128 {vr(X+4*(4*c+j),4)}, v{XA+j} offset:{4096*c}")
    def dots(c):
        for j in range(4):
            s = 4*c + j
            o = 4*(s & 1)
            a(f"s_waitcnt lgkmcnt({4+3-j if c < 7 else 3-j})") if False else None
            for r in range(4):
                a(f"v_dot2c_f32_bf16 v{ACC+o+r}, v{X+4*s+r}, v{t11}")
                a(f"v_dot2c_f32_bf16 v{ACC+8+o+r}, v{X+4*s+r}, v{X+4*s+r}")
    B0C = exp.get("b0c", 4)
    for c in range(8):
        if c == B0C: a("s_barrier")
        if c + NUP < 8: xchunk()
        issued = min(8, c + NUP + 1)
        a(f"s_waitcnt vmcnt({4*(issued - c - 1)})")
        rdchunk(c)
        if c >= 1:
            a("s_waitcnt lgkmcnt(4)")
            dots(c - 1)
    ST(3)
    a("s_waitcnt lgkmcnt(0)")
    dots(7)
    ST(4)
    a("s_barrier")
    ST(5)
    a("s_nop 1")
    for st in (4, 2, 1):
        for i in range(st):
            a(f"v_add_f32 v{ACC+i}, v{ACC+i}, v{ACC+i+st}")
            a(f"v_add_f32 v{ACC+8+i}, v{ACC+8+i}, v{ACC+8+i+st}")
    a(f"v_mov_b32 v{ACC+1}, v{ACC}")
    a(f"v_mov_b32 v{ACC+9}, v{ACC+8}")
    a("s_nop 1")
    a(f"v_permlane32_swap_b32 v{ACC}, v{ACC+1}")
    a(f"v_permlane32_swap_b32 v{ACC+8}, v{ACC+9}")
    a("s_nop 1")
    a(f"v_add_f32 v{ACC}, v{ACC}, v{ACC+1}")
    a(f"v_add_f32 v{ACC+8}, v{ACC+8}, v{ACC+9}")
    a(f"v_mul_f32 v{ACC}, {f2u(1.0/512):#x}, v{ACC}")
    a(f"v_mul_f32 v{ACC+8}, {f2u(1.0/512):#x}, v{ACC+8}")
    a(f"v_cvt_pk_bf16_f32 v{ACC+1}, v{ACC}, v{ACC}")
    a(f"v_fma_f32 v{t8}, -v{ACC}, v{ACC}, v{ACC+8}")
    a(f"v_lshlrev_b32 v{ACC+1}, 16, v{ACC+1}")
    a(f"v_max_f32 v{t8}, 0, v{t8}")
    NEG = 48
    for i in range(16): a(f"v_sub_f32 v{NEG+i}, 0, v{ACC+1}")
    SQ = t8
    DB = [ACC, E, 64, 80]
    def cM(s): a(f"v_mfma_f32_32x32x16_bf16 {vr(DB[s%4],16)}, {vr(SEL,4)}, {vr(X+4*s,4)}, {vr(NEG,16)}")
    def cC(s):
        for r in range(4): a(f"v_cvt_pk_bf16_f32 v{X+4*s+r}, v{DB[s%4]+2*r}, v{DB[s%4]+2*r+1}")
    a(f"v_cvt_pk_bf16_f32 v{SQ}, v{SQ}, v{SQ}")
    a(f"v_lshlrev_b32 v{SQ}, 16, v{SQ}")
    cM(0)
    a(f"v_add_f32 v{SQ}, {f2u(1e-5):#x}, v{SQ}")
    a(f"v_cvt_pk_bf16_f32 v{SQ}, v{SQ}, v{SQ}")
    a(f"v_lshlrev_b32 v{SQ}, 16, v{SQ}")
    a(f"v_sqrt_f32 v{SQ}, v{SQ}")
    cM(1)
    a(f"v_cvt_pk_bf16_f32 v{SQ+1}, v{SQ}, v{SQ}")
    a(f"v_and_b32 v{SQ+1}, 0xffff, v{SQ+1}")
    a(f"v_lshlrev_b32 v{SQ}, 16, v{SQ+1}")
    a(f"v_rcp_f32 v{vR}, v{SQ}")
    cM(2)
    a(f"v_bfe_u32 v{SQ+2}, v0, 5, 1")
    a(f"v_cmp_eq_u32 vcc, 0, v{SQ+2}")
    a("s_nop 1")
    a(f"v_cndmask_b32 v{XAUG}, 0, v{SQ+1}, vcc")
    for s in range(32):
        if s + 3 < 32: cM(s + 3)
        else: a("s_nop 3")
        cC(s)
    ST(6)
    a(f"s_mov_b32 s{sJ}, 0")
    a(f"s_mov_b32 s{sG}, s{sG0}")
    a(f"s_mov_b32 s{sSt}, 0x7ff00000")
    a(f"s_cmp_lt_u32 s{sCS}, 10")
    a(f"s_cbranch_scc1 {name}_F")
    a(f"s_cmp_lt_u32 s{sCS}, 14")
    a(f"s_cbranch_scc1 {name}_QK")
    a(f"s_branch {name}_V")

    def epilogue(ty):
        L = []
        P = T + 12
        st = lambda r, off: [f"buffer_store_dwordx4 {vr(r,4)}, v{vSt}, s[{SWS}:{SWS+3}], s{sSt} offen" + (f" offset:{off}" if off else "") + SC]
        if ty == "F":
            t, e, w = T, T+4, T+8
            for q in range(4):
                Eq = E + 4*q
                L += [f"v_mul_f32 v{t+i}, v{Eq+i}, v{vR}" for i in range(4)]
                L += [f"v_exp_f32 v{e+i}, v{t+i}" for i in range(4)]
                L += [f"v_add_f32 v{e+i}, 1.0, v{e+i}" for i in range(4)]
                L += [f"v_fma_f32 v{w+i}, v{e+i}, v{e+i}, 1.0" for i in range(4)]
                L += [f"v_rcp_f32 v{w+i}, v{w+i}" for i in range(4)]
                L += [f"v_fmaak_f32 v{w+i}, v{w+i}, v{vC1}, {f2u(LN2):#x}" for i in range(4)]
                L += [f"v_mul_f32 v{t+i}, v{t+i}, v{w+i}" for i in range(4)]
                L += [f"v_cvt_pk_bf16_f32 v{P+2*q+i}, v{t+2*i}, v{t+2*i+1}" for i in range(2)]
                if q == 1: L += st(P, 0)
                if q == 3: L += st(P+4, 1024)
        elif ty == "QK":
            for q in range(4):
                Eq = E + 4*q
                L += [f"v_mul_f32 v{T+i}, v{Eq+i}, v{vC1}" for i in range(4)]
                L += [f"v_cvt_pk_bf16_f32 v{P+2*q+i}, v{T+2*i}, v{T+2*i+1}" for i in range(2)]
                if q == 1: L += st(P, 0)
                if q == 3: L += [f"buffer_store_dwordx4 {vr(P+4,4)}, v{vB2}, s[{SWS}:{SWS+3}], s{sSt} offen{SC}"]
        else:
            for q in range(4):
                Eq = E + 4*q
                L += [f"v_mul_f32 v{T+i}, v{Eq+i}, v{RTOK+4*q+i}" for i in range(4)]
                L += [f"v_cvt_pk_bf16_f32 v{P+2*q+i}, v{T+2*i}, v{T+2*i+1}" for i in range(2)]
                if q == 1: L += st(P, 0)
                if q == 3: L += st(P+4, 512)
        return L

    def group_loop(ty):
        a(f"{name}_{ty}:")
        if ty == "F":
            a(f"v_mul_f32 v{vR}, {f2u(LOG2E):#x}, v{vR}")
            a(f"v_mov_b32 v{vC1}, {f2u(-2.0*struct.unpack('<f', struct.pack('<f', LN2))[0]):#x}")
            a(f"v_mov_b32 v{vSt}, v{vL16}")
            a(f"v_and_b32 v{vB2}, 31, v0")
            a(f"v_lshlrev_b32 v{vB2}, 1, v{vB2}")
            srd(a, SB1, 58, 1792*2)
            a(f"s_mul_i32 s3, s{sTile}, 144")
            a(f"s_lshl_b32 s4, s{sG0}, 1")
            a("s_add_u32 s3, s3, s4")
            a("s_add_u32 s3, s3, 32")
            a("s_lshl_b32 s3, s3, 10")
            a(f"s_add_u32 s{sStN}, s3, {WS_A2}")
            a(f"s_movk_i32 s{sStep}, 2048")
        elif ty == "QK":
            a(f"v_mov_b32 v{vSt}, v{vL16}")
            a(f"v_add_u32 v{vB2}, 65536, v{vL16}")
            a(f"s_cmp_lt_u32 s{sG0}, 16")
            a(f"s_cselect_b32 s3, {f2u(QSCALE):#x}, 1.0")
            a(f"v_mul_f32 v{vC1}, s3, v{vR}")
            a(f"s_lshl_b32 s3, s{sG0}, 17")
            a(f"s_lshl_b32 s4, s{sTile}, 10")
            a(f"s_add_u32 s{sStN}, s3, s4")
            a(f"s_mov_b32 s{sStep}, 131072")
        else:
            a(f"s_lshl_b32 s3, s{sW}, 7")
            a(f"s_add_u32 s3, s3, {150*1024}")
            a(f"v_and_b32 v{t8}, 31, v0")
            a(f"v_lshlrev_b32 v{t8}, 2, v{t8}")
            a(f"v_add_u32 v{t8}, s3, v{t8}")
            a(f"ds_write_b32 v{t8}, v{vR}")
            a(f"v_bfe_u32 v{t9}, v0, 5, 1")
            a(f"v_lshlrev_b32 v{t9}, 4, v{t9}")
            a(f"v_add_u32 v{t9}, s3, v{t9}")
            a("s_waitcnt lgkmcnt(0)")
            for q in range(4): a(f"ds_read_b128 {vr(RTOK+4*q,4)}, v{t9} offset:{32*q}")
            a(f"v_bfe_u32 v{t8}, v0, 4, 1")
            a(f"v_lshlrev_b32 v{t8}, 16, v{t8}")
            a(f"v_bfe_u32 v{t9}, v0, 5, 1")
            a(f"v_lshlrev_b32 v{t9}, 8, v{t9}")
            a(f"v_add_u32 v{t8}, v{t8}, v{t9}")
            a(f"v_and_b32 v{t9}, 15, v0")
            a(f"v_lshlrev_b32 v{t9}, 4, v{t9}")
            a(f"v_add_u32 v{vSt}, v{t8}, v{t9}")
            a(f"s_lshl_b32 s3, s{sG0}, 17")
            a(f"s_lshl_b32 s4, s{sTile}, 10")
            a(f"s_add_u32 s{sStN}, s3, s4")
            a(f"s_mov_b32 s{sStep}, 131072")
            a("s_waitcnt lgkmcnt(0)")
        a("s_barrier")
        ST(7)
        a(f"{name}_{ty}_loop:")
        def rdW(s):
            b = WB + 4*(s % NWB)
            return [f"ds_read_b64_tr_b16 {vr(b,2)}, v{vWa} offset:{s*2048}", f"ds_read_b64_tr_b16 {vr(b+2,2)}, v{vWa} offset:{s*2048+1024}"]
        pre = []
        for s in range(PF): pre += rdW(s)
        if ty == "F":
            pre += [f"s_lshl_b32 s4, s{sG}, 6", f"buffer_load_ushort v{BIAS}, v{vB2}, s[{SB1}:{SB1+3}], s4 offen"]
        gaps = []
        for s in range(32):
            g = []
            issued = min(32, s + PF)
            if s % 2 == 0 or exp.get("wait1"):
                need = s + 1 if (exp.get("wait1") or s == 31) else min(32, s + 2)
                g.append(f"s_waitcnt lgkmcnt({2*(issued - need)})")
            b = WB + 4*(s % NWB)
            last = (s == 31 and ty != "F")
            D = E if last else ACC
            C = "0" if s == 0 else vr(ACC,16)
            if ty == "V": g.append(f"v_mfma_f32_32x32x16_bf16 {vr(D,16)}, {vr(X+4*s,4)}, {vr(b,4)}, {C}")
            else:         g.append(f"v_mfma_f32_32x32x16_bf16 {vr(D,16)}, {vr(b,4)}, {vr(X+4*s,4)}, {C}")
            if s + PF < 32: g += rdW(s + PF)
            gaps.append(g)
        epi = epilogue(ty)
        npre = exp.get("npre", 16 if ty == "F" else 6)
        a.extend(weave(pre, gaps, epi, npre, 0, 29))
        if ty == "F":
            a("s_waitcnt vmcnt(2)")
            a(f"v_mfma_f32_32x32x16_bf16 {vr(E,16)}, {vr(BIAS,4)}, {vr(XAUG,4)}, {vr(ACC,16)}")
        if stamps:
            a(f"s_add_u32 m0, s{sJ}, 8")
            a("s_memtime s[84:85]")
            a("s_waitcnt lgkmcnt(0)")
            a("s_nop 3")
            a("v_writelane_b32 v126, s84, m0")
        a(f"s_mov_b32 s{sSt}, s{sStN}")
        a(f"s_add_u32 s{sStN}, s{sStN}, s{sStep}")
        a(f"s_add_u32 s{sJ}, s{sJ}, 1")
        a(f"s_add_u32 s{sG}, s{sG}, 1")
        a(f"s_cmp_ge_u32 s{sJ}, s{sN}")
        a(f"s_cbranch_scc1 {name}_{ty}_out")
        a(f"s_bitcmp0_b32 s{sG}, 0")
        a("s_cselect_b32 s3, 0x10040, 64")
        a(f"v_xor_b32 v{vWa}, s3, v{vWa}")
        a(f"s_cbranch_scc0 {name}_{ty}_loop")
        a("s_barrier")
        a(f"s_branch {name}_{ty}_loop")
        a(f"{name}_{ty}_out:")
        a("s_nop 11")
        a.extend(epi)
        a(f"s_branch {name}_fin")
    for ty in ("F", "QK", "V"): group_loop(ty)

    a(f"{name}_loader:")
    sU, sP, sK, sM = 47, 43, 64, 65
    vD = 2
    a(f"s_cmp_lt_u32 s{sCS}, 10")
    a("s_cselect_b32 s4, s56, s50")
    a("s_cselect_b32 s5, s57, s51")
    a(f"s_mov_b32 s{SWm}, s4")
    a(f"s_and_b32 s{SWm+1}, s5, 0xffff")
    a(f"s_lshl_b32 s{SWm+2}, s{sRS}, 9")
    a(f"s_mov_b32 s{SWm+3}, 0x00020000")
    a(f"s_sub_u32 s{sU}, s{sW}, 4")
    a(f"v_bfe_u32 v3, v0, 3, 3")
    a(f"v_mul_lo_u32 v{vD}, s{sRS}, v3")
    a(f"v_and_b32 v3, 7, v0")
    a(f"v_bfe_u32 v4, v0, 4, 1")
    a(f"v_lshlrev_b32 v4, 2, v4")
    a(f"v_xor_b32 v3, v3, v4")
    a(f"v_lshlrev_b32 v3, 4, v3")
    a(f"v_add_u32 v{vD}, v{vD}, v3")
    a(f"s_lshr_b32 s{sP}, s{sG0}, 1")
    a(f"s_lshl_b32 s{sP}, s{sP}, 7")
    a(f"s_lshl_b32 s66, s{sRS}, 4")
    a(f"s_lshl_b32 s67, s{sRS}, 3")
    a(f"s_mul_i32 s67, s67, s{sU}")
    a("s_lshr_b32 s68, s2, 3")
    a("s_and_b32 s68, s68, 3")
    if exp.get("lprio", 0): a(f"s_setprio {exp.get('lprio', 0)}")
    THR = exp.get("thr", 0)
    def dma_rows(i0, n, slot_s, thr=True):
        a(f"s_lshl_b32 s7, s{sU}, 10")
        a(f"s_add_u32 s7, s7, {slot_s}")
        a(f"s_add_u32 m0, s7, {i0*2048}")
        a(f"s_mul_i32 s42, s66, {i0}")
        a(f"s_add_u32 s42, s42, s67")
        a(f"s_add_u32 s42, s42, s{sP}")
        for k in range(n):
            a(f"buffer_load_dwordx4 v{vD}, s[{SWm}:{SWm+3}], s42 offen lds")
            if THR and thr and k >= THR: a(f"s_waitcnt vmcnt({THR})")
            if k + 1 < n:
                a("s_add_u32 m0, m0, 2048")
                a("s_add_u32 s42, s42, s66")
    ntouch = exp.get("touch", 0)
    if exp.get("touch0", 1):
        srd(a, SX, 48, 2048*1024)
        a(f"v_and_b32 v8, 63, v0")
        a(f"s_lshl_b32 s3, s{sU}, 6")
        a(f"v_add_u32 v9, s3, v8")
        a(f"v_lshlrev_b32 v9, 10, v9")
        a(f"s_lshl_b32 s3, s{sRB}, 17")
        a("s_lshr_b32 s4, s2, 5")
        a("s_lshl_b32 s4, s4, 7")
        a("s_add_u32 s3, s3, s4")
        a(f"buffer_load_dword v20, v9, s[{SX}:{SX+3}], s3 offen{TNT}")
    if exp.get("codepf", 1):
        a("s_getpc_b64 s[76:77]")
        a(f"{name}_pc:")
        a(f"s_sub_u32 s76, s76, {name}_pc-{name}")
        a("s_subb_u32 s77, s77, 0")
        a("s_lshr_b32 s3, s2, 3")
        a("s_lshl_b32 s3, s3, 9")
        a(f"v_and_b32 v9, 3, v0")
        a(f"v_lshlrev_b32 v9, 7, v9")
        a(f"v_add_u32 v9, s3, v9")
        a(f"v_min_u32 v9, {name}_end-{name}-4, v9")
        a(f"global_load_dword v22, v9, s[76:77]")
    if exp.get("touchw", 1):
        if exp.get("twdelay", 1): a("s_waitcnt vmcnt(0)")
        a(f"s_cmp_eq_u32 s{sU}, 0")
        a("s_cselect_b32 s72, s50, s56")
        a("s_cselect_b32 s73, s51, s57")
        a("s_cselect_b32 s3, 48, 56")
        a("s_and_b32 s73, s73, 0xffff")
        a("s_mul_i32 s74, s3, 32768")
        a("s_mov_b32 s75, 0x00020000")
        a("s_mul_i32 s4, s3, s2")
        a("s_lshl_b32 s4, s4, 7")
        a("s_sub_u32 s3, s3, 1")
        a(f"v_and_b32 v9, 63, v0")
        a(f"v_min_u32 v9, s3, v9")
        a(f"v_lshlrev_b32 v9, 7, v9")
        a(f"buffer_load_dword v24, v9, s[72:75], s4 offen")
    a("s_cmp_lg_u32 s2, 0")
    a(f"s_cbranch_scc1 {name}_nz")
    a(f"s_load_dwordx2 s[78:79], s[0:1], {ARG_WS}") if False else None
    srd(a, SWS, 62, WS_SIZE)
    a(f"v_and_b32 v9, 63, v0")
    a(f"v_lshlrev_b32 v9, 7, v9")
    a(f"v_mov_b32 v10, 0")
    a(f"s_mov_b32 s3, {WS_CNT}")
    a(f"buffer_store_dword v10, v9, s[{SWS}:{SWS+3}], s3 offen sc1")
    a(f"{name}_nz:")
    ST(2)
    a("s_barrier          ; B0")
    dma_rows(0, 16, "0", thr=False)
    srd(a, SWO, 52, 512*1024)
    srd(a, SW2, 60, 1792*1024)
    srd(a, SWS, 62, WS_SIZE)
    ST(3)
    a("s_barrier          ; B1")
    ST(5)
    dma_rows(16, 16, "0")
    a(f"s_add_u32 s{sP}, s{sP}, 128")
    dma_rows(0, 16, "65536")
    ST(6)
    a("s_waitcnt vmcnt(16)")
    ST(4)
    a("s_barrier          ; B2")
    ST(7)
    dma_rows(16, 16, "65536")
    if ntouch:
        a(f"s_lshl_b32 s3, s68, 8")
        a(f"s_lshl_b32 s4, s{sU}, 7")
        a("s_add_u32 s3, s3, s4")
        a(f"v_and_b32 v8, 63, v0")
        a(f"v_add_u32 v8, s3, v8")
        a(f"s_add_u32 s4, s{sP}, 128")
        for i in range(2):
            a(f"v_and_b32 v9, 511, v8")
            a(f"v_mul_lo_u32 v9, s{sRS}, v9")
            a(f"v_lshrrev_b32 v10, 9, v8")
            a(f"v_lshlrev_b32 v10, 7, v10")
            a(f"v_add_u32 v9, v9, v10")
            a(f"buffer_load_dword v{12+i}, v9, s[{SWm}:{SWm+3}], s4 offen")
            a(f"v_add_u32 v8, 64, v8")
    a("s_lshr_b32 s70, s2, 4")
    a("s_and_b32 s69, s2, 15")
    a("s_mul_i32 s69, s69, 9")
    a(f"s_add_u32 s69, s69, s{sU}")
    a(f"s_sub_u32 s74, 5, s{sU}")
    a(f"v_bfe_u32 v3, v0, 2, 4")
    a(f"v_lshlrev_b32 v3, 10, v3")
    a(f"v_and_b32 v4, 3, v0")
    a(f"v_lshlrev_b32 v4, 4, v4")
    a(f"v_add_u32 v5, v3, v4")
    a(f"v_bfe_u32 v3, v0, 5, 1")
    a(f"v_lshlrev_b32 v3, 2, v3")
    a(f"v_bfe_u32 v4, v0, 2, 2")
    a(f"v_add_u32 v3, v3, v4")
    a(f"v_lshlrev_b32 v3, 6, v3")
    a(f"v_bfe_u32 v4, v0, 4, 1")
    a(f"v_lshlrev_b32 v4, 5, v4")
    a(f"v_add_u32 v3, v3, v4")
    a(f"v_and_b32 v4, 3, v0")
    a(f"v_lshlrev_b32 v4, 3, v4")
    a(f"v_add_u32 v3, v3, v4")
    a(f"s_lshl_b32 s3, s{sU}, 13")
    a(f"s_add_u32 s75, s3, {128*1024}")
    a(f"v_add_u32 v6, s75, v3")
    a(f"v_and_b32 v7, 63, v0")
    a(f"v_lshlrev_b32 v7, 4, v7")
    a("s_mov_b32 s80, s69")
    a("s_mov_b32 s81, s74")
    a("s_mov_b32 s82, s75")
    a(f"{name}_sj:")
    a("s_mov_b32 m0, s82")
    a("s_lshl_b32 s4, s70, 6")
    a("s_cmp_lt_u32 s80, 32")
    a(f"s_cbranch_scc0 {name}_sj2")
    a("s_lshl_b32 s3, s80, 14")
    a("s_add_u32 s3, s3, s4")
    a(f"buffer_load_dwordx4 v5, s[{SWO}:{SWO+3}], s3 offen lds")
    a(f"s_branch {name}_sj3")
    a(f"{name}_sj2:")
    a("s_sub_u32 s3, s80, 32")
    a("s_lshl_b32 s3, s3, 14")
    a("s_add_u32 s3, s3, s4")
    a(f"buffer_load_dwordx4 v5, s[{SW2}:{SW2+3}], s3 offen lds")
    a(f"{name}_sj3:")
    a("s_add_u32 s80, s80, 2")
    a("s_add_u32 s82, s82, 1024")
    a("s_sub_u32 s81, s81, 1")
    a("s_cmp_lg_u32 s81, 0")
    a(f"s_cbranch_scc1 {name}_sj")
    a(f"s_mov_b32 s{sK}, 1")
    a("s_waitcnt vmcnt(%d)" % (6 if ntouch else 4))
    a(f"s_branch {name}_lp1")
    a(f"{name}_lp:")
    a("s_waitcnt vmcnt(0)")
    a(f"{name}_lp1:")
    if stamps:
        a(f"s_add_u32 m0, s{sK}, 16")
        a("s_memtime s[84:85]")
        a("s_waitcnt lgkmcnt(0)")
        a("s_nop 3")
        a("v_writelane_b32 v126, s84, m0")
    a("s_barrier")
    if stamps:
        a(f"s_add_u32 m0, s{sK}, 24")
        a("s_memtime s[84:85]")
        a("s_waitcnt lgkmcnt(0)")
        a("s_nop 3")
        a("v_writelane_b32 v126, s84, m0")
    a(f"s_add_u32 s{sK}, s{sK}, 1")
    a(f"s_cmp_ge_u32 s{sK}, s{sNP}")
    a(f"s_cbranch_scc1 {name}_sjfin")
    a(f"s_add_u32 s{sP}, s{sP}, 128")
    a(f"s_and_b32 s{sM}, s{sK}, 1")
    a(f"s_lshl_b32 s{sM}, s{sM}, 16")
    dma_rows(0, 32, f"s{sM}")
    a(f"s_branch {name}_lp")
    a(f"{name}_sjfin:")
    a("ds_read_b64_tr_b16 v[8:9], v6")
    a("ds_read_b64_tr_b16 v[10:11], v6 offset:512")
    a("s_mul_i32 s3, s70, 144")
    a("s_add_u32 s3, s3, s69")
    a("s_lshl_b32 s3, s3, 10")
    a(f"s_add_u32 s3, s3, {WS_WT}")
    a("v_add_u32 v6, 1024, v6")
    a("s_waitcnt lgkmcnt(0)")
    a(f"buffer_store_dwordx4 v[8:11], v7, s[{SWS}:{SWS+3}], s3 offen{SC}")
    a("s_add_u32 s69, s69, 2")
    a("s_sub_u32 s74, s74, 1")
    a("s_cmp_lg_u32 s74, 0")
    a("s_nop 0")
    a(f"s_cbranch_scc1 {name}_sjfin")
    a(f"{name}_fin:")
    ST.dump(sW, None)
    a(f"{name}_end:")
    a("s_endpgm")
    kernel_desc(a, name, 256)
```

```python
from common import *
LDS_K, LDS_V, LDS_ONES, LDS_RED, LDS_FLAG = 0, 65536, 131072, 141312, 141312+16384
K2_LDS = LDS_FLAG + 64
NGW = 4
def gen_k2(a, name="attn_kernel", stamps=False, exp={}):
    kernel_header(a, name)
    Q, KB, VB = [8, 12], [16, 20], [24, 32]
    P, S, O, C = [40, 48], [[56, 72], [88, 104]], [120, 136], 152
    vL16, vK, vV, vInc, vT, vT2 = 1, 2, 3, 4, 5, 6
    sW, sHead, sQt, sI, sG, sL = 16, 17, 18, 20, 21, 22
    SC = " sc1" if exp.get("sc1", 1) else ""
    a("s_cmp_ge_u32 s2, 256")
    a(f"s_cbranch_scc1 {name}_end")
    a(f"s_load_dwordx2 s[4:5], s[0:1], {ARG_WS}")
    ST = Stamper(a, stamps, 200, 0)
    ST.init()
    a(f"v_lshrrev_b32 v{vT}, 6, v0")
    a(f"v_and_b32 v{vL16}, 63, v0")
    a(f"v_readfirstlane_b32 s{sW}, v{vT}")
    a(f"v_lshlrev_b32 v{vL16}, 4, v{vL16}")
    a("s_and_b32 s17, s2, 7")
    a("s_lshr_b32 s18, s2, 3")
    a("s_and_b32 s19, s18, 3")
    a("s_lshl_b32 s26, s17, 2")
    a(f"s_add_u32 s{sHead}, s26, s19")
    a("s_lshr_b32 s27, s18, 2")
    a(f"s_lshl_b32 s23, s{sHead}, 16")
    a(f"s_cmp_ge_u32 s{sW}, 4")
    a(f"s_cbranch_scc1 {name}_G")
    MF = "v_mfma_f32_32x32x16_bf16"
    a("s_lshl_b32 s18, s27, 3")
    a(f"s_lshl_b32 s19, s{sW}, 1")
    a(f"s_add_u32 s{sQt}, s18, s19")
    a(f"s_lshl_b32 s24, s{sQt}, 10")
    a("s_add_u32 s24, s24, s23")
    a(f"s_lshl_b32 s{sL}, s{sW}, 11")
    a(f"s_add_u32 s{sG}, s23, s{sL}")
    a(f"s_add_u32 s{sG}, s{sG}, {WS_K}")
    a("s_waitcnt lgkmcnt(0)")
    srd(a, 8, 4, WS_SIZE)
    a(f"s_mov_b32 m0, s{sL}")
    a(f"s_add_u32 s25, s{sG}, {WS_V-WS_K}")
    a(f"buffer_load_dwordx4 v{vL16}, s[8:11], s{sG} offen lds")
    a(f"buffer_load_dwordx4 v{vL16}, s[8:11], s{sG} offen offset:1024 lds")
    a(f"s_add_u32 m0, s{sL}, {LDS_V}")
    a(f"buffer_load_dwordx4 {vr(Q[0],4)}, v{vL16}, s[8:11], s24 offen")
    a(f"buffer_load_dwordx4 v{vL16}, s[8:11], s25 offen lds")
    a(f"buffer_load_dwordx4 v{vL16}, s[8:11], s25 offen offset:1024 lds")
    a(f"buffer_load_dwordx4 {vr(Q[1],4)}, v{vL16}, s[8:11], s24 offen offset:1024")
    a(f"v_lshlrev_b32 v{vT}, 4, v0")
    a(f"v_add_u32 v{vT}, {LDS_ONES}, v{vT}")
    for i in range(4):
        a(f"v_mov_b32 v{P[0]+i}, 0x3f803f80")
    for off in (0, 4096, 6144):
        a(f"ds_write_b128 v{vT}, {vr(P[0],4)} offset:{off}")
    a(f"v_mov_b32 v{vK}, v{vL16}")
    a(f"v_and_b32 v{vT}, 15, v0")
    a(f"v_lshlrev_b32 v{vT}, 4, v{vT}")
    a(f"v_and_b32 v{vT2}, 32, v0")
    a(f"v_lshlrev_b32 v{vT2}, 3, v{vT2}")
    a(f"v_add_u32 v{vT}, v{vT}, v{vT2}")
    a(f"v_add_u32 v{vV}, {LDS_V}, v{vT}")
    a(f"v_and_b32 v{vT}, 31, v0")
    a(f"v_subrev_u32 v{vT2}, 20, v{vT}")
    a(f"v_cmp_gt_u32 vcc, 8, v{vT2}")
    a(f"v_mov_b32 v{vT2}, {LDS_ONES}")
    a(f"v_mov_b32 v{vInc}, {LDS_ONES+64}")
    a(f"v_cndmask_b32 v{vT2}, v{vT2}, v{vInc}, vcc")
    a(f"v_cmp_gt_u32 vcc, 16, v{vT}")
    a(f"v_mov_b32 v{vInc}, 0")
    a(f"v_mov_b32 v{vT}, 8192")
    a(f"v_cndmask_b32 v{vV}, v{vT2}, v{vV}, vcc")
    a(f"v_cndmask_b32 v{vInc}, v{vInc}, v{vT}, vcc")
    for i in range(32):
        a(f"v_mov_b32 v{O[0]+i}, 0")
    for i in range(4):
        a(f"v_mov_b32 v{P[1]+4+i}, 0")
        a(f"v_mov_b32 v{VB[1]+4+i}, 0")
    a("s_waitcnt vmcnt(0) lgkmcnt(0)")
    a("s_barrier")
    a(f"ds_read_b128 {vr(KB[0],4)}, v{vK}")
    a(f"ds_read_b128 {vr(KB[1],4)}, v{vK} offset:1024")
    a(f"ds_read_b128 {vr(VB[0],4)}, v{vV}")
    a(f"ds_read_b128 {vr(VB[0]+4,4)}, v{vV} offset:512")
    a(f"s_mov_b32 s{sI}, 0")
    a("s_waitcnt lgkmcnt(3)")
    a(f"{MF} {vr(S[0][0],16)}, {vr(KB[0],4)}, {vr(Q[0],4)}, 0")
    a(f"{MF} {vr(S[1][0],16)}, {vr(KB[0],4)}, {vr(Q[1],4)}, 0")
    a("s_nop 15")
    ST(1)
    if exp.get("aprio"): a(f"s_setprio {exp['aprio']}")
    a(".p2align 6")
    a(f"{name}_loop:")
    for p in range(8):
        cur, nxt = p & 1, (p & 1) ^ 1
        E = lambda x, lo, hi: [f"v_exp_f32 v{S[x][cur]+i}, v{S[x][cur]+i}" for i in range(lo, hi)]
        Cv = lambda x, lo, hi: [f"v_cvt_pk_bf16_f32 v{P[x]+i}, v{S[x][cur]+2*i}, v{S[x][cur]+2*i+1}" for i in range(lo, hi)]
        QK = lambda x: [f"{MF} {vr(S[x][nxt],16)}, {vr(KB[nxt],4)}, {vr(Q[x],4)}, 0"]
        PV0 = lambda x: [f"{MF} {vr(O[x],16)}, {vr(VB[cur],4)}, {vr(P[x],4)}, {vr(O[x],16)}"]
        PV1 = lambda x: [f"{MF} {vr(O[x],16)}, {vr(VB[cur]+4,4)}, {vr(P[x]+4,4)}, {vr(O[x],16)}"]
        PV1d = [f"{MF} {vr(O[1],16)}, {vr(VB[nxt]+4,4)}, {vr(P[1]+4,4)}, {vr(O[1],16)}"]
        RK = [f"ds_read_b128 {vr(KB[cur],4)}, v{vK} offset:{(p+2)*1024}"]
        RV0 = [f"ds_read_b128 {vr(VB[nxt],4)}, v{vV} offset:{(p+1)*1024}"]
        RV1 = [f"ds_read_b128 {vr(VB[nxt]+4,4)}, v{vV} offset:{(p+1)*1024+512}"]
        if exp.get("noread"): RK = RV0 = RV1 = []
        a.extend(["s_waitcnt lgkmcnt(0)"] + QK(0))
        if p == 6:
            a(f"s_cmp_lt_u32 s{sI}, 3")
            a(f"s_cbranch_scc1 {name}_sync")
            a(f"{name}_syncret:")
        order = exp.get("order", 0)
        if order == 0:
            a.extend(RK + E(0,0,4) + PV1d + RV0 + RV1 + E(0,4,8) + Cv(0,0,4) + QK(1) + E(0,8,12) + PV0(0) + E(0,12,16) + Cv(0,4,8)
                     + E(1,0,4) + PV1(0) + E(1,4,8) + Cv(1,0,4) + E(1,8,12) + PV0(1) + E(1,12,16) + Cv(1,4,8))
        elif order == 1:
            a.extend(RK + E(0,0,4) + PV1d + RV1 + E(0,4,8) + Cv(0,0,4) + QK(1) + RV0 + E(0,8,12) + PV0(0) + E(0,12,16) + Cv(0,4,8)
                     + E(1,0,4) + PV1(0) + E(1,4,8) + Cv(1,0,4) + E(1,8,12) + PV0(1) + E(1,12,16) + Cv(1,4,8))
    if stamps and exp.get("itstamp"):
        a(f"s_add_u32 m0, s{sI}, 8")
        a("s_memtime s[84:85]")
        a("s_waitcnt lgkmcnt(0)")
        a("s_nop 3")
        a("v_writelane_b32 v200, s84, m0")
    a(f"v_add_u32 v{vK}, 8192, v{vK}")
    a(f"v_add_u32 v{vV}, v{vInc}, v{vV}")
    a(f"s_add_u32 s{sI}, s{sI}, 1")
    a(f"s_cmp_lt_u32 s{sI}, 8")
    a(f"s_cbranch_scc1 {name}_loop")
    a("s_waitcnt lgkmcnt(0)")
    a(f"{MF} {vr(O[1],16)}, {vr(VB[1]+4,4)}, {vr(P[1]+4,4)}, {vr(O[1],16)}")
    a("s_nop 15")
    ST(2)
    vSt = 7
    for x in range(2):
        Ox, Px, Qx = O[x], P[x], Q[x]
        a(f"v_mul_f32 v{vT}, 0, v{Ox}")
        for i in range(1, 8): a(f"v_fmac_f32 v{vT}, 0, v{Ox+i}")
        a(f"v_add_f32 v{vT}, v{vT}, v{Ox+8}")
        a(f"s_mov_b32 s26, 0x21800000")
        a(f"s_mov_b32 s27, 0x5d800000")
        a(f"v_cmp_le_f32 s[28:29], s26, v{vT}")
        a(f"v_cmp_ge_f32 vcc, s27, v{vT}")
        a("s_nop 1")
        a("s_and_b64 s[28:29], s[28:29], vcc")
        a("s_cmp_eq_u64 s[28:29], exec")
        a(f"s_cbranch_scc0 {name}_slow{x}")
        a(f"{name}_fin{x}:")
        a(f"v_rcp_f32 v{vT}, v{Ox+8}")
        a(f"s_add_u32 s24, s{sQt}, {x}")
        a(f"s_mul_i32 s24, s24, 144")
        a(f"s_add_u32 s24, s24, s{sHead}")
        a("s_lshl_b32 s24, s24, 10")
        a(f"s_add_u32 s24, s24, {WS_A2}")
        for i in range(8): a(f"v_mul_f32 v{Ox+i}, v{Ox+i}, v{vT}")
        for i in range(4): a(f"v_cvt_pk_bf16_f32 v{Px+i}, v{Ox+2*i}, v{Ox+2*i+1}")
        a(f"buffer_store_dwordx4 {vr(Px,4)}, v{vL16}, s[8:11], s24 offen{SC}")
    a(f"{name}_done:")
    ST.dump(sW, None)
    a(f"{name}_end:")
    a("s_endpgm")
    a(f"{name}_sync:")
    a(f"s_cmp_eq_u32 s{sI}, 1")
    a(f"s_cbranch_scc1 {name}_syncret")
    a("s_barrier")
    a(f"s_branch {name}_syncret")
    for x in range(2):
        Ox, Px, Qx, S0 = O[x], P[x], Q[x], S[x][0]
        a(f"{name}_slow{x}:")
        a(f"v_mov_b32 v{vK}, v{vL16}")
        a(f"v_mov_b32 v{vT}, 0xff800000")
        a(f"s_mov_b32 s{sI}, 0")
        a(f"{name}_slow{x}a:")
        a(f"ds_read_b128 {vr(KB[0],4)}, v{vK}")
        a(f"v_add_u32 v{vK}, 1024, v{vK}")
        a("s_waitcnt lgkmcnt(0)")
        a(f"{MF} {vr(S0,16)}, {vr(KB[0],4)}, {vr(Qx,4)}, 0")
        a("s_nop 15")
        for i in range(8): a(f"v_max3_f32 v{vT}, v{vT}, v{S0+2*i}, v{S0+2*i+1}")
        a(f"s_add_u32 s{sI}, s{sI}, 1")
        a(f"s_cmp_lt_u32 s{sI}, 64")
        a(f"s_cbranch_scc1 {name}_slow{x}a")
        a(f"v_mov_b32 v{vT2}, v{vT}")
        a("s_nop 1")
        a(f"v_permlane32_swap_b32 v{vT}, v{vT2}")
        a("s_nop 1")
        a(f"v_max_f32 v{vT}, v{vT}, v{vT2}")
        for i in range(16): a(f"v_sub_f32 v{C+i}, 0, v{vT}")
        for i in range(16): a(f"v_mov_b32 v{Ox+i}, 0")
        a(f"v_mov_b32 v{vK}, v{vL16}")
        a(f"v_lshlrev_b32 v{vT2}, 3, v{vInc}")
        a(f"v_sub_u32 v{vT2}, v{vV}, v{vT2}")
        a(f"v_lshrrev_b32 v{vSt}, 3, v{vInc}")
        a(f"s_mov_b32 s{sI}, 0")
        a(f"{name}_slow{x}b:")
        a(f"ds_read_b128 {vr(KB[0],4)}, v{vK}")
        a(f"ds_read_b128 {vr(VB[0],4)}, v{vT2}")
        a(f"ds_read_b128 {vr(VB[0]+4,4)}, v{vT2} offset:512")
        a(f"v_add_u32 v{vK}, 1024, v{vK}")
        a(f"v_add_u32 v{vT2}, v{vSt}, v{vT2}")
        a("s_waitcnt lgkmcnt(0)")
        a(f"{MF} {vr(S0,16)}, {vr(KB[0],4)}, {vr(Qx,4)}, {vr(C,16)}")
        a("s_nop 15")
        for i in range(16): a(f"v_exp_f32 v{S0+i}, v{S0+i}")
        a("s_nop 0")
        for i in range(8): a(f"v_cvt_pk_bf16_f32 v{Px+i}, v{S0+2*i}, v{S0+2*i+1}")
        a("s_nop 1")
        a(f"{MF} {vr(Ox,16)}, {vr(VB[0],4)}, {vr(Px,4)}, {vr(Ox,16)}")
        a(f"{MF} {vr(Ox,16)}, {vr(VB[0]+4,4)}, {vr(Px+4,4)}, {vr(Ox,16)}")
        a(f"s_add_u32 s{sI}, s{sI}, 1")
        a(f"s_cmp_lt_u32 s{sI}, 64")
        a(f"s_cbranch_scc1 {name}_slow{x}b")
        a("s_nop 15")
        a(f"s_branch {name}_fin{x}")
    a(f"{name}_G:")
    sU = 30
    ACC, RING, R = 16, 80, 4
    vT0, vT1, vW0, vW1, vA = 2, 3, 4, 5, 6
    a(f"s_sub_u32 s{sU}, s{sW}, 4")
    a(f"s_lshl_b32 s{sL}, s{sU}, 11")
    a(f"s_add_u32 s{sL}, s{sL}, 8192")
    a(f"s_add_u32 s{sG}, s23, s{sL}")
    a(f"s_add_u32 s{sG}, s{sG}, {WS_K}")
    a("s_waitcnt lgkmcnt(0)")
    srd(a, 8, 4, WS_SIZE)
    def stage():
        a(f"s_mov_b32 m0, s{sL}")
        a(f"s_add_u32 s25, s{sG}, {WS_V-WS_K}")
        a(f"buffer_load_dwordx4 v{vL16}, s[8:11], s{sG} offen lds")
        a(f"buffer_load_dwordx4 v{vL16}, s[8:11], s{sG} offen offset:1024 lds")
        a(f"s_add_u32 m0, s{sL}, {LDS_V}")
        a(f"s_add_u32 s{sL}, s{sL}, 8192")
        a(f"buffer_load_dwordx4 v{vL16}, s[8:11], s25 offen lds")
        a(f"buffer_load_dwordx4 v{vL16}, s[8:11], s25 offen offset:1024 lds")
        a(f"s_add_u32 s{sG}, s{sG}, 8192")
    stage()
    a(f"v_mov_b32 v8, {LDS_FLAG}")
    a(f"v_mov_b32 v9, 0")
    a(f"ds_write_b32 v8, v9")
    a("s_waitcnt lgkmcnt(0)")
    a("s_barrier          ; Ba")
    stage()
    a("s_waitcnt vmcnt(0)")
    a("s_barrier          ; Bb")
    a("s_mov_b32 s28, 5")
    a(f"{name}_Gst:")
    stage()
    a("s_sub_u32 s28, s28, 1")
    a("s_cmp_lg_u32 s28, 0")
    a(f"s_cbranch_scc1 {name}_Gst")
    a(f"s_mul_i32 s22, s{sHead}, {2*144*1024}")
    a(f"s_add_u32 s22, s22, {WS_A2}")
    a(f"s_mul_i32 s23, s27, {2*144*1024}")
    a(f"s_add_u32 s23, s23, {WS_WT}")
    a(f"s_mul_i32 s24, s{sU}, {28*1024}")
    a(f"s_add_u32 s24, s24, {32*1024}")
    a(f"v_add_u32 v{vT0}, s22, v{vL16}")
    a(f"v_add_u32 v{vW0}, s23, v{vL16}")
    a(f"v_add_u32 v{vT1}, {144*1024}, v{vT0}")
    a(f"v_add_u32 v{vW1}, {144*1024}, v{vW0}")
    if exp.get("gprio", 1): a(f"s_setprio {exp.get('gprio', 1)}")
    ST(1)
    def loads(slot):
        b = RING + slot*16
        for i, v in enumerate((vT0, vT1, vW0, vW1)):
            a(f"buffer_load_dwordx4 {vr(b+4*i,4)}, v{v}, s[8:11], s24 offen offset:{slot*1024}")
    gap = exp.get("ggap", 1)
    def mfmas(slot, first=False):
        b = RING + slot*16
        for aa in range(2):
            for bb in range(2):
                d = ACC + (aa*2+bb)*16
                a(f"v_mfma_f32_32x32x16_bf16 {vr(d,16)}, {vr(b+8+4*aa,4)}, {vr(b+4*bb,4)}, {vr(d,16)}")
                if gap == 1: a("s_nop 15")
                if gap == 2: a("s_sleep 1")
                if gap == 3: a("s_sleep 2")
    if not exp.get("nogemm"):
        for i in range(R): loads(i)
        a("s_add_u32 s24, s24, 4096")
        for i in range(64): a(f"v_mov_b32 v{ACC+i}, 0")
        a("s_mov_b32 s28, 6")
        a(f"{name}_Gl:")
        for i in range(R):
            a(f"s_waitcnt vmcnt({4*(R-1)})")
            mfmas(i)
            loads(i)
        a("s_add_u32 s24, s24, 4096")
        a("s_cmp_lg_u32 s28, 6")
        a(f"s_cbranch_scc1 {name}_Gnb")
        a("s_barrier          ; Bc")
        a(f"{name}_Gnb:")
        a("s_sub_u32 s28, s28, 1")
        a("s_cmp_lg_u32 s28, 0")
        a(f"s_cbranch_scc1 {name}_Gl")
        for i in range(R):
            a(f"s_waitcnt vmcnt({4*(R-1-i)})")
            mfmas(i)
    else:
        a("s_waitcnt vmcnt(0)")
        a("s_barrier          ; Bc")
        for i in range(64): a(f"v_mov_b32 v{ACC+i}, 0")
    ST(2)
    a(f"v_add_u32 v{vA}, {LDS_RED}, v{vL16}")
    a(f"v_mov_b32 v8, {LDS_FLAG}")
    a(f"s_cmp_eq_u32 s{sU}, 0")
    a(f"s_cbranch_scc1 {name}_Gw")
    a(f"{name}_Gspin:")
    a("ds_read_b32 v9, v8")
    a("s_waitcnt lgkmcnt(0)")
    a(f"v_readfirstlane_b32 s28, v9")
    a("s_nop 1")
    a(f"s_cmp_eq_u32 s28, s{sU}")
    a(f"s_cbranch_scc1 {name}_Ggo")
    a("s_sleep 8")
    a(f"s_branch {name}_Gspin")
    a(f"{name}_Ggo:")
    for half in range(2):
        for q in range(8): a(f"ds_read_b128 {vr(RING+4*q,4)}, v{vA} offset:{(half*8+q)*1024}")
        for q in range(8):
            a(f"s_waitcnt lgkmcnt({7-q})")
            for i in range(4): a(f"v_add_f32 v{ACC+32*half+4*q+i}, v{ACC+32*half+4*q+i}, v{RING+4*q+i}")
    a(f"s_cmp_eq_u32 s{sU}, 3")
    a(f"s_cbranch_scc1 {name}_Gout")
    a(f"{name}_Gw:")
    a("s_nop 7")
    for q in range(16): a(f"ds_write_b128 v{vA}, {vr(ACC+4*q,4)} offset:{q*1024}")
    a(f"s_add_u32 s28, s{sU}, 1")
    a(f"v_mov_b32 v9, s28")
    a("s_waitcnt lgkmcnt(0)")
    a("ds_write_b32 v8, v9")
    a("s_waitcnt lgkmcnt(0)")
    a(f"s_branch {name}_done")
    a(f"{name}_Gout:")
    a(f"s_lshl_b32 s22, s{sHead}, 3")
    a("s_add_u32 s22, s22, s27")
    a("s_lshl_b32 s22, s22, 14")
    a(f"s_add_u32 s22, s22, {WS_PART}")
    for q in range(16):
        if q % 4 == 0 and q: a("s_add_u32 s22, s22, 4096")
        a(f"buffer_store_dwordx4 {vr(ACC+4*q,4)}, v{vL16}, s[8:11], s22 offen offset:{(q%4)*1024}{SC}")
    a(f"s_branch {name}_done")
    kernel_desc(a, name, 208 if stamps else 200)

if __name__ == "__main__":
    a = Asm()
    a('.amdgcn_target "amdgcn-amd-amdhsa--gfx950"')
    gen_k2(a)
    txt = a.text()
    ins, labels = parse_kernel(txt, "attn_kernel")
    for (wave, safe) in ((3, 1), (3, 0), (4, 1), (5, 1), (7, 1)):
        tr = trace(ins, labels, {2: 5, "wave": wave, "$safe": safe, "$flag": max(wave-4, 0)})
        pr = check_trace(tr)
        print("wave", wave, "safe", safe, "trace len", len(tr), "barriers", sum(1 for I in tr if I.op == "s_barrier"), "problems", len(pr))
        for p in pr[:20]: print("  ", p)
    open("k2c.s", "w").write(txt)
```

```python
from common import *
LDS_K, LDS_V, LDS_ONES = 0, 65536, 131072
K2_LDS = 141312
NGW = 4
def gen_k2(a, name="attn_kernel", stamps=False, exp={}):
    kernel_header(a, name)
    Q, KB, VB = [8, 12], [16, 20], [24, 32]
    P, S, O, C = [40, 48], [[56, 72], [88, 104]], [120, 136], 152
    vL16, vK, vV, vInc, vT, vT2 = 1, 2, 3, 4, 5, 6
    sW, sHead, sQt, sI, sG, sL = 16, 17, 18, 20, 21, 22
    SC = " sc1" if exp.get("sc1", 1) else ""
    a("s_cmp_ge_u32 s2, 256")
    a(f"s_cbranch_scc1 {name}_end")
    a(f"s_load_dwordx2 s[4:5], s[0:1], {ARG_WS}")
    a(f"s_load_dwordx2 s[6:7], s[0:1], {ARG_X}")
    a(f"s_load_dwordx2 s[32:33], s[0:1], {ARG_OUT}")
    ST = Stamper(a, stamps, 230, 0)
    ST.init()
    a(f"v_lshrrev_b32 v{vT}, 6, v0")
    a(f"v_and_b32 v{vL16}, 63, v0")
    a(f"v_readfirstlane_b32 s{sW}, v{vT}")
    a(f"v_lshlrev_b32 v{vL16}, 4, v{vL16}")
    a("s_and_b32 s17, s2, 7")
    a("s_lshr_b32 s18, s2, 3")
    a("s_and_b32 s19, s18, 3")
    a("s_lshl_b32 s26, s17, 2")
    a(f"s_add_u32 s{sHead}, s26, s19")
    a("s_lshr_b32 s27, s18, 2")
    a(f"s_lshl_b32 s23, s{sHead}, 16")
    a(f"s_cmp_ge_u32 s{sW}, 4")
    a(f"s_cbranch_scc1 {name}_G")
    MF = "v_mfma_f32_32x32x16_bf16"
    a("s_lshl_b32 s18, s27, 3")
    a(f"s_lshl_b32 s19, s{sW}, 1")
    a(f"s_add_u32 s{sQt}, s18, s19")
    a(f"s_lshl_b32 s24, s{sQt}, 10")
    a("s_add_u32 s24, s24, s23")
    a(f"s_lshl_b32 s{sL}, s{sW}, 11")
    a(f"s_add_u32 s{sG}, s23, s{sL}")
    a(f"s_add_u32 s{sG}, s{sG}, {WS_K}")
    a("s_waitcnt lgkmcnt(0)")
    srd(a, 8, 4, WS_SIZE)
    a(f"s_mov_b32 m0, s{sL}")
    a(f"s_add_u32 s25, s{sG}, {WS_V-WS_K}")
    a(f"buffer_load_dwordx4 v{vL16}, s[8:11], s{sG} offen lds")
    a(f"buffer_load_dwordx4 v{vL16}, s[8:11], s{sG} offen offset:1024 lds")
    a(f"s_add_u32 m0, s{sL}, {LDS_V}")
    a(f"buffer_load_dwordx4 {vr(Q[0],4)}, v{vL16}, s[8:11], s24 offen")
    a(f"buffer_load_dwordx4 v{vL16}, s[8:11], s25 offen lds")
    a(f"buffer_load_dwordx4 v{vL16}, s[8:11], s25 offen offset:1024 lds")
    a(f"buffer_load_dwordx4 {vr(Q[1],4)}, v{vL16}, s[8:11], s24 offen offset:1024")
    a(f"v_lshlrev_b32 v{vT}, 4, v0")
    a(f"v_add_u32 v{vT}, {LDS_ONES}, v{vT}")
    for i in range(4):
        a(f"v_mov_b32 v{P[0]+i}, 0x3f803f80")
    for off in (0, 4096, 6144):
        a(f"ds_write_b128 v{vT}, {vr(P[0],4)} offset:{off}")
    a(f"v_mov_b32 v{vK}, v{vL16}")
    a(f"v_and_b32 v{vT}, 15, v0")
    a(f"v_lshlrev_b32 v{vT}, 4, v{vT}")
    a(f"v_and_b32 v{vT2}, 32, v0")
    a(f"v_lshlrev_b32 v{vT2}, 3, v{vT2}")
    a(f"v_add_u32 v{vT}, v{vT}, v{vT2}")
    a(f"v_add_u32 v{vV}, {LDS_V}, v{vT}")
    a(f"v_and_b32 v{vT}, 31, v0")
    a(f"v_subrev_u32 v{vT2}, 20, v{vT}")
    a(f"v_cmp_gt_u32 vcc, 8, v{vT2}")
    a(f"v_mov_b32 v{vT2}, {LDS_ONES}")
    a(f"v_mov_b32 v{vInc}, {LDS_ONES+64}")
    a(f"v_cndmask_b32 v{vT2}, v{vT2}, v{vInc}, vcc")
    a(f"v_cmp_gt_u32 vcc, 16, v{vT}")
    a(f"v_mov_b32 v{vInc}, 0")
    a(f"v_mov_b32 v{vT}, 8192")
    a(f"v_cndmask_b32 v{vV}, v{vT2}, v{vV}, vcc")
    a(f"v_cndmask_b32 v{vInc}, v{vInc}, v{vT}, vcc")
    for i in range(32):
        a(f"v_mov_b32 v{O[0]+i}, 0")
    for i in range(4):
        a(f"v_mov_b32 v{P[1]+4+i}, 0")
        a(f"v_mov_b32 v{VB[1]+4+i}, 0")
    a("s_waitcnt vmcnt(0) lgkmcnt(0)")
    a("s_barrier")
    a(f"ds_read_b128 {vr(KB[0],4)}, v{vK}")
    a(f"ds_read_b128 {vr(KB[1],4)}, v{vK} offset:1024")
    a(f"ds_read_b128 {vr(VB[0],4)}, v{vV}")
    a(f"ds_read_b128 {vr(VB[0]+4,4)}, v{vV} offset:512")
    a(f"s_mov_b32 s{sI}, 0")
    a("s_waitcnt lgkmcnt(3)")
    a(f"{MF} {vr(S[0][0],16)}, {vr(KB[0],4)}, {vr(Q[0],4)}, 0")
    a(f"{MF} {vr(S[1][0],16)}, {vr(KB[0],4)}, {vr(Q[1],4)}, 0")
    a("s_nop 15")
    ST(1)
    if exp.get("aprio"): a(f"s_setprio {exp['aprio']}")
    a(".p2align 6")
    a(f"{name}_loop:")
    for p in range(8):
        cur, nxt = p & 1, (p & 1) ^ 1
        E = lambda x, lo, hi: [f"v_exp_f32 v{S[x][cur]+i}, v{S[x][cur]+i}" for i in range(lo, hi)]
        Cv = lambda x, lo, hi: [f"v_cvt_pk_bf16_f32 v{P[x]+i}, v{S[x][cur]+2*i}, v{S[x][cur]+2*i+1}" for i in range(lo, hi)]
        QK = lambda x: [f"{MF} {vr(S[x][nxt],16)}, {vr(KB[nxt],4)}, {vr(Q[x],4)}, 0"]
        PV0 = lambda x: [f"{MF} {vr(O[x],16)}, {vr(VB[cur],4)}, {vr(P[x],4)}, {vr(O[x],16)}"]
        PV1 = lambda x: [f"{MF} {vr(O[x],16)}, {vr(VB[cur]+4,4)}, {vr(P[x]+4,4)}, {vr(O[x],16)}"]
        PV1d = [f"{MF} {vr(O[1],16)}, {vr(VB[nxt]+4,4)}, {vr(P[1]+4,4)}, {vr(O[1],16)}"]
        RK = [f"ds_read_b128 {vr(KB[cur],4)}, v{vK} offset:{(p+2)*1024}"]
        RV0 = [f"ds_read_b128 {vr(VB[nxt],4)}, v{vV} offset:{(p+1)*1024}"]
        RV1 = [f"ds_read_b128 {vr(VB[nxt]+4,4)}, v{vV} offset:{(p+1)*1024+512}"]
        if exp.get("noread"): RK = RV0 = RV1 = []
        a.extend(["s_waitcnt lgkmcnt(0)"] + QK(0))
        if p == 6:
            a(f"s_cmp_lt_u32 s{sI}, 3")
            a(f"s_cbranch_scc1 {name}_sync")
            a(f"{name}_syncret:")
        order = exp.get("order", 0)
        if order == 0:
            a.extend(RK + E(0,0,4) + PV1d + RV0 + RV1 + E(0,4,8) + Cv(0,0,4) + QK(1) + E(0,8,12) + PV0(0) + E(0,12,16) + Cv(0,4,8)
                     + E(1,0,4) + PV1(0) + E(1,4,8) + Cv(1,0,4) + E(1,8,12) + PV0(1) + E(1,12,16) + Cv(1,4,8))
        elif order == 1:
            a.extend(RK + E(0,0,4) + PV1d + RV1 + E(0,4,8) + Cv(0,0,4) + QK(1) + RV0 + E(0,8,12) + PV0(0) + E(0,12,16) + Cv(0,4,8)
                     + E(1,0,4) + PV1(0) + E(1,4,8) + Cv(1,0,4) + E(1,8,12) + PV0(1) + E(1,12,16) + Cv(1,4,8))
    if stamps and exp.get("itstamp"):
        a(f"s_add_u32 m0, s{sI}, 8")
        a("s_memtime s[84:85]")
        a("s_waitcnt lgkmcnt(0)")
        a("s_nop 3")
        a("v_writelane_b32 v230, s84, m0")
    a(f"v_add_u32 v{vK}, 8192, v{vK}")
    a(f"v_add_u32 v{vV}, v{vInc}, v{vV}")
    a(f"s_add_u32 s{sI}, s{sI}, 1")
    a(f"s_cmp_lt_u32 s{sI}, 8")
    a(f"s_cbranch_scc1 {name}_loop")
    a("s_waitcnt lgkmcnt(0)")
    a(f"{MF} {vr(O[1],16)}, {vr(VB[1]+4,4)}, {vr(P[1]+4,4)}, {vr(O[1],16)}")
    a("s_nop 15")
    ST(2)
    vSt = 7
    for x in range(2):
        Ox, Px, Qx = O[x], P[x], Q[x]
        a(f"v_mul_f32 v{vT}, 0, v{Ox}")
        for i in range(1, 8): a(f"v_fmac_f32 v{vT}, 0, v{Ox+i}")
        a(f"v_add_f32 v{vT}, v{vT}, v{Ox+8}")
        a(f"s_mov_b32 s26, 0x21800000")
        a(f"s_mov_b32 s27, 0x5d800000")
        a(f"v_cmp_le_f32 s[28:29], s26, v{vT}")
        a(f"v_cmp_ge_f32 vcc, s27, v{vT}")
        a("s_nop 1")
        a("s_and_b64 s[28:29], s[28:29], vcc")
        a("s_cmp_eq_u64 s[28:29], exec")
        a(f"s_cbranch_scc0 {name}_slow{x}")
        a(f"{name}_fin{x}:")
        a(f"v_rcp_f32 v{vT}, v{Ox+8}")
        a(f"s_add_u32 s24, s{sQt}, {x}")
        a(f"s_mul_i32 s24, s24, 144")
        a(f"s_add_u32 s24, s24, s{sHead}")
        a("s_lshl_b32 s24, s24, 10")
        a(f"s_add_u32 s24, s24, {WS_A2}")
        for i in range(8): a(f"v_mul_f32 v{Ox+i}, v{Ox+i}, v{vT}")
        for i in range(4): a(f"v_cvt_pk_bf16_f32 v{Px+i}, v{Ox+2*i}, v{Ox+2*i+1}")
        a(f"v_add_u32 v{vT2}, s24, v{vL16}")
        a(f"global_store_dwordx4 v{vT2}, {vr(Px,4)}, s[4:5] sc1")
    a(f"s_lshr_b32 s24, s{sQt}, 1")
    a("s_lshl_b32 s24, s24, 7")
    a(f"s_add_u32 s24, s24, {WS_CNT}")
    a(f"v_mov_b32 v{vT}, s24")
    a(f"v_mov_b32 v{vT2}, 1")
    a("s_waitcnt vmcnt(0)")
    a("s_mov_b64 exec, 1")
    a(f"global_atomic_add v{vT}, v{vT2}, s[4:5] sc1")
    a("s_mov_b64 exec, -1")
    ST(3)
    a("s_barrier")
    a(f"{name}_done:")
    ST.dump(sW, None)
    a(f"{name}_end:")
    a("s_endpgm")
    a(f"{name}_sync:")
    a(f"s_cmp_eq_u32 s{sI}, 1")
    a(f"s_cbranch_scc1 {name}_syncret")
    a("s_barrier")
    a(f"s_branch {name}_syncret")
    for x in range(2):
        Ox, Px, Qx, S0 = O[x], P[x], Q[x], S[x][0]
        a(f"{name}_slow{x}:")
        a(f"v_mov_b32 v{vK}, v{vL16}")
        a(f"v_mov_b32 v{vT}, 0xff800000")
        a(f"s_mov_b32 s{sI}, 0")
        a(f"{name}_slow{x}a:")
        a(f"ds_read_b128 {vr(KB[0],4)}, v{vK}")
        a(f"v_add_u32 v{vK}, 1024, v{vK}")
        a("s_waitcnt lgkmcnt(0)")
        a(f"{MF} {vr(S0,16)}, {vr(KB[0],4)}, {vr(Qx,4)}, 0")
        a("s_nop 15")
        for i in range(8): a(f"v_max3_f32 v{vT}, v{vT}, v{S0+2*i}, v{S0+2*i+1}")
        a(f"s_add_u32 s{sI}, s{sI}, 1")
        a(f"s_cmp_lt_u32 s{sI}, 64")
        a(f"s_cbranch_scc1 {name}_slow{x}a")
        a(f"v_mov_b32 v{vT2}, v{vT}")
        a("s_nop 1")
        a(f"v_permlane32_swap_b32 v{vT}, v{vT2}")
        a("s_nop 1")
        a(f"v_max_f32 v{vT}, v{vT}, v{vT2}")
        for i in range(16): a(f"v_sub_f32 v{C+i}, 0, v{vT}")
        for i in range(16): a(f"v_mov_b32 v{Ox+i}, 0")
        a(f"v_mov_b32 v{vK}, v{vL16}")
        a(f"v_lshlrev_b32 v{vT2}, 3, v{vInc}")
        a(f"v_sub_u32 v{vT2}, v{vV}, v{vT2}")
        a(f"v_lshrrev_b32 v{vSt}, 3, v{vInc}")
        a(f"s_mov_b32 s{sI}, 0")
        a(f"{name}_slow{x}b:")
        a(f"ds_read_b128 {vr(KB[0],4)}, v{vK}")
        a(f"ds_read_b128 {vr(VB[0],4)}, v{vT2}")
        a(f"ds_read_b128 {vr(VB[0]+4,4)}, v{vT2} offset:512")
        a(f"v_add_u32 v{vK}, 1024, v{vK}")
        a(f"v_add_u32 v{vT2}, v{vSt}, v{vT2}")
        a("s_waitcnt lgkmcnt(0)")
        a(f"{MF} {vr(S0,16)}, {vr(KB[0],4)}, {vr(Qx,4)}, {vr(C,16)}")
        a("s_nop 15")
        for i in range(16): a(f"v_exp_f32 v{S0+i}, v{S0+i}")
        a("s_nop 0")
        for i in range(8): a(f"v_cvt_pk_bf16_f32 v{Px+i}, v{S0+2*i}, v{S0+2*i+1}")
        a("s_nop 1")
        a(f"{MF} {vr(Ox,16)}, {vr(VB[0],4)}, {vr(Px,4)}, {vr(Ox,16)}")
        a(f"{MF} {vr(Ox,16)}, {vr(VB[0]+4,4)}, {vr(Px+4,4)}, {vr(Ox,16)}")
        a(f"s_add_u32 s{sI}, s{sI}, 1")
        a(f"s_cmp_lt_u32 s{sI}, 64")
        a(f"s_cbranch_scc1 {name}_slow{x}b")
        a("s_nop 15")
        a(f"s_branch {name}_fin{x}")
    a(f"{name}_G:")
    sU = 30
    ACC, RING, R = 16, 80, 4
    vT0, vT1, vW0, vW1, vA = 2, 3, 4, 5, 6
    a(f"s_sub_u32 s{sU}, s{sW}, 4")
    a(f"s_lshl_b32 s{sL}, s{sU}, 11")
    a(f"s_add_u32 s{sL}, s{sL}, 8192")
    a(f"s_add_u32 s{sG}, s23, s{sL}")
    a(f"s_add_u32 s{sG}, s{sG}, {WS_K}")
    a("s_waitcnt lgkmcnt(0)")
    srd(a, 8, 4, WS_SIZE)
    def stage():
        a(f"s_mov_b32 m0, s{sL}")
        a(f"s_add_u32 s25, s{sG}, {WS_V-WS_K}")
        a(f"buffer_load_dwordx4 v{vL16}, s[8:11], s{sG} offen lds")
        a(f"buffer_load_dwordx4 v{vL16}, s[8:11], s{sG} offen offset:1024 lds")
        a(f"s_add_u32 m0, s{sL}, {LDS_V}")
        a(f"s_add_u32 s{sL}, s{sL}, 8192")
        a(f"buffer_load_dwordx4 v{vL16}, s[8:11], s25 offen lds")
        a(f"buffer_load_dwordx4 v{vL16}, s[8:11], s25 offen offset:1024 lds")
        a(f"s_add_u32 s{sG}, s{sG}, 8192")
    stage()
    a("s_barrier          ; Ba")
    stage()
    a("s_waitcnt vmcnt(0)")
    a("s_barrier          ; Bb")
    a("s_mov_b32 s28, 5")
    a(f"{name}_Gst:")
    stage()
    a("s_sub_u32 s28, s28, 1")
    a("s_cmp_lg_u32 s28, 0")
    a(f"s_cbranch_scc1 {name}_Gst")
    a(f"s_mul_i32 s22, s{sHead}, {2*144*1024}")
    a(f"s_add_u32 s22, s22, {WS_A2}")
    a(f"s_mul_i32 s23, s27, {2*144*1024}")
    a(f"s_add_u32 s23, s23, {WS_WT}")
    a(f"s_mul_i32 s24, s{sU}, {28*1024}")
    a(f"s_add_u32 s24, s24, {32*1024}")
    a(f"v_add_u32 v{vT0}, s22, v{vL16}")
    a(f"v_add_u32 v{vW0}, s23, v{vL16}")
    a(f"v_add_u32 v{vT1}, {144*1024}, v{vT0}")
    a(f"v_add_u32 v{vW1}, {144*1024}, v{vW0}")
    if exp.get("gprio", 0): a(f"s_setprio {exp.get('gprio', 0)}")
    ST(1)
    def loads(slot):
        b = RING + slot*16
        for i, v in enumerate((vT0, vT1, vW0, vW1)):
            a(f"buffer_load_dwordx4 {vr(b+4*i,4)}, v{v}, s[8:11], s24 offen offset:{slot*1024}")
    gap = exp.get("ggap", 0)
    def mfmas(slot, first=False):
        b = RING + slot*16
        for aa in range(2):
            for bb in range(2):
                d = ACC + (aa*2+bb)*16
                a(f"v_mfma_f32_32x32x16_bf16 {vr(d,16)}, {vr(b+8+4*aa,4)}, {vr(b+4*bb,4)}, {'0' if first else vr(d,16)}")
                if gap == 1: a("s_nop 15")
                if gap == 2: a("s_sleep 1")
    for i in range(R): loads(i)
    a("s_add_u32 s24, s24, 4096")
    for i in range(R):
        a(f"s_waitcnt vmcnt({4*(R-1)})")
        mfmas(i, first=(i == 0))
        loads(i)
    a("s_add_u32 s24, s24, 4096")
    a("s_barrier          ; Bc")
    a("s_mov_b32 s28, 5")
    a(f"{name}_Gl:")
    for i in range(R):
        a(f"s_waitcnt vmcnt({4*(R-1)})")
        mfmas(i)
        loads(i)
    a("s_add_u32 s24, s24, 4096")
    a("s_sub_u32 s28, s28, 1")
    a("s_cmp_lg_u32 s28, 0")
    a(f"s_cbranch_scc1 {name}_Gl")
    for i in range(R):
        a(f"s_waitcnt vmcnt({4*(R-1-i)})")
        mfmas(i)
    ST(2)
    WO, OF, XR = 80, 144, 208
    a(f"s_lshl_b32 s24, s{sU}, 13")
    for i in range(8):
        for j, v in enumerate((vW0, vW1)):
            a(f"buffer_load_dwordx4 {vr(WO+8*i+4*j,4)}, v{v}, s[8:11], s24 offen offset:{(i%4)*1024}")
        if i == 3: a("s_add_u32 s24, s24, 4096")
    srd(a, 12, 6, 2048*1024)
    srd(a, 36, 32, 2048*1024)
    vX = 7
    a(f"v_and_b32 v8, 255, v0")
    a(f"v_lshrrev_b32 v9, 2, v8")
    a(f"v_lshlrev_b32 v9, 10, v9")
    a(f"v_and_b32 v10, 3, v8")
    a(f"v_lshlrev_b32 v10, 5, v10")
    a(f"v_add_u32 v{vX}, v9, v10")
    a(f"s_lshl_b32 s25, s{sHead}, 16")
    a("s_lshl_b32 s26, s27, 7")
    a("s_add_u32 s25, s25, s26")
    a(f"buffer_load_dwordx4 {vr(XR,4)}, v{vX}, s[12:15], s25 offen")
    a(f"buffer_load_dwordx4 {vr(XR+4,4)}, v{vX}, s[12:15], s25 offen offset:16")
    a(f"s_lshl_b32 s24, s{sU}, 13")
    a(f"v_add_u32 v{vT0}, s24, v{vT0}")
    a(f"v_add_u32 v{vT1}, s24, v{vT1}")
    a("s_barrier          ; B1e")
    ST(3)
    a(f"s_cmp_lg_u32 s{sU}, 0")
    a(f"s_cbranch_scc1 {name}_Gnp")
    a(f"s_lshl_b32 s24, s{sHead}, 7")
    a(f"s_add_u32 s24, s24, {WS_CNT}")
    a(f"v_mov_b32 v8, s24")
    a("s_mov_b32 s28, 0x10000")
    a(f"{name}_Gpoll:")
    a("global_load_dword v9, v8, s[4:5] sc1")
    a("s_waitcnt vmcnt(0)")
    a(f"v_readfirstlane_b32 s29, v9   ; @chk s29=32")
    a("s_nop 1")
    a("s_cmp_ge_u32 s29, 32")
    a(f"s_cbranch_scc1 {name}_Gnp")
    a("s_sub_u32 s28, s28, 1")
    a("s_cmp_lg_u32 s28, 0")
    a(f"s_cbranch_scc1 {name}_Gpoll")
    a(f"{name}_Gnp:")
    a("s_barrier")
    ST(4)
    for i in range(8):
        for j, v in enumerate((vT0, vT1)):
            a(f"global_load_dwordx4 {vr(OF+8*i+4*j,4)}, v{v}, s[4:5] offset:{(i%4)*1024} sc1")
        if i == 3:
            a(f"v_add_u32 v{vT0}, 4096, v{vT0}")
            a(f"v_add_u32 v{vT1}, 4096, v{vT1}")
    for i in range(8):
        a(f"s_waitcnt vmcnt({2*(7-i)})")
        for aa in range(2):
            for bb in range(2):
                d = ACC + (aa*2+bb)*16
                a(f"v_mfma_f32_32x32x16_bf16 {vr(d,16)}, {vr(WO+8*i+4*aa,4)}, {vr(OF+8*i+4*bb,4)}, {vr(d,16)}")
    ST(5)
    a(f"v_and_b32 v8, 31, v0")
    a(f"v_mul_u32_u24 v8, 272, v8")
    a(f"v_and_b32 v9, 32, v0")
    a(f"v_lshrrev_b32 v9, 1, v9")
    a(f"v_add_u32 v8, v8, v9")
    a(f"s_mul_i32 s26, s{sU}, 17408")
    a(f"v_add_u32 v{vA}, s26, v8")
    a("s_nop 7")
    for bb in range(2):
        for aa in range(2):
            d = ACC + (aa*2+bb)*16
            for q in range(4):
                a(f"ds_write_b128 v{vA}, {vr(d+4*q,4)} offset:{bb*32*272 + aa*128 + q*32}")
    a(f"v_and_b32 v10, 255, v0")
    a(f"v_lshrrev_b32 v8, 2, v10")
    a(f"v_mul_u32_u24 v8, 272, v8")
    a(f"v_and_b32 v9, 3, v10")
    a(f"v_lshlrev_b32 v9, 6, v9")
    a(f"v_add_u32 v{vA}, v8, v9")
    a("s_waitcnt lgkmcnt(0)")
    a("s_barrier          ; B3e")
    SS = 80
    for w in range(4):
        for i in range(4):
            a(f"ds_read_b128 {vr(SS+w*16+4*i,4)}, v{vA} offset:{w*17408 + i*16}")
        if w == 1: a("s_waitcnt lgkmcnt(4)")
    for i in range(8):
        a(f"v_lshlrev_b32 v{16+2*i}, 16, v{XR+i}")
        a(f"v_and_b32 v{17+2*i}, 0xffff0000, v{XR+i}")
    for w in range(4):
        a(f"s_waitcnt lgkmcnt({4*(3-w)})")
        for i in range(16): a(f"v_add_f32 v{16+i}, v{16+i}, v{SS+w*16+i}")
    for i in range(8): a(f"v_cvt_pk_bf16_f32 v{32+i}, v{16+2*i}, v{17+2*i}")
    a(f"buffer_store_dwordx4 {vr(32,4)}, v{vX}, s[36:39], s25 offen")
    a(f"buffer_store_dwordx4 {vr(36,4)}, v{vX}, s[36:39], s25 offen offset:16")
    a(f"s_branch {name}_done")
    kernel_desc(a, name, 232 if stamps else 216)

if __name__ == "__main__":
    a = Asm()
    a('.amdgcn_target "amdgcn-amd-amdhsa--gfx950"')
    gen_k2(a)
    txt = a.text()
    ins, labels = parse_kernel(txt, "attn_kernel")
    for (wave, safe) in ((3, 1), (3, 0), (4, 1), (5, 1), (7, 1)):
        tr = trace(ins, labels, {2: 5, "wave": wave, "$safe": safe, "$flag": max(wave-4, 0)})
        pr = check_trace(tr)
        print("wave", wave, "safe", safe, "trace len", len(tr), "barriers", sum(1 for I in tr if I.op == "s_barrier"), "problems", len(pr))
        for p in pr[:20]: print("  ", p)
    open("k2f.s", "w").write(txt)
```

```python
import sys, os
sys.path.insert(0, os.path.dirname(os.path.abspath(__file__)))
from common import *
import k1, k2, k3, k2b, k3b, k1c, k2c, k2f
NAME = "parallel_sum__softmax_full_mha__dense_activation_mish__prompt"
HEADER = """; Kernarg layout for this problem (80 bytes, ptrs only, base s[0:1]):
"""
def build(stamps=False, exp={}):
    a = Asm()
    K1, K2, K3 = "lnqkv_kernel", "attn_kernel", NAME + "_kernel"
    plan = exp.get("plan", "f")
    if plan == "f":
        K2 = NAME + "_kernel"
        launches = [(K1, 384, k1c.K1_LDS), (K2, 512, k2f.K2_LDS)]
    else:
        m2, m3 = (k2b, k3b)
        launches = [(K1, 384, k1c.K1_LDS), (K2, 768, m2.K2_LDS), (K3, 256, m3.K3_LDS)]
    hdr = HEADER
    for (k, b, l) in launches:
        hdr += f"; @launch kernel={k} grid=(256,1,1) block=({b},1,1) lds={l}\n"
    a('.amdgcn_target "amdgcn-amd-amdhsa--gfx950"')
    k1c.gen_k1(a, K1, stamps=stamps, exp=exp.get("k1", {}), next_kernel=(K2 if plan == "f" else None))
    if plan == "f":
        k2f.gen_k2(a, K2, stamps=stamps, exp=exp.get("k2", {}))
    else:
        m2.gen_k2(a, K2, stamps=stamps, exp=exp.get("k2", {}))
        m3.gen_k3(a, K3, stamps=stamps, exp=exp.get("k3", {}))
    return hdr + a.text(), launches
def check(txt):
    bad = 0
    K1, K2, K3 = "lnqkv_kernel", "attn_kernel", NAME + "_kernel"
    ins, labels = parse_kernel(txt, K1)
    seen = set()
    for wg in range(256):
        rb, cs = k1c.wg_decode(wg)
        if cs in seen: continue
        seen.add(cs)
        nbs = set()
        for wave in (0, 4, 5):
            tr = trace(ins, labels, {2: wg, "wave": wave})
            pr = check_trace(tr); bad += len(pr)
            nbs.add(sum(1 for I in tr if I.op == "s_barrier"))
            for p in pr[:4]: print("  K1", wg, wave, p)
        if len(nbs) != 1: print("K1 barrier mismatch", wg, nbs); bad += 1
    fused = ("attn_kernel:" not in txt)
    ins, labels = parse_kernel(txt, K3 if fused else K2)
    g0 = 4 if fused else 8
    nb = {}
    for (wave, safe) in [(3, 1), (3, 0), (g0, 1), (g0+1, 1), (g0+3, 1)]:
        tr = trace(ins, labels, {2: 5, "wave": wave, "$safe": safe, "$flag": max(wave-g0, 0)})
        pr = check_trace(tr); bad += len(pr)
        nb[(wave, safe)] = sum(1 for I in tr if I.op == "s_barrier")
        for p in pr[:8]: print("  K2", p)
    want = {k: nb[(3, 1)] for k in nb}
    if nb != want: print("K2 barrier mismatch", nb); bad += 1
    if not fused:
        ins, labels = parse_kernel(txt, K3)
        for wave in (0, 3):
            pr = check_trace(trace(ins, labels, {2: 5, "wave": wave})); bad += len(pr)
            for p in pr[:8]: print("  K3", p)
    return bad
if __name__ == "__main__":
    txt, _ = build()
    bad = check(txt)
    print("hazard problems:", bad)
    assert bad == 0
    out = "cdna_kernels/" + NAME + ".s"
    open(out, "w").write(txt)
    print("wrote", out, len(txt), "bytes")
```

```python
from common import *
import math, struct
K1_LDS = 163840
def f2u(x): return struct.unpack("<I", struct.pack("<f", x))[0]
LOG2E = 1.4426950408889634
LN2 = 0.6931471805599453
QSCALE = 0.25*LOG2E
F_G0 = [0, 6, 12, 18, 24, 30, 36, 41, 46, 51]
F_N  = [6, 6, 6, 6, 6, 6, 5, 5, 5, 5]
CS_TABLE = list(zip(F_G0, F_N)) + [(8*i, 8) for i in range(6)]
def wg_decode(wg):
    x, idx = wg & 7, wg >> 3
    return 4*(x >> 1) + (idx & 3), 8*(x & 1) + (idx >> 2)

def weave(pre, main, fill, npre, start, end):
    out = list(pre) + fill[:npre]
    rest = fill[npre:]
    n = end - start
    k = 0
    for g, gap in enumerate(main):
        out += gap
        if start <= g < end:
            upto = (len(rest)*(g-start+1) + n - 1)//n
            out += rest[k:upto]; k = upto
    out += rest[k:]
    return out

def gen_k1(a, name, stamps=False, exp={}):
    kernel_header(a, name)
    X = 128; ACC = 16; E = 32; WB = 48; NWB = 8; T = 80
    BIAS = 100; XAUG = 104; SEL = 108; RTOK = 108
    PF = exp.get("pf", 4)
    SC = " sc1" if exp.get("sc1", 1) else ""
    vL16, vWa, vWn, vSt, vR, vB2, vC1 = 1, 2, 3, 4, 5, 6, 7
    t8, t9, t10, t11 = 8, 9, 10, 11
    vXA, vXB = 12, 13
    XNT = " nt" if exp.get("xnt") else ""
    TNT = " nt" if exp.get("tnt") else ""
    sW, sRB, sCS, sG0, sN, sTile = 32, 33, 34, 35, 36, 37
    sJ, sG, sSt, sStN, sRS, sNP, sStep = 38, 39, 40, 41, 44, 45, 46
    SX, SWm, SWS, SB1, SWO, SW2 = 8, 12, 16, 20, 24, 28
    a("s_cmp_ge_u32 s2, 256")
    a(f"s_cbranch_scc1 {name}_end")
    a("s_load_dwordx4 s[48:51], s[0:1], 0")
    a("s_load_dwordx2 s[52:53], s[0:1], 16")
    a("s_load_dwordx4 s[56:59], s[0:1], 32")
    a("s_load_dwordx2 s[60:61], s[0:1], 48")
    a(f"s_load_dwordx2 s[62:63], s[0:1], {ARG_WS}")
    ST = Stamper(a, stamps, 126, 1)
    ST.init()
    a(f"v_lshrrev_b32 v{t8}, 6, v0")
    a(f"v_and_b32 v{vL16}, 63, v0")
    a(f"v_readfirstlane_b32 s{sW}, v{t8}")
    a(f"v_lshlrev_b32 v{vL16}, 4, v{vL16}")
    a("s_lshr_b32 s4, s2, 3")
    a("s_bfe_u32 s3, s2, 0x20001")
    a("s_lshl_b32 s3, s3, 2")
    a("s_and_b32 s5, s4, 3")
    a(f"s_add_u32 s{sRB}, s3, s5")
    a("s_and_b32 s3, s2, 1")
    a("s_lshl_b32 s3, s3, 3")
    a("s_lshr_b32 s4, s4, 2")
    a(f"s_add_u32 s{sCS}, s3, s4")
    a(f"s_mul_i32 s4, s{sCS}, 6")
    a(f"s_sub_u32 s5, s{sCS}, 6")
    a(f"s_cmp_ge_u32 s{sCS}, 6")
    a("s_cselect_b32 s5, s5, 0")
    a("s_cselect_b32 s6, 5, 6")
    a("s_sub_u32 s4, s4, s5")
    a(f"s_sub_u32 s5, s{sCS}, 10")
    a("s_lshl_b32 s5, s5, 3")
    a(f"s_cmp_lt_u32 s{sCS}, 10")
    a(f"s_cselect_b32 s{sG0}, s4, s5")
    a(f"s_cselect_b32 s{sN}, s6, 8")
    a(f"s_movk_i32 s4, 3072")
    a(f"s_cselect_b32 s{sRS}, 3584, s4")
    a(f"s_and_b32 s3, s{sG0}, 1")
    a(f"s_add_u32 s3, s3, s{sN}")
    a("s_add_u32 s3, s3, 1")
    a(f"s_lshr_b32 s{sNP}, s3, 1")
    a(f"s_lshl_b32 s{sTile}, s{sRB}, 2")
    a(f"s_add_u32 s{sTile}, s{sTile}, s{sW}")
    a("s_waitcnt lgkmcnt(0)")
    ST(1)
    a(f"s_cmp_ge_u32 s{sW}, 4")
    a(f"s_cbranch_scc1 {name}_loader")
    srd(a, SX, 48, 2048*1024)
    a(f"v_bfe_u32 v{t8}, v0, 3, 3")
    a(f"v_lshlrev_b32 v{t8}, 10, v{t8}")
    a(f"v_and_b32 v{t9}, 7, v0")
    a(f"v_bfe_u32 v{t10}, v0, 4, 2")
    a(f"v_xor_b32 v{t9}, v{t9}, v{t10}")
    a(f"v_lshlrev_b32 v{t9}, 4, v{t9}")
    a(f"v_add_u32 v{vXA}, v{t8}, v{t9}")
    a(f"v_xor_b32 v{vXB}, 64, v{vXA}")
    a(f"s_lshl_b32 s3, s{sW}, 15")
    a("s_add_u32 s3, s3, 32768")
    a(f"s_lshl_b32 s4, s{sTile}, 15")
    def xchunk():
        for rg in range(4):
            a(f"s_add_u32 m0, s6, {rg*1024}" if rg else "s_mov_b32 m0, s6")
            a(f"s_add_u32 s5, s7, {rg*8192}" if rg else "s_mov_b32 s5, s7")
            a(f"buffer_load_dwordx4 v{vXA if rg % 2 == 0 else vXB}, s[{SX}:{SX+3}], s5 offen{XNT} lds")
        a("s_add_u32 s6, s6, 4096")
        a("s_add_u32 s7, s7, 128")
    a("s_mov_b32 s6, s3")
    a("s_mov_b32 s7, s4")
    NUP = exp.get("nup", 4)
    a(f"s_mov_b32 s42, {NUP}")
    a(f"{name}_xl:")
    xchunk()
    a("s_sub_u32 s42, s42, 1")
    a("s_cmp_lg_u32 s42, 0")
    a(f"s_cbranch_scc1 {name}_xl")
    ST(2)
    srd(a, SWS, 62, WS_SIZE)
    a(f"v_and_b32 v{t8}, 31, v0")
    a(f"v_bfe_u32 v{t9}, v0, 5, 1")
    a(f"v_lshlrev_b32 v{t9}, 3, v{t9}")
    a(f"v_sub_u32 v{t8}, v{t8}, v{t9}")
    a(f"v_mov_b32 v{t10}, 0x3f80")
    a(f"v_mov_b32 v{t11}, 0x3f800000")
    for r in range(4):
        a(f"v_cmp_eq_u32 vcc, {2*r}, v{t8}")
        a(f"v_cmp_eq_u32 s[42:43], {2*r+1}, v{t8}")
        a(f"v_mov_b32 v{SEL+r}, 0")
        a(f"v_mov_b32 v{BIAS+r}, 0")
        a(f"v_cndmask_b32 v{SEL+r}, v{SEL+r}, v{t10}, vcc")
        a(f"v_cndmask_b32 v{SEL+r}, v{SEL+r}, v{t11}, s[42:43]")
        a(f"v_mov_b32 v{XAUG+r}, 0")
    XA = 80
    a(f"v_bfe_u32 v{t8}, v0, 3, 2")
    a(f"v_lshlrev_b32 v{t8}, 10, v{t8}")
    a(f"v_and_b32 v{t9}, 7, v0")
    a(f"v_lshlrev_b32 v{t9}, 7, v{t9}")
    a(f"v_add_u32 v{t8}, v{t8}, v{t9}")
    a(f"v_bfe_u32 v{t9}, v0, 1, 3")
    a(f"v_bfe_u32 v{t10}, v0, 5, 1")
    a(f"v_xor_b32 v{t9}, v{t9}, v{t10}")
    a(f"v_lshlrev_b32 v{t9}, 4, v{t9}")
    a(f"v_add_u32 v{t8}, v{t8}, v{t9}")
    a(f"v_add_u32 v{t8}, s3, v{t8}")
    for j in range(4): a(f"v_xor_b32 v{XA+j}, {32*j}, v{t8}")
    a(f"v_bfe_u32 v{t8}, v0, 5, 1")
    a(f"v_lshlrev_b32 v{t8}, 2, v{t8}")
    a(f"v_bfe_u32 v{t10}, v0, 2, 2")
    a(f"v_add_u32 v{t8}, v{t8}, v{t10}")
    a(f"v_lshlrev_b32 v{t8}, 7, v{t8}")
    a(f"v_bfe_u32 v{t10}, v0, 4, 1")
    a(f"v_lshlrev_b32 v{t10}, 1, v{t10}")
    a(f"v_bfe_u32 v{t11}, v0, 1, 1")
    a(f"v_add_u32 v{t10}, v{t10}, v{t11}")
    a(f"v_bfe_u32 v{t11}, v0, 3, 1")
    a(f"v_lshlrev_b32 v{t11}, 2, v{t11}")
    a(f"v_xor_b32 v{t10}, v{t10}, v{t11}")
    a(f"v_lshlrev_b32 v{t10}, 4, v{t10}")
    a(f"v_add_u32 v{t8}, v{t8}, v{t10}")
    a(f"v_and_b32 v{t10}, 1, v0")
    a(f"v_lshlrev_b32 v{t10}, 3, v{t10}")
    a(f"v_add_u32 v{vWa}, v{t8}, v{t10}")
    a(f"s_and_b32 s42, s{sG0}, 1")
    a("s_lshl_b32 s42, s42, 6")
    a(f"v_xor_b32 v{vWa}, s42, v{vWa}")
    a(f"v_mov_b32 v{t11}, 0x3f803f80")
    for i in range(16): a(f"v_mov_b32 v{ACC+i}, 0")
    def rdchunk(c):
        for j in range(4): a(f"ds_read_b128 {vr(X+4*(4*c+j),4)}, v{XA+j} offset:{4096*c}")
    def dots(c):
        for j in range(4):
            s = 4*c + j
            o = 4*(s & 1)
            a(f"s_waitcnt lgkmcnt({4+3-j if c < 7 else 3-j})") if False else None
            for r in range(4):
                a(f"v_dot2c_f32_bf16 v{ACC+o+r}, v{X+4*s+r}, v{t11}")
                a(f"v_dot2c_f32_bf16 v{ACC+8+o+r}, v{X+4*s+r}, v{X+4*s+r}")
    B0C = exp.get("b0c", 4)
    for c in range(8):
        if c == B0C: a("s_barrier")
        if c + NUP < 8: xchunk()
        issued = min(8, c + NUP + 1)
        a(f"s_waitcnt vmcnt({4*(issued - c - 1)})")
        rdchunk(c)
        if c >= 1:
            a("s_waitcnt lgkmcnt(4)")
            dots(c - 1)
    ST(3)
    a("s_waitcnt lgkmcnt(0)")
    dots(7)
    ST(4)
    a("s_barrier")
    ST(5)
    a("s_nop 1")
    for st in (4, 2, 1):
        for i in range(st):
            a(f"v_add_f32 v{ACC+i}, v{ACC+i}, v{ACC+i+st}")
            a(f"v_add_f32 v{ACC+8+i}, v{ACC+8+i}, v{ACC+8+i+st}")
    a(f"v_mov_b32 v{ACC+1}, v{ACC}")
    a(f"v_mov_b32 v{ACC+9}, v{ACC+8}")
    a("s_nop 1")
    a(f"v_permlane32_swap_b32 v{ACC}, v{ACC+1}")
    a(f"v_permlane32_swap_b32 v{ACC+8}, v{ACC+9}")
    a("s_nop 1")
    a(f"v_add_f32 v{ACC}, v{ACC}, v{ACC+1}")
    a(f"v_add_f32 v{ACC+8}, v{ACC+8}, v{ACC+9}")
    a(f"v_mul_f32 v{ACC}, {f2u(1.0/512):#x}, v{ACC}")
    a(f"v_mul_f32 v{ACC+8}, {f2u(1.0/512):#x}, v{ACC+8}")
    a(f"v_cvt_pk_bf16_f32 v{ACC+1}, v{ACC}, v{ACC}")
    a(f"v_fma_f32 v{t8}, -v{ACC}, v{ACC}, v{ACC+8}")
    a(f"v_lshlrev_b32 v{ACC+1}, 16, v{ACC+1}")
    a(f"v_max_f32 v{t8}, 0, v{t8}")
    NEG = 48
    for i in range(16): a(f"v_sub_f32 v{NEG+i}, 0, v{ACC+1}")
    SQ = t8
    DB = [ACC, E, 64, 80]
    def cM(s): a(f"v_mfma_f32_32x32x16_bf16 {vr(DB[s%4],16)}, {vr(SEL,4)}, {vr(X+4*s,4)}, {vr(NEG,16)}")
    def cC(s):
        for r in range(4): a(f"v_cvt_pk_bf16_f32 v{X+4*s+r}, v{DB[s%4]+2*r}, v{DB[s%4]+2*r+1}")
    a(f"v_cvt_pk_bf16_f32 v{SQ}, v{SQ}, v{SQ}")
    a(f"v_lshlrev_b32 v{SQ}, 16, v{SQ}")
    cM(0)
    a(f"v_add_f32 v{SQ}, {f2u(1e-5):#x}, v{SQ}")
    a(f"v_cvt_pk_bf16_f32 v{SQ}, v{SQ}, v{SQ}")
    a(f"v_lshlrev_b32 v{SQ}, 16, v{SQ}")
    a(f"v_sqrt_f32 v{SQ}, v{SQ}")
    cM(1)
    a(f"v_cvt_pk_bf16_f32 v{SQ+1}, v{SQ}, v{SQ}")
    a(f"v_and_b32 v{SQ+1}, 0xffff, v{SQ+1}")
    a(f"v_lshlrev_b32 v{SQ}, 16, v{SQ+1}")
    a(f"v_rcp_f32 v{vR}, v{SQ}")
    cM(2)
    a(f"v_bfe_u32 v{SQ+2}, v0, 5, 1")
    a(f"v_cmp_eq_u32 vcc, 0, v{SQ+2}")
    a("s_nop 1")
    a(f"v_cndmask_b32 v{XAUG}, 0, v{SQ+1}, vcc")
    for s in range(32):
        if s + 3 < 32: cM(s + 3)
        else: a("s_nop 3")
        cC(s)
    ST(6)
    a(f"s_mov_b32 s{sJ}, 0")
    a(f"s_mov_b32 s{sG}, s{sG0}")
    a(f"s_mov_b32 s{sSt}, 0x7ff00000")
    a(f"s_cmp_lt_u32 s{sCS}, 10")
    a(f"s_cbranch_scc1 {name}_F")
    a(f"s_cmp_lt_u32 s{sCS}, 14")
    a(f"s_cbranch_scc1 {name}_QK")
    a(f"s_branch {name}_V")

    def epilogue(ty):
        L = []
        P = T + 12
        st = lambda r, off: [f"buffer_store_dwordx4 {vr(r,4)}, v{vSt}, s[{SWS}:{SWS+3}], s{sSt} offen" + (f" offset:{off}" if off else "") + SC]
        if ty == "F":
            t, e, w = T, T+4, T+8
            for q in range(4):
                Eq = E + 4*q
                L += [f"v_mul_f32 v{t+i}, v{Eq+i}, v{vR}" for i in range(4)]
                L += [f"v_exp_f32 v{e+i}, v{t+i}" for i in range(4)]
                L += [f"v_add_f32 v{e+i}, 1.0, v{e+i}" for i in range(4)]
                L += [f"v_fma_f32 v{w+i}, v{e+i}, v{e+i}, 1.0" for i in range(4)]
                L += [f"v_rcp_f32 v{w+i}, v{w+i}" for i in range(4)]
                L += [f"v_fmaak_f32 v{w+i}, v{w+i}, v{vC1}, {f2u(LN2):#x}" for i in range(4)]
                L += [f"v_mul_f32 v{t+i}, v{t+i}, v{w+i}" for i in range(4)]
                L += [f"v_cvt_pk_bf16_f32 v{P+2*q+i}, v{t+2*i}, v{t+2*i+1}" for i in range(2)]
                if q == 1: L += st(P, 0)
                if q == 3: L += st(P+4, 1024)
        elif ty == "QK":
            for q in range(4):
                Eq = E + 4*q
                L += [f"v_mul_f32 v{T+i}, v{Eq+i}, v{vC1}" for i in range(4)]
                L += [f"v_cvt_pk_bf16_f32 v{P+2*q+i}, v{T+2*i}, v{T+2*i+1}" for i in range(2)]
                if q == 1: L += st(P, 0)
                if q == 3: L += [f"buffer_store_dwordx4 {vr(P+4,4)}, v{vB2}, s[{SWS}:{SWS+3}], s{sSt} offen{SC}"]
        else:
            for q in range(4):
                Eq = E + 4*q
                L += [f"v_mul_f32 v{T+i}, v{Eq+i}, v{RTOK+4*q+i}" for i in range(4)]
                L += [f"v_cvt_pk_bf16_f32 v{P+2*q+i}, v{T+2*i}, v{T+2*i+1}" for i in range(2)]
                if q == 1: L += st(P, 0)
                if q == 3: L += st(P+4, 512)
        return L

    def group_loop(ty):
        a(f"{name}_{ty}:")
        if ty == "F":
            a(f"v_mul_f32 v{vR}, {f2u(LOG2E):#x}, v{vR}")
            a(f"v_mov_b32 v{vC1}, {f2u(-2.0*struct.unpack('<f', struct.pack('<f', LN2))[0]):#x}")
            a(f"v_mov_b32 v{vSt}, v{vL16}")
            a(f"v_and_b32 v{vB2}, 31, v0")
            a(f"v_lshlrev_b32 v{vB2}, 1, v{vB2}")
            srd(a, SB1, 58, 1792*2)
            a(f"s_mul_i32 s3, s{sTile}, 144")
            a(f"s_lshl_b32 s4, s{sG0}, 1")
            a("s_add_u32 s3, s3, s4")
            a("s_add_u32 s3, s3, 32")
            a("s_lshl_b32 s3, s3, 10")
            a(f"s_add_u32 s{sStN}, s3, {WS_A2}")
            a(f"s_movk_i32 s{sStep}, 2048")
        elif ty == "QK":
            a(f"v_mov_b32 v{vSt}, v{vL16}")
            a(f"v_add_u32 v{vB2}, 65536, v{vL16}")
            a(f"s_cmp_lt_u32 s{sG0}, 16")
            a(f"s_cselect_b32 s3, {f2u(QSCALE):#x}, 1.0")
            a(f"v_mul_f32 v{vC1}, s3, v{vR}")
            a(f"s_lshl_b32 s3, s{sG0}, 17")
            a(f"s_lshl_b32 s4, s{sTile}, 10")
            a(f"s_add_u32 s{sStN}, s3, s4")
            a(f"s_mov_b32 s{sStep}, 131072")
        else:
            a(f"s_lshl_b32 s3, s{sW}, 7")
            a(f"s_add_u32 s3, s3, {150*1024}")
            a(f"v_and_b32 v{t8}, 31, v0")
            a(f"v_lshlrev_b32 v{t8}, 2, v{t8}")
            a(f"v_add_u32 v{t8}, s3, v{t8}")
            a(f"ds_write_b32 v{t8}, v{vR}")
            a(f"v_bfe_u32 v{t9}, v0, 5, 1")
            a(f"v_lshlrev_b32 v{t9}, 4, v{t9}")
            a(f"v_add_u32 v{t9}, s3, v{t9}")
            a("s_waitcnt lgkmcnt(0)")
            for q in range(4): a(f"ds_read_b128 {vr(RTOK+4*q,4)}, v{t9} offset:{32*q}")
            a(f"v_bfe_u32 v{t8}, v0, 4, 1")
            a(f"v_lshlrev_b32 v{t8}, 16, v{t8}")
            a(f"v_bfe_u32 v{t9}, v0, 5, 1")
            a(f"v_lshlrev_b32 v{t9}, 8, v{t9}")
            a(f"v_add_u32 v{t8}, v{t8}, v{t9}")
            a(f"v_and_b32 v{t9}, 15, v0")
            a(f"v_lshlrev_b32 v{t9}, 4, v{t9}")
            a(f"v_add_u32 v{vSt}, v{t8}, v{t9}")
            a(f"s_lshl_b32 s3, s{sG0}, 17")
            a(f"s_lshl_b32 s4, s{sTile}, 10")
            a(f"s_add_u32 s{sStN}, s3, s4")
            a(f"s_mov_b32 s{sStep}, 131072")
            a("s_waitcnt lgkmcnt(0)")
        a("s_barrier")
        ST(7)
        def rdW(s, v):
            b = WB + 4*(s % NWB)
            return [f"ds_read_b64_tr_b16 {vr(b,2)}, v{v} offset:{s*2048}", f"ds_read_b64_tr_b16 {vr(b+2,2)}, v{v} offset:{s*2048+1024}"]
        for s in range(PF): a.extend(rdW(s, vWa))
        a(f"{name}_{ty}_loop:")
        book0 = [f"s_add_u32 s{sJ}, s{sJ}, 1",
                 f"s_bitcmp1_b32 s{sG}, 0",
                 "s_cselect_b32 s3, 0x10040, 64",
                 "s_cselect_b32 s42, 1, 0",
                 f"v_xor_b32 v{vWn}, s3, v{vWa}",
                 f"s_cmp_lt_u32 s{sJ}, s{sN}",
                 "s_cselect_b32 s42, s42, 0"]
        if ty == "F":
            book0 = [f"s_lshl_b32 s4, s{sG}, 6", f"buffer_load_ushort v{BIAS}, v{vB2}, s[{SB1}:{SB1+3}], s4 offen"] + book0
        book1 = [f"s_mov_b32 s{sSt}, s{sStN}", f"s_add_u32 s{sStN}, s{sStN}, s{sStep}", f"s_add_u32 s{sG}, s{sG}, 1"]
        gaps = []
        for s in range(32):
            g = []
            issued = min(32, s + PF)
            if s % 2 == 0:
                g.append(f"s_waitcnt lgkmcnt({2*(issued - (s + 2))})")
            if s == 30: g.append("s_cmp_eq_u32 s42, 0")
            b = WB + 4*(s % NWB)
            last = (s == 31 and ty != "F")
            D = E if last else ACC
            C = "0" if s == 0 else vr(ACC,16)
            if ty == "V": g.append(f"v_mfma_f32_32x32x16_bf16 {vr(D,16)}, {vr(X+4*s,4)}, {vr(b,4)}, {C}")
            else:         g.append(f"v_mfma_f32_32x32x16_bf16 {vr(D,16)}, {vr(b,4)}, {vr(X+4*s,4)}, {C}")
            if s + PF < 32: g += rdW(s + PF, vWa)
            if s == 0: g += book0[:5]
            if s == 1: g += book0[5:]
            if s == 29: g += book1
            if s == 30:
                g += [f"s_cbranch_scc1 {name}_{ty}_nb", "s_barrier", f"{name}_{ty}_nb:"]
                for q in range(PF//2): g += rdW(q, vWn)
            if s == 31:
                if ty == "F":
                    g += ["s_waitcnt vmcnt(2)", f"v_mfma_f32_32x32x16_bf16 {vr(E,16)}, {vr(BIAS,4)}, {vr(XAUG,4)}, {vr(ACC,16)}"]
                for q in range(PF//2, PF): g += rdW(q, vWn)
                g += [f"v_mov_b32 v{vWa}, v{vWn}", f"s_cmp_lt_u32 s{sJ}, s{sN}"]
            gaps.append(g)
        assert PF <= 7
        epi = epilogue(ty)
        if exp.get("nostore"): epi = [x for x in epi if "buffer_store" not in x]
        if exp.get("noepi"): epi = []
        if exp.get("nord"): gaps = [[x for x in g if "ds_read" not in x] for g in gaps]
        a.extend(weave([], gaps, epi, 0, exp.get("wstart", 3), 29))
        if stamps and exp.get("gstamp", 0):
            a(f"s_add_u32 m0, s{sJ}, 7")
            a("s_memtime s[84:85]")
            a("s_waitcnt lgkmcnt(0)")
            a("s_nop 3")
            a("v_writelane_b32 v126, s84, m0")
            a(f"s_cmp_lt_u32 s{sJ}, s{sN}")
        a(f"s_cbranch_scc1 {name}_{ty}_loop")
        a("s_nop 9")
        a.extend(epi)
        a(f"s_branch {name}_fin")
    for ty in ("F", "QK", "V"): group_loop(ty)

    a(f"{name}_loader:")
    sU, sP, sK, sM = 47, 43, 64, 65
    vD = 2
    a(f"s_cmp_lt_u32 s{sCS}, 10")
    a("s_cselect_b32 s4, s56, s50")
    a("s_cselect_b32 s5, s57, s51")
    a(f"s_mov_b32 s{SWm}, s4")
    a(f"s_and_b32 s{SWm+1}, s5, 0xffff")
    a(f"s_lshl_b32 s{SWm+2}, s{sRS}, 9")
    a(f"s_mov_b32 s{SWm+3}, 0x00020000")
    a(f"s_sub_u32 s{sU}, s{sW}, 4")
    a(f"v_bfe_u32 v3, v0, 3, 3")
    a(f"v_mul_lo_u32 v{vD}, s{sRS}, v3")
    a(f"v_and_b32 v3, 7, v0")
    a(f"v_bfe_u32 v4, v0, 4, 1")
    a(f"v_lshlrev_b32 v4, 2, v4")
    a(f"v_xor_b32 v3, v3, v4")
    a(f"v_lshlrev_b32 v3, 4, v3")
    a(f"v_add_u32 v{vD}, v{vD}, v3")
    a(f"s_lshr_b32 s{sP}, s{sG0}, 1")
    a(f"s_lshl_b32 s{sP}, s{sP}, 7")
    a(f"s_lshl_b32 s66, s{sRS}, 4")
    a(f"s_lshl_b32 s67, s{sRS}, 3")
    a(f"s_mul_i32 s67, s67, s{sU}")
    a("s_lshr_b32 s68, s2, 3")
    a("s_and_b32 s68, s68, 3")
    if exp.get("lprio", 0): a(f"s_setprio {exp.get('lprio', 0)}")
    THR = exp.get("thr", 0)
    def dma_rows(i0, n, slot_s, thr=True):
        a(f"s_lshl_b32 s7, s{sU}, 10")
        a(f"s_add_u32 s7, s7, {slot_s}")
        a(f"s_add_u32 m0, s7, {i0*2048}")
        a(f"s_mul_i32 s42, s66, {i0}")
        a(f"s_add_u32 s42, s42, s67")
        a(f"s_add_u32 s42, s42, s{sP}")
        for k in range(n):
            a(f"buffer_load_dwordx4 v{vD}, s[{SWm}:{SWm+3}], s42 offen lds")
            if THR and thr and k >= THR: a(f"s_waitcnt vmcnt({THR})")
            if k + 1 < n:
                a("s_add_u32 m0, m0, 2048")
                a("s_add_u32 s42, s42, s66")
    ntouch = exp.get("touch", 0)
    if exp.get("touch0", 1):
        srd(a, SX, 48, 2048*1024)
        a(f"v_and_b32 v8, 63, v0")
        a(f"s_lshl_b32 s3, s{sU}, 6")
        a(f"v_add_u32 v9, s3, v8")
        a(f"v_lshlrev_b32 v9, 10, v9")
        a(f"s_lshl_b32 s3, s{sRB}, 17")
        a("s_lshr_b32 s4, s2, 5")
        a("s_lshl_b32 s4, s4, 7")
        a("s_add_u32 s3, s3, s4")
        a(f"buffer_load_dword v20, v9, s[{SX}:{SX+3}], s3 offen{TNT}")
    if exp.get("codepf", 1):
        a("s_getpc_b64 s[76:77]")
        a(f"{name}_pc:")
        a(f"s_sub_u32 s76, s76, {name}_pc-{name}")
        a("s_subb_u32 s77, s77, 0")
        a("s_lshr_b32 s3, s2, 3")
        a("s_lshl_b32 s3, s3, 9")
        a(f"v_and_b32 v9, 3, v0")
        a(f"v_lshlrev_b32 v9, 7, v9")
        a(f"v_add_u32 v9, s3, v9")
        a(f"v_min_u32 v9, {name}_end-{name}-4, v9")
        a(f"global_load_dword v22, v9, s[76:77]")
    if exp.get("touchw", 1):
        if exp.get("twdelay", 1): a("s_waitcnt vmcnt(0)")
        a(f"s_cmp_eq_u32 s{sU}, 0")
        a("s_cselect_b32 s72, s50, s56")
        a("s_cselect_b32 s73, s51, s57")
        a("s_cselect_b32 s3, 48, 56")
        a("s_and_b32 s73, s73, 0xffff")
        a("s_mul_i32 s74, s3, 32768")
        a("s_mov_b32 s75, 0x00020000")
        a("s_mul_i32 s4, s3, s2")
        a("s_lshl_b32 s4, s4, 7")
        a("s_sub_u32 s3, s3, 1")
        a(f"v_and_b32 v9, 63, v0")
        a(f"v_min_u32 v9, s3, v9")
        a(f"v_lshlrev_b32 v9, 7, v9")
        a(f"buffer_load_dword v24, v9, s[72:75], s4 offen")
    a("s_cmp_lg_u32 s2, 0")
    a(f"s_cbranch_scc1 {name}_nz")
    a(f"s_load_dwordx2 s[78:79], s[0:1], {ARG_WS}") if False else None
    srd(a, SWS, 62, WS_SIZE)
    a(f"v_and_b32 v9, 63, v0")
    a(f"v_lshlrev_b32 v9, 7, v9")
    a(f"v_mov_b32 v10, 0")
    a(f"s_mov_b32 s3, {WS_CNT}")
    a(f"buffer_store_dword v10, v9, s[{SWS}:{SWS+3}], s3 offen sc1")
    a(f"{name}_nz:")
    ST(2)
    a("s_barrier          ; B0")
    dma_rows(0, 16, "0", thr=False)
    srd(a, SWO, 52, 512*1024)
    srd(a, SW2, 60, 1792*1024)
    srd(a, SWS, 62, WS_SIZE)
    ST(3)
    a("s_barrier          ; B1")
    ST(5)
    dma_rows(16, 16, "0")
    a(f"s_add_u32 s{sP}, s{sP}, 128")
    dma_rows(0, 16, "65536")
    ST(6)
    a("s_waitcnt vmcnt(16)")
    ST(4)
    a("s_barrier          ; B2")
    ST(7)
    dma_rows(16, 16, "65536")
    if ntouch:
        a(f"s_lshl_b32 s3, s68, 8")
        a(f"s_lshl_b32 s4, s{sU}, 7")
        a("s_add_u32 s3, s3, s4")
        a(f"v_and_b32 v8, 63, v0")
        a(f"v_add_u32 v8, s3, v8")
        a(f"s_add_u32 s4, s{sP}, 128")
        for i in range(2):
            a(f"v_and_b32 v9, 511, v8")
            a(f"v_mul_lo_u32 v9, s{sRS}, v9")
            a(f"v_lshrrev_b32 v10, 9, v8")
            a(f"v_lshlrev_b32 v10, 7, v10")
            a(f"v_add_u32 v9, v9, v10")
            a(f"buffer_load_dword v{12+i}, v9, s[{SWm}:{SWm+3}], s4 offen")
            a(f"v_add_u32 v8, 64, v8")
    a("s_lshr_b32 s70, s2, 4")
    a("s_and_b32 s69, s2, 15")
    a("s_mul_i32 s69, s69, 9")
    a(f"s_add_u32 s69, s69, s{sU}")
    a(f"s_sub_u32 s74, 5, s{sU}")
    a(f"v_bfe_u32 v3, v0, 2, 4")
    a(f"v_lshlrev_b32 v3, 10, v3")
    a(f"v_and_b32 v4, 3, v0")
    a(f"v_lshlrev_b32 v4, 4, v4")
    a(f"v_add_u32 v5, v3, v4")
    a(f"v_bfe_u32 v3, v0, 5, 1")
    a(f"v_lshlrev_b32 v3, 2, v3")
    a(f"v_bfe_u32 v4, v0, 2, 2")
    a(f"v_add_u32 v3, v3, v4")
    a(f"v_lshlrev_b32 v3, 6, v3")
    a(f"v_bfe_u32 v4, v0, 4, 1")
    a(f"v_lshlrev_b32 v4, 5, v4")
    a(f"v_add_u32 v3, v3, v4")
    a(f"v_and_b32 v4, 3, v0")
    a(f"v_lshlrev_b32 v4, 3, v4")
    a(f"v_add_u32 v3, v3, v4")
    a(f"s_lshl_b32 s3, s{sU}, 13")
    a(f"s_add_u32 s75, s3, {128*1024}")
    a(f"v_add_u32 v6, s75, v3")
    a(f"v_and_b32 v7, 63, v0")
    a(f"v_lshlrev_b32 v7, 4, v7")
    a("s_mov_b32 s80, s69")
    a("s_mov_b32 s81, s74")
    a("s_mov_b32 s82, s75")
    a(f"{name}_sj:")
    a("s_mov_b32 m0, s82")
    a("s_lshl_b32 s4, s70, 6")
    a("s_cmp_lt_u32 s80, 32")
    a(f"s_cbranch_scc0 {name}_sj2")
    a("s_lshl_b32 s3, s80, 14")
    a("s_add_u32 s3, s3, s4")
    a(f"buffer_load_dwordx4 v5, s[{SWO}:{SWO+3}], s3 offen lds")
    a(f"s_branch {name}_sj3")
    a(f"{name}_sj2:")
    a("s_sub_u32 s3, s80, 32")
    a("s_lshl_b32 s3, s3, 14")
    a("s_add_u32 s3, s3, s4")
    a(f"buffer_load_dwordx4 v5, s[{SW2}:{SW2+3}], s3 offen lds")
    a(f"{name}_sj3:")
    a("s_add_u32 s80, s80, 2")
    a("s_add_u32 s82, s82, 1024")
    a("s_sub_u32 s81, s81, 1")
    a("s_cmp_lg_u32 s81, 0")
    a(f"s_cbranch_scc1 {name}_sj")
    a(f"s_mov_b32 s{sK}, 1")
    a("s_waitcnt vmcnt(%d)" % (6 if ntouch else 4))
    a(f"s_branch {name}_lp1")
    a(f"{name}_lp:")
    a("s_waitcnt vmcnt(0)")
    a(f"{name}_lp1:")
    if stamps:
        a(f"s_add_u32 m0, s{sK}, 16")
        a("s_memtime s[84:85]")
        a("s_waitcnt lgkmcnt(0)")
        a("s_nop 3")
        a("v_writelane_b32 v126, s84, m0")
    a("s_barrier")
    if stamps:
        a(f"s_add_u32 m0, s{sK}, 24")
        a("s_memtime s[84:85]")
        a("s_waitcnt lgkmcnt(0)")
        a("s_nop 3")
        a("v_writelane_b32 v126, s84, m0")
    a(f"s_add_u32 s{sK}, s{sK}, 1")
    a(f"s_cmp_ge_u32 s{sK}, s{sNP}")
    a(f"s_cbranch_scc1 {name}_sjfin")
    a(f"s_add_u32 s{sP}, s{sP}, 128")
    a(f"s_and_b32 s{sM}, s{sK}, 1")
    a(f"s_lshl_b32 s{sM}, s{sM}, 16")
    if not exp.get("nodma"): dma_rows(0, 32, f"s{sM}")
    a(f"s_branch {name}_lp")
    a(f"{name}_sjfin:")
    a("ds_read_b64_tr_b16 v[8:9], v6")
    a("ds_read_b64_tr_b16 v[10:11], v6 offset:512")
    a("s_mul_i32 s3, s70, 144")
    a("s_add_u32 s3, s3, s69")
    a("s_lshl_b32 s3, s3, 10")
    a(f"s_add_u32 s3, s3, {WS_WT}")
    a("v_add_u32 v6, 1024, v6")
    a("s_waitcnt lgkmcnt(0)")
    a(f"buffer_store_dwordx4 v[8:11], v7, s[{SWS}:{SWS+3}], s3 offen{SC}")
    a("s_add_u32 s69, s69, 2")
    a("s_sub_u32 s74, s74, 1")
    a("s_cmp_lg_u32 s74, 0")
    a("s_nop 0")
    a(f"s_cbranch_scc1 {name}_sjfin")
    a(f"{name}_fin:")
    ST.dump(sW, None)
    a(f"{name}_end:")
    a("s_endpgm")
    kernel_desc(a, name, 256)
```

```python
from asmlib import *
MB = 1 << 20
WS_Q, WS_K, WS_V = 0, 2*MB, 4*MB
WS_A2 = 8*MB
WS_WT = 18*MB
WS_PART = 21*MB
WS_CNT = 26*MB
WS_SIZE = 0x10000000
ARG_X, ARG_WQKV, ARG_WO, ARG_BX, ARG_W1, ARG_B1, ARG_W2, ARG_OUT, ARG_DBG, ARG_WS = [8*i for i in range(10)]

def kernel_header(a, name):
    a(".text")
    a(f".globl {name}")
    a(".p2align 8")
    a(f".type {name},@function")
    a(f"{name}:")

def kernel_desc(a, name, nvgpr, nsgpr=96, nagpr=0):
    acc = (nvgpr + 3)//4*4
    a('.section .rodata,"a"')
    a(".p2align 6")
    a(f".amdhsa_kernel {name}")
    a(f"  .amdhsa_next_free_vgpr {acc + nagpr}")
    a(f"  .amdhsa_next_free_sgpr {nsgpr}")
    a(f"  .amdhsa_accum_offset {acc}")
    a("  .amdhsa_group_segment_fixed_size 0")
    a("  .amdhsa_kernarg_size 80")
    a("  .amdhsa_user_sgpr_count 2")
    a("  .amdhsa_user_sgpr_kernarg_segment_ptr 1")
    a("  .amdhsa_system_sgpr_workgroup_id_x 1")
    a("  .amdhsa_float_denorm_mode_32 3")
    a("  .amdhsa_ieee_mode 0")
    a(".end_amdhsa_kernel")

def srd(a, s, base_s, size):
    a(f"s_mov_b32 s{s}, s{base_s}")
    a(f"s_and_b32 s{s+1}, s{base_s+1}, 0xffff")
    a(f"s_mov_b32 s{s+2}, {size:#x}")
    a(f"s_mov_b32 s{s+3}, 0x00020000")

class Stamper:
    def __init__(self, a, on, vreg, slot, sreg=84):
        self.a, self.on, self.v, self.slot, self.s = a, on, vreg, slot, sreg
    def init(self):
        if not self.on: return
        a = self.a
        a(f"s_load_dwordx2 s[{self.s+2}:{self.s+3}], s[0:1], {ARG_DBG}")
        a(f"v_mov_b32 v{self.v}, 0")
        self(0)
    def __call__(self, idx):
        if not self.on: return
        a = self.a
        import os
        a(f"{'s_memrealtime' if os.environ.get('RT') else 's_memtime'} s[{self.s}:{self.s+1}]")
        a("s_waitcnt lgkmcnt(0)")
        a(f"v_writelane_b32 v{self.v}, s{self.s}, {idx}")
    def dump(self, sW, endlabel):
        if not self.on: return
        a = self.a
        a("s_waitcnt vmcnt(0)")
        self(63)
        a(f"s_lshl_b32 s{self.s}, s2, 4")
        a(f"s_add_u32 s{self.s}, s{self.s}, s{sW}")
        a(f"s_lshl_b32 s{self.s}, s{self.s}, 8")
        a(f"s_add_u32 s{self.s}, s{self.s}, {self.slot*0x100000}")
        a(f"v_mbcnt_lo_u32_b32 v8, -1, 0")
        a(f"v_mbcnt_hi_u32_b32 v8, -1, v8")
        a(f"v_lshlrev_b32 v8, 2, v8")
        a(f"v_add_u32 v8, s{self.s}, v8")
        a(f"global_store_dword v8, v{self.v}, s[{self.s+2}:{self.s+3}]")

def code_prefetch(a, name, vtmp, vdst, spair, nbytes_label_end):
    a(f"s_getpc_b64 s[{spair}:{spair+1}]")
    a(f"{name}_pc:")
    a(f"s_sub_u32 s{spair}, s{spair}, {name}_pc-{name}")
    a(f"s_subb_u32 s{spair+1}, s{spair+1}, 0")
    a(f"v_mbcnt_lo_u32_b32 v{vtmp}, -1, 0")
    a(f"v_mbcnt_hi_u32_b32 v{vtmp}, -1, v{vtmp}")
    a(f"v_lshlrev_b32 v{vtmp}, 7, v{vtmp}")
    return f"{nbytes_label_end}-{name}"
def code_prefetch_loads(a, name, vtmp, vt2, vdst, spair, endlabel, n):
    for i in range(n):
        a(f"v_add_u32 v{vt2}, {i*8192}, v{vtmp}")
        a(f"v_min_u32 v{vt2}, {endlabel}-{name}-4, v{vt2}")
        a(f"global_load_dword v{vdst+i}, v{vt2}, s[{spair}:{spair+1}]")

def code_touch(a, tag, first, last, vtmp, vdst, spair, here_kernel):
    a(f"s_getpc_b64 s[{spair}:{spair+1}]")
    a(f"{tag}_pc:")
    a(f"s_add_u32 s{spair}, s{spair}, {first}-{tag}_pc")
    a(f"s_addc_u32 s{spair+1}, s{spair+1}, 0" if first != here_kernel else f"s_addc_u32 s{spair+1}, s{spair+1}, -1")
    a(f"s_lshr_b32 s3, s2, 3")
    a(f"s_lshl_b32 s3, s3, 9")
    a(f"v_and_b32 v{vtmp}, 3, v0")
    a(f"v_lshlrev_b32 v{vtmp}, 7, v{vtmp}")
    a(f"v_add_u32 v{vtmp}, s3, v{vtmp}")
    a(f"v_min_u32 v{vtmp}, {last}-{first}-4, v{vtmp}")
    a(f"global_load_dword v{vdst}, v{vtmp}, s[{spair}:{spair+1}]")
```

```python
from common import *
import math, struct
K1_LDS = 163840
def f2u(x): return struct.unpack("<I", struct.pack("<f", x))[0]
LOG2E = 1.4426950408889634
LN2 = 0.6931471805599453
QSCALE = 0.25*LOG2E
F_G0 = [0, 6, 12, 18, 24, 30, 36, 41, 46, 51]
F_N  = [6, 6, 6, 6, 6, 6, 5, 5, 5, 5]
CS_TABLE = list(zip(F_G0, F_N)) + [(8*i, 8) for i in range(6)]
def wg_decode(wg):
    x, idx = wg & 7, wg >> 3
    return 4*(x >> 1) + (idx & 3), 8*(x & 1) + (idx >> 2)

def weave(pre, main, fill, npre, start, end):
    out = list(pre) + fill[:npre]
    rest = fill[npre:]
    n = end - start
    k = 0
    for g, gap in enumerate(main):
        out += gap
        if start <= g < end:
            upto = (len(rest)*(g-start+1) + n - 1)//n
            out += rest[k:upto]; k = upto
    out += rest[k:]
    return out

def gen_k1(a, name, stamps=False, exp={}, next_kernel=None):
    kernel_header(a, name)
    X = 128; ACC = 16; E = 32; WB = 48; NWB = 8; T = 80
    BIAS = 100; XAUG = 104; SEL = 108; RTOK = 108
    PF = exp.get("pf", 4)
    SC = " sc1" if exp.get("sc1", 1) else ""
    vL16, vWa, vWn, vSt, vR, vB2, vC1 = 1, 2, 3, 4, 5, 6, 7
    t8, t9, t10, t11 = 8, 9, 10, 11
    vXA, vXB = 12, 13
    XNT = " nt" if exp.get("xnt") else ""
    TNT = " nt" if exp.get("tnt") else ""
    sW, sRB, sCS, sG0, sN, sTile = 32, 33, 34, 35, 36, 37
    sJ, sG, sSt, sStN, sRS, sNP, sStep = 38, 39, 40, 41, 44, 45, 46
    SX, SWm, SWS, SB1, SWO, SW2 = 8, 12, 16, 20, 24, 28
    a("s_cmp_ge_u32 s2, 256")
    a(f"s_cbranch_scc1 {name}_end")
    a("s_load_dwordx4 s[48:51], s[0:1], 0")
    a("s_load_dwordx2 s[52:53], s[0:1], 16")
    a("s_load_dwordx4 s[56:59], s[0:1], 32")
    a("s_load_dwordx2 s[60:61], s[0:1], 48")
    a(f"s_load_dwordx2 s[62:63], s[0:1], {ARG_WS}")
    ST = Stamper(a, stamps, 126, 1)
    ST.init()
    a(f"v_lshrrev_b32 v{t8}, 6, v0")
    a(f"v_and_b32 v{vL16}, 63, v0")
    a(f"v_readfirstlane_b32 s{sW}, v{t8}")
    a(f"v_lshlrev_b32 v{vL16}, 4, v{vL16}")
    a("s_lshr_b32 s4, s2, 3")
    a("s_bfe_u32 s3, s2, 0x20001")
    a("s_lshl_b32 s3, s3, 2")
    a("s_and_b32 s5, s4, 3")
    a(f"s_add_u32 s{sRB}, s3, s5")
    a("s_and_b32 s3, s2, 1")
    a("s_lshl_b32 s3, s3, 3")
    a("s_lshr_b32 s4, s4, 2")
    a(f"s_add_u32 s{sCS}, s3, s4")
    a(f"s_mul_i32 s4, s{sCS}, 6")
    a(f"s_sub_u32 s5, s{sCS}, 6")
    a(f"s_cmp_ge_u32 s{sCS}, 6")
    a("s_cselect_b32 s5, s5, 0")
    a("s_cselect_b32 s6, 5, 6")
    a("s_sub_u32 s4, s4, s5")
    a(f"s_sub_u32 s5, s{sCS}, 10")
    a("s_lshl_b32 s5, s5, 3")
    a(f"s_cmp_lt_u32 s{sCS}, 10")
    a(f"s_cselect_b32 s{sG0}, s4, s5")
    a(f"s_cselect_b32 s{sN}, s6, 8")
    a(f"s_movk_i32 s4, 3072")
    a(f"s_cselect_b32 s{sRS}, 3584, s4")
    a(f"s_and_b32 s3, s{sG0}, 1")
    a(f"s_add_u32 s3, s3, s{sN}")
    a("s_add_u32 s3, s3, 1")
    a(f"s_lshr_b32 s{sNP}, s3, 1")
    a(f"s_lshl_b32 s{sTile}, s{sRB}, 2")
    a(f"s_add_u32 s{sTile}, s{sTile}, s{sW}")
    a("s_waitcnt lgkmcnt(0)")
    ST(1)
    a(f"s_cmp_ge_u32 s{sW}, 4")
    a(f"s_cbranch_scc1 {name}_loader")
    srd(a, SX, 48, 2048*1024)
    a(f"v_bfe_u32 v{t8}, v0, 3, 3")
    a(f"v_lshlrev_b32 v{t8}, 10, v{t8}")
    a(f"v_and_b32 v{t9}, 7, v0")
    a(f"v_bfe_u32 v{t10}, v0, 4, 2")
    a(f"v_xor_b32 v{t9}, v{t9}, v{t10}")
    a(f"v_lshlrev_b32 v{t9}, 4, v{t9}")
    a(f"v_add_u32 v{vXA}, v{t8}, v{t9}")
    a(f"v_xor_b32 v{vXB}, 64, v{vXA}")
    a(f"s_lshl_b32 s3, s{sW}, 15")
    a("s_add_u32 s3, s3, 32768")
    a(f"s_lshl_b32 s4, s{sTile}, 15")
    def xchunk():
        for rg in range(4):
            a(f"s_add_u32 m0, s6, {rg*1024}" if rg else "s_mov_b32 m0, s6")
            a(f"s_add_u32 s5, s7, {rg*8192}" if rg else "s_mov_b32 s5, s7")
            a(f"buffer_load_dwordx4 v{vXA if rg % 2 == 0 else vXB}, s[{SX}:{SX+3}], s5 offen{XNT} lds")
        a("s_add_u32 s6, s6, 4096")
        a("s_add_u32 s7, s7, 128")
    a("s_mov_b32 s6, s3")
    a("s_mov_b32 s7, s4")
    NUP = exp.get("nup", 4)
    a(f"s_mov_b32 s42, {NUP}")
    a(f"{name}_xl:")
    xchunk()
    a("s_sub_u32 s42, s42, 1")
    a("s_cmp_lg_u32 s42, 0")
    a(f"s_cbranch_scc1 {name}_xl")
    ST(2)
    srd(a, SWS, 62, WS_SIZE)
    a(f"v_and_b32 v{t8}, 31, v0")
    a(f"v_bfe_u32 v{t9}, v0, 5, 1")
    a(f"v_lshlrev_b32 v{t9}, 3, v{t9}")
    a(f"v_sub_u32 v{t8}, v{t8}, v{t9}")
    a(f"v_mov_b32 v{t10}, 0x3f80")
    a(f"v_mov_b32 v{t11}, 0x3f800000")
    for r in range(4):
        a(f"v_cmp_eq_u32 vcc, {2*r}, v{t8}")
        a(f"v_cmp_eq_u32 s[42:43], {2*r+1}, v{t8}")
        a(f"v_mov_b32 v{SEL+r}, 0")
        a(f"v_mov_b32 v{BIAS+r}, 0")
        a(f"v_cndmask_b32 v{SEL+r}, v{SEL+r}, v{t10}, vcc")
        a(f"v_cndmask_b32 v{SEL+r}, v{SEL+r}, v{t11}, s[42:43]")
        a(f"v_mov_b32 v{XAUG+r}, 0")
    XA = 80
    a(f"v_bfe_u32 v{t8}, v0, 3, 2")
    a(f"v_lshlrev_b32 v{t8}, 10, v{t8}")
    a(f"v_and_b32 v{t9}, 7, v0")
    a(f"v_lshlrev_b32 v{t9}, 7, v{t9}")
    a(f"v_add_u32 v{t8}, v{t8}, v{t9}")
    a(f"v_bfe_u32 v{t9}, v0, 1, 3")
    a(f"v_bfe_u32 v{t10}, v0, 5, 1")
    a(f"v_xor_b32 v{t9}, v{t9}, v{t10}")
    a(f"v_lshlrev_b32 v{t9}, 4, v{t9}")
    a(f"v_add_u32 v{t8}, v{t8}, v{t9}")
    a(f"v_add_u32 v{t8}, s3, v{t8}")
    for j in range(4): a(f"v_xor_b32 v{XA+j}, {32*j}, v{t8}")
    a(f"v_bfe_u32 v{t8}, v0, 5, 1")
    a(f"v_lshlrev_b32 v{t8}, 2, v{t8}")
    a(f"v_bfe_u32 v{t10}, v0, 2, 2")
    a(f"v_add_u32 v{t8}, v{t8}, v{t10}")
    a(f"v_lshlrev_b32 v{t8}, 7, v{t8}")
    a(f"v_bfe_u32 v{t10}, v0, 4, 1")
    a(f"v_lshlrev_b32 v{t10}, 1, v{t10}")
    a(f"v_bfe_u32 v{t11}, v0, 1, 1")
    a(f"v_add_u32 v{t10}, v{t10}, v{t11}")
    a(f"v_bfe_u32 v{t11}, v0, 3, 1")
    a(f"v_lshlrev_b32 v{t11}, 2, v{t11}")
    a(f"v_xor_b32 v{t10}, v{t10}, v{t11}")
    a(f"v_lshlrev_b32 v{t10}, 4, v{t10}")
    a(f"v_add_u32 v{t8}, v{t8}, v{t10}")
    a(f"v_and_b32 v{t10}, 1, v0")
    a(f"v_lshlrev_b32 v{t10}, 3, v{t10}")
    a(f"v_add_u32 v{vWa}, v{t8}, v{t10}")
    a(f"s_and_b32 s42, s{sG0}, 1")
    a("s_lshl_b32 s42, s42, 6")
    a(f"v_xor_b32 v{vWa}, s42, v{vWa}")
    a(f"v_mov_b32 v{t11}, 0x3f803f80")
    for i in range(16): a(f"v_mov_b32 v{ACC+i}, 0")
    def rdchunk(c):
        for j in range(4): a(f"ds_read_b128 {vr(X+4*(4*c+j),4)}, v{XA+j} offset:{4096*c}")
    def dots(c):
        for j in range(4):
            s = 4*c + j
            o = 4*(s & 1)
            a(f"s_waitcnt lgkmcnt({4+3-j if c < 7 else 3-j})") if False else None
            for r in range(4):
                a(f"v_dot2c_f32_bf16 v{ACC+o+r}, v{X+4*s+r}, v{t11}")
                a(f"v_dot2c_f32_bf16 v{ACC+8+o+r}, v{X+4*s+r}, v{X+4*s+r}")
    B0C = exp.get("b0c", 4)
    for c in range(8):
        if c == B0C: a("s_barrier")
        if c + NUP < 8: xchunk()
        issued = min(8, c + NUP + 1)
        a(f"s_waitcnt vmcnt({4*(issued - c - 1)})")
        rdchunk(c)
        if c >= 1:
            a("s_waitcnt lgkmcnt(4)")
            dots(c - 1)
    ST(3)
    a("s_waitcnt lgkmcnt(0)")
    dots(7)
    ST(4)
    a("s_barrier")
    ST(5)
    a("s_nop 1")
    for st in (4, 2, 1):
        for i in range(st):
            a(f"v_add_f32 v{ACC+i}, v{ACC+i}, v{ACC+i+st}")
            a(f"v_add_f32 v{ACC+8+i}, v{ACC+8+i}, v{ACC+8+i+st}")
    a(f"v_mov_b32 v{ACC+1}, v{ACC}")
    a(f"v_mov_b32 v{ACC+9}, v{ACC+8}")
    a("s_nop 1")
    a(f"v_permlane32_swap_b32 v{ACC}, v{ACC+1}")
    a(f"v_permlane32_swap_b32 v{ACC+8}, v{ACC+9}")
    a("s_nop 1")
    a(f"v_add_f32 v{ACC}, v{ACC}, v{ACC+1}")
    a(f"v_add_f32 v{ACC+8}, v{ACC+8}, v{ACC+9}")
    a(f"v_mul_f32 v{ACC}, {f2u(1.0/512):#x}, v{ACC}")
    a(f"v_mul_f32 v{ACC+8}, {f2u(1.0/512):#x}, v{ACC+8}")
    a(f"v_cvt_pk_bf16_f32 v{ACC+1}, v{ACC}, v{ACC}")
    a(f"v_fma_f32 v{t8}, -v{ACC}, v{ACC}, v{ACC+8}")
    a(f"v_lshlrev_b32 v{ACC+1}, 16, v{ACC+1}")
    a(f"v_max_f32 v{t8}, 0, v{t8}")
    NEG = 48
    for i in range(16): a(f"v_sub_f32 v{NEG+i}, 0, v{ACC+1}")
    SQ = t8
    DB = [ACC, E, 64, 80]
    def cM(s): a(f"v_mfma_f32_32x32x16_bf16 {vr(DB[s%4],16)}, {vr(SEL,4)}, {vr(X+4*s,4)}, {vr(NEG,16)}")
    def cC(s):
        for r in range(4): a(f"v_cvt_pk_bf16_f32 v{X+4*s+r}, v{DB[s%4]+2*r}, v{DB[s%4]+2*r+1}")
    a(f"v_cvt_pk_bf16_f32 v{SQ}, v{SQ}, v{SQ}")
    a(f"v_lshlrev_b32 v{SQ}, 16, v{SQ}")
    cM(0)
    a(f"v_add_f32 v{SQ}, {f2u(1e-5):#x}, v{SQ}")
    a(f"v_cvt_pk_bf16_f32 v{SQ}, v{SQ}, v{SQ}")
    a(f"v_lshlrev_b32 v{SQ}, 16, v{SQ}")
    a(f"v_sqrt_f32 v{SQ}, v{SQ}")
    cM(1)
    a(f"v_cvt_pk_bf16_f32 v{SQ+1}, v{SQ}, v{SQ}")
    a(f"v_and_b32 v{SQ+1}, 0xffff, v{SQ+1}")
    a(f"v_lshlrev_b32 v{SQ}, 16, v{SQ+1}")
    a(f"v_rcp_f32 v{vR}, v{SQ}")
    cM(2)
    a(f"v_bfe_u32 v{SQ+2}, v0, 5, 1")
    a(f"v_cmp_eq_u32 vcc, 0, v{SQ+2}")
    a("s_nop 1")
    a(f"v_cndmask_b32 v{XAUG}, 0, v{SQ+1}, vcc")
    for s in range(32):
        if s + 3 < 32: cM(s + 3)
        else: a("s_nop 3")
        cC(s)
    ST(6)
    a(f"s_mov_b32 s{sJ}, 0")
    a(f"s_mov_b32 s{sG}, s{sG0}")
    a(f"s_mov_b32 s{sSt}, 0x7ff00000")
    a(f"s_cmp_lt_u32 s{sCS}, 10")
    a(f"s_cbranch_scc1 {name}_F")
    a(f"s_cmp_lt_u32 s{sCS}, 14")
    a(f"s_cbranch_scc1 {name}_QK")
    a(f"s_branch {name}_V")

    def epilogue(ty):
        L = []
        P = T + 12
        st = lambda r, off: [f"buffer_store_dwordx4 {vr(r,4)}, v{vSt}, s[{SWS}:{SWS+3}], s{sSt} offen" + (f" offset:{off}" if off else "") + SC]
        if ty == "F":
            t, e, w = T, T+4, T+8
            for q in range(4):
                Eq = E + 4*q
                L += [f"v_mul_f32 v{t+i}, v{Eq+i}, v{vR}" for i in range(4)]
                L += [f"v_exp_f32 v{e+i}, v{t+i}" for i in range(4)]
                L += [f"v_add_f32 v{e+i}, 1.0, v{e+i}" for i in range(4)]
                L += [f"v_fma_f32 v{w+i}, v{e+i}, v{e+i}, 1.0" for i in range(4)]
                L += [f"v_rcp_f32 v{w+i}, v{w+i}" for i in range(4)]
                L += [f"v_fmaak_f32 v{w+i}, v{w+i}, v{vC1}, {f2u(LN2):#x}" for i in range(4)]
                L += [f"v_mul_f32 v{t+i}, v{t+i}, v{w+i}" for i in range(4)]
                L += [f"v_cvt_pk_bf16_f32 v{P+2*q+i}, v{t+2*i}, v{t+2*i+1}" for i in range(2)]
                if q == 1: L += st(P, 0)
                if q == 3: L += st(P+4, 1024)
        elif ty == "QK":
            for q in range(4):
                Eq = E + 4*q
                L += [f"v_mul_f32 v{T+i}, v{Eq+i}, v{vC1}" for i in range(4)]
                L += [f"v_cvt_pk_bf16_f32 v{P+2*q+i}, v{T+2*i}, v{T+2*i+1}" for i in range(2)]
                if q == 1: L += st(P, 0)
                if q == 3: L += [f"buffer_store_dwordx4 {vr(P+4,4)}, v{vB2}, s[{SWS}:{SWS+3}], s{sSt} offen{SC}"]
        else:
            for q in range(4):
                Eq = E + 4*q
                L += [f"v_mul_f32 v{T+i}, v{Eq+i}, v{RTOK+4*q+i}" for i in range(4)]
                L += [f"v_cvt_pk_bf16_f32 v{P+2*q+i}, v{T+2*i}, v{T+2*i+1}" for i in range(2)]
                if q == 1: L += st(P, 0)
                if q == 3: L += st(P+4, 512)
        return L

    def group_loop(ty):
        a(f"{name}_{ty}:")
        if ty == "F":
            a(f"v_mul_f32 v{vR}, {f2u(LOG2E):#x}, v{vR}")
            a(f"v_mov_b32 v{vC1}, {f2u(-2.0*struct.unpack('<f', struct.pack('<f', LN2))[0]):#x}")
            a(f"v_mov_b32 v{vSt}, v{vL16}")
            a(f"v_and_b32 v{vB2}, 31, v0")
            a(f"v_lshlrev_b32 v{vB2}, 1, v{vB2}")
            srd(a, SB1, 58, 1792*2)
            a(f"s_mul_i32 s3, s{sTile}, 144")
            a(f"s_lshl_b32 s4, s{sG0}, 1")
            a("s_add_u32 s3, s3, s4")
            a("s_add_u32 s3, s3, 32")
            a("s_lshl_b32 s3, s3, 10")
            a(f"s_add_u32 s{sStN}, s3, {WS_A2}")
            a(f"s_movk_i32 s{sStep}, 2048")
        elif ty == "QK":
            a(f"v_mov_b32 v{vSt}, v{vL16}")
            a(f"v_add_u32 v{vB2}, 65536, v{vL16}")
            a(f"s_cmp_lt_u32 s{sG0}, 16")
            a(f"s_cselect_b32 s3, {f2u(QSCALE):#x}, 1.0")
            a(f"v_mul_f32 v{vC1}, s3, v{vR}")
            a(f"s_lshl_b32 s3, s{sG0}, 17")
            a(f"s_lshl_b32 s4, s{sTile}, 10")
            a(f"s_add_u32 s{sStN}, s3, s4")
            a(f"s_mov_b32 s{sStep}, 131072")
        else:
            a(f"s_lshl_b32 s3, s{sW}, 7")
            a(f"s_add_u32 s3, s3, {150*1024}")
            a(f"v_and_b32 v{t8}, 31, v0")
            a(f"v_lshlrev_b32 v{t8}, 2, v{t8}")
            a(f"v_add_u32 v{t8}, s3, v{t8}")
            a(f"ds_write_b32 v{t8}, v{vR}")
            a(f"v_bfe_u32 v{t9}, v0, 5, 1")
            a(f"v_lshlrev_b32 v{t9}, 4, v{t9}")
            a(f"v_add_u32 v{t9}, s3, v{t9}")
            a("s_waitcnt lgkmcnt(0)")
            for q in range(4): a(f"ds_read_b128 {vr(RTOK+4*q,4)}, v{t9} offset:{32*q}")
            a(f"v_bfe_u32 v{t8}, v0, 4, 1")
            a(f"v_lshlrev_b32 v{t8}, 16, v{t8}")
            a(f"v_bfe_u32 v{t9}, v0, 5, 1")
            a(f"v_lshlrev_b32 v{t9}, 8, v{t9}")
            a(f"v_add_u32 v{t8}, v{t8}, v{t9}")
            a(f"v_and_b32 v{t9}, 15, v0")
            a(f"v_lshlrev_b32 v{t9}, 4, v{t9}")
            a(f"v_add_u32 v{vSt}, v{t8}, v{t9}")
            a(f"s_lshl_b32 s3, s{sG0}, 17")
            a(f"s_lshl_b32 s4, s{sTile}, 10")
            a(f"s_add_u32 s{sStN}, s3, s4")
            a(f"s_mov_b32 s{sStep}, 131072")
            a("s_waitcnt lgkmcnt(0)")
        a("s_barrier")
        ST(7)
        def rdW(s, v):
            b = WB + 4*(s % NWB)
            return [f"ds_read_b64_tr_b16 {vr(b,2)}, v{v} offset:{s*2048}", f"ds_read_b64_tr_b16 {vr(b+2,2)}, v{v} offset:{s*2048+1024}"]
        for s in range(PF): a.extend(rdW(s, vWa))
        a(f"{name}_{ty}_loop:")
        book0 = [f"s_add_u32 s{sJ}, s{sJ}, 1",
                 f"s_bitcmp1_b32 s{sG}, 0",
                 "s_cselect_b32 s3, 0x10040, 64",
                 "s_cselect_b32 s42, 1, 0",
                 f"v_xor_b32 v{vWn}, s3, v{vWa}",
                 f"s_cmp_lt_u32 s{sJ}, s{sN}",
                 "s_cselect_b32 s42, s42, 0"]
        if ty == "F":
            book0 = [f"s_lshl_b32 s4, s{sG}, 6", f"buffer_load_ushort v{BIAS}, v{vB2}, s[{SB1}:{SB1+3}], s4 offen"] + book0
        book1 = [f"s_mov_b32 s{sSt}, s{sStN}", f"s_add_u32 s{sStN}, s{sStN}, s{sStep}", f"s_add_u32 s{sG}, s{sG}, 1"]
        gaps = []
        for s in range(32):
            g = []
            issued = min(32, s + PF)
            if s % 2 == 0:
                g.append(f"s_waitcnt lgkmcnt({2*(issued - (s + 2))})")
            if s == 30: g.append("s_cmp_eq_u32 s42, 0")
            b = WB + 4*(s % NWB)
            last = (s == 31 and ty != "F")
            D = E if last else ACC
            C = "0" if s == 0 else vr(ACC,16)
            if ty == "V": g.append(f"v_mfma_f32_32x32x16_bf16 {vr(D,16)}, {vr(X+4*s,4)}, {vr(b,4)}, {C}")
            else:         g.append(f"v_mfma_f32_32x32x16_bf16 {vr(D,16)}, {vr(b,4)}, {vr(X+4*s,4)}, {C}")
            if s + PF < 32: g += rdW(s + PF, vWa)
            if s == 0: g += book0[:5]
            if s == 1: g += book0[5:]
            if s == 29: g += book1
            if s == 30:
                g += [f"s_cbranch_scc1 {name}_{ty}_nb", "s_barrier", f"{name}_{ty}_nb:"]
                for q in range(PF//2): g += rdW(q, vWn)
            if s == 31:
                if ty == "F":
                    g += ["s_waitcnt vmcnt(2)", f"v_mfma_f32_32x32x16_bf16 {vr(E,16)}, {vr(BIAS,4)}, {vr(XAUG,4)}, {vr(ACC,16)}"]
                for q in range(PF//2, PF): g += rdW(q, vWn)
                g += [f"v_mov_b32 v{vWa}, v{vWn}", f"s_cmp_lt_u32 s{sJ}, s{sN}"]
            gaps.append(g)
        assert PF <= 7
        epi = epilogue(ty)
        if exp.get("nostore"): epi = [x for x in epi if "buffer_store" not in x]
        if exp.get("noepi"): epi = []
        if exp.get("nord"): gaps = [[x for x in g if "ds_read" not in x] for g in gaps]
        a.extend(weave([], gaps, epi, 0, exp.get("wstart", 3), 29))
        if stamps and exp.get("gstamp", 0):
            a(f"s_add_u32 m0, s{sJ}, 7")
            a("s_memtime s[84:85]")
            a("s_waitcnt lgkmcnt(0)")
            a("s_nop 3")
            a("v_writelane_b32 v126, s84, m0")
            a(f"s_cmp_lt_u32 s{sJ}, s{sN}")
        a(f"s_cbranch_scc1 {name}_{ty}_loop")
        a("s_nop 9")
        a.extend(epi)
        a(f"s_branch {name}_fin")
    for ty in ("F", "QK", "V"): group_loop(ty)

    a(f"{name}_loader:")
    sU, sP, sK, sM = 47, 43, 64, 65
    vD = 2
    a(f"s_cmp_lt_u32 s{sCS}, 10")
    a("s_cselect_b32 s4, s56, s50")
    a("s_cselect_b32 s5, s57, s51")
    a(f"s_mov_b32 s{SWm}, s4")
    a(f"s_and_b32 s{SWm+1}, s5, 0xffff")
    a(f"s_lshl_b32 s{SWm+2}, s{sRS}, 9")
    a(f"s_mov_b32 s{SWm+3}, 0x00020000")
    a(f"s_sub_u32 s{sU}, s{sW}, 4")
    a(f"v_bfe_u32 v3, v0, 3, 3")
    a(f"v_mul_lo_u32 v{vD}, s{sRS}, v3")
    a(f"v_and_b32 v3, 7, v0")
    a(f"v_bfe_u32 v4, v0, 4, 1")
    a(f"v_lshlrev_b32 v4, 2, v4")
    a(f"v_xor_b32 v3, v3, v4")
    a(f"v_lshlrev_b32 v3, 4, v3")
    a(f"v_add_u32 v{vD}, v{vD}, v3")
    a(f"s_lshr_b32 s{sP}, s{sG0}, 1")
    a(f"s_lshl_b32 s{sP}, s{sP}, 7")
    a(f"s_lshl_b32 s66, s{sRS}, 4")
    a(f"s_lshl_b32 s67, s{sRS}, 3")
    a(f"s_mul_i32 s67, s67, s{sU}")
    a("s_lshr_b32 s68, s2, 3")
    a("s_and_b32 s68, s68, 3")
    if exp.get("lprio", 0): a(f"s_setprio {exp.get('lprio', 0)}")
    THR = exp.get("thr", 0)
    def dma_rows(i0, n, slot_s, thr=True):
        a(f"s_lshl_b32 s7, s{sU}, 10")
        a(f"s_add_u32 s7, s7, {slot_s}")
        a(f"s_add_u32 m0, s7, {i0*2048}")
        a(f"s_mul_i32 s42, s66, {i0}")
        a(f"s_add_u32 s42, s42, s67")
        a(f"s_add_u32 s42, s42, s{sP}")
        for k in range(n):
            a(f"buffer_load_dwordx4 v{vD}, s[{SWm}:{SWm+3}], s42 offen lds")
            if THR and thr and k >= THR: a(f"s_waitcnt vmcnt({THR})")
            if k + 1 < n:
                a("s_add_u32 m0, m0, 2048")
                a("s_add_u32 s42, s42, s66")
    ntouch = exp.get("touch", 0)
    if exp.get("touch0", 1):
        srd(a, SX, 48, 2048*1024)
        a(f"v_and_b32 v8, 63, v0")
        a(f"s_lshl_b32 s3, s{sU}, 6")
        a(f"v_add_u32 v9, s3, v8")
        a(f"v_lshlrev_b32 v9, 10, v9")
        a(f"s_lshl_b32 s3, s{sRB}, 17")
        a("s_lshr_b32 s4, s2, 5")
        a("s_lshl_b32 s4, s4, 7")
        a("s_add_u32 s3, s3, s4")
        a(f"buffer_load_dword v20, v9, s[{SX}:{SX+3}], s3 offen{TNT}")
    if exp.get("codepf", 1):
        a("s_getpc_b64 s[76:77]")
        a(f"{name}_pc:")
        a(f"s_sub_u32 s76, s76, {name}_pc-{name}")
        a("s_subb_u32 s77, s77, 0")
        a("s_lshr_b32 s3, s2, 3")
        a("s_lshl_b32 s3, s3, 9")
        a(f"v_and_b32 v9, 3, v0")
        a(f"v_lshlrev_b32 v9, 7, v9")
        a(f"v_add_u32 v9, s3, v9")
        a(f"v_min_u32 v9, {name}_end-{name}-4, v9")
        a(f"global_load_dword v22, v9, s[76:77]")
    if exp.get("touchw", 1):
        if exp.get("twdelay", 1): a("s_waitcnt vmcnt(0)")
        a(f"s_cmp_eq_u32 s{sU}, 0")
        a("s_cselect_b32 s72, s50, s56")
        a("s_cselect_b32 s73, s51, s57")
        a("s_cselect_b32 s3, 48, 56")
        a("s_and_b32 s73, s73, 0xffff")
        a("s_mul_i32 s74, s3, 32768")
        a("s_mov_b32 s75, 0x00020000")
        a("s_mul_i32 s4, s3, s2")
        a("s_lshl_b32 s4, s4, 7")
        a("s_sub_u32 s3, s3, 1")
        a(f"v_and_b32 v9, 63, v0")
        a(f"v_min_u32 v9, s3, v9")
        a(f"v_lshlrev_b32 v9, 7, v9")
        a(f"buffer_load_dword v24, v9, s[72:75], s4 offen")
    a("s_cmp_lg_u32 s2, 0")
    a(f"s_cbranch_scc1 {name}_nz")
    a(f"s_load_dwordx2 s[78:79], s[0:1], {ARG_WS}") if False else None
    srd(a, SWS, 62, WS_SIZE)
    a(f"v_and_b32 v9, 63, v0")
    a(f"v_lshlrev_b32 v9, 7, v9")
    a(f"v_mov_b32 v10, 0")
    a(f"s_mov_b32 s3, {WS_CNT}")
    a(f"buffer_store_dword v10, v9, s[{SWS}:{SWS+3}], s3 offen sc1")
    a(f"{name}_nz:")
    ST(2)
    a("s_barrier          ; B0")
    dma_rows(0, 16, "0", thr=False)
    srd(a, SWO, 52, 512*1024)
    srd(a, SW2, 60, 1792*1024)
    srd(a, SWS, 62, WS_SIZE)
    ST(3)
    a("s_barrier          ; B1")
    ST(5)
    dma_rows(16, 16, "0")
    a(f"s_add_u32 s{sP}, s{sP}, 128")
    dma_rows(0, 16, "65536")
    ST(6)
    a("s_waitcnt vmcnt(16)")
    ST(4)
    a("s_barrier          ; B2")
    ST(7)
    dma_rows(16, 16, "65536")
    if ntouch:
        a(f"s_lshl_b32 s3, s68, 8")
        a(f"s_lshl_b32 s4, s{sU}, 7")
        a("s_add_u32 s3, s3, s4")
        a(f"v_and_b32 v8, 63, v0")
        a(f"v_add_u32 v8, s3, v8")
        a(f"s_add_u32 s4, s{sP}, 128")
        for i in range(2):
            a(f"v_and_b32 v9, 511, v8")
            a(f"v_mul_lo_u32 v9, s{sRS}, v9")
            a(f"v_lshrrev_b32 v10, 9, v8")
            a(f"v_lshlrev_b32 v10, 7, v10")
            a(f"v_add_u32 v9, v9, v10")
            a(f"buffer_load_dword v{12+i}, v9, s[{SWm}:{SWm+3}], s4 offen")
            a(f"v_add_u32 v8, 64, v8")
    a("s_lshr_b32 s70, s2, 4")
    a("s_and_b32 s69, s2, 15")
    a("s_mul_i32 s69, s69, 9")
    a(f"s_add_u32 s69, s69, s{sU}")
    a(f"s_sub_u32 s74, 5, s{sU}")
    a(f"v_bfe_u32 v3, v0, 2, 4")
    a(f"v_lshlrev_b32 v3, 10, v3")
    a(f"v_and_b32 v4, 3, v0")
    a(f"v_lshlrev_b32 v4, 4, v4")
    a(f"v_add_u32 v5, v3, v4")
    a(f"v_bfe_u32 v3, v0, 5, 1")
    a(f"v_lshlrev_b32 v3, 2, v3")
    a(f"v_bfe_u32 v4, v0, 2, 2")
    a(f"v_add_u32 v3, v3, v4")
    a(f"v_lshlrev_b32 v3, 6, v3")
    a(f"v_bfe_u32 v4, v0, 4, 1")
    a(f"v_lshlrev_b32 v4, 5, v4")
    a(f"v_add_u32 v3, v3, v4")
    a(f"v_and_b32 v4, 3, v0")
    a(f"v_lshlrev_b32 v4, 3, v4")
    a(f"v_add_u32 v3, v3, v4")
    a(f"s_lshl_b32 s3, s{sU}, 13")
    a(f"s_add_u32 s75, s3, {128*1024}")
    a(f"v_add_u32 v6, s75, v3")
    a(f"v_and_b32 v7, 63, v0")
    a(f"v_lshlrev_b32 v7, 4, v7")
    a("s_mov_b32 s80, s69")
    a("s_mov_b32 s81, s74")
    a("s_mov_b32 s82, s75")
    a(f"{name}_sj:")
    a("s_mov_b32 m0, s82")
    a("s_lshl_b32 s4, s70, 6")
    a("s_cmp_lt_u32 s80, 32")
    a(f"s_cbranch_scc0 {name}_sj2")
    a("s_lshl_b32 s3, s80, 14")
    a("s_add_u32 s3, s3, s4")
    a(f"buffer_load_dwordx4 v5, s[{SWO}:{SWO+3}], s3 offen lds")
    a(f"s_branch {name}_sj3")
    a(f"{name}_sj2:")
    a("s_sub_u32 s3, s80, 32")
    a("s_lshl_b32 s3, s3, 14")
    a("s_add_u32 s3, s3, s4")
    a(f"buffer_load_dwordx4 v5, s[{SW2}:{SW2+3}], s3 offen lds")
    a(f"{name}_sj3:")
    a("s_add_u32 s80, s80, 2")
    a("s_add_u32 s82, s82, 1024")
    a("s_sub_u32 s81, s81, 1")
    a("s_cmp_lg_u32 s81, 0")
    a(f"s_cbranch_scc1 {name}_sj")
    a(f"s_mov_b32 s{sK}, 1")
    a("s_waitcnt vmcnt(%d)" % (6 if ntouch else 4))
    a(f"s_branch {name}_lp1")
    a(f"{name}_lp:")
    a("s_waitcnt vmcnt(0)")
    a(f"{name}_lp1:")
    if stamps:
        a(f"s_add_u32 m0, s{sK}, 16")
        a("s_memtime s[84:85]")
        a("s_waitcnt lgkmcnt(0)")
        a("s_nop 3")
        a("v_writelane_b32 v126, s84, m0")
    a("s_barrier")
    if stamps:
        a(f"s_add_u32 m0, s{sK}, 24")
        a("s_memtime s[84:85]")
        a("s_waitcnt lgkmcnt(0)")
        a("s_nop 3")
        a("v_writelane_b32 v126, s84, m0")
    a(f"s_add_u32 s{sK}, s{sK}, 1")
    a(f"s_cmp_ge_u32 s{sK}, s{sNP}")
    a(f"s_cbranch_scc1 {name}_sjfin")
    a(f"s_add_u32 s{sP}, s{sP}, 128")
    a(f"s_and_b32 s{sM}, s{sK}, 1")
    a(f"s_lshl_b32 s{sM}, s{sM}, 16")
    if not exp.get("nodma"): dma_rows(0, 32, f"s{sM}")
    a(f"s_branch {name}_lp")
    a(f"{name}_sjfin:")
    if next_kernel and exp.get("codepf2", 1):
        code_touch(a, name + "_nx", next_kernel, next_kernel + "_end2", 12, 13, 76, name)
    a(f"{name}_sjfin1:")
    a("ds_read_b64_tr_b16 v[8:9], v6")
    a("ds_read_b64_tr_b16 v[10:11], v6 offset:512")
    a("s_mul_i32 s3, s70, 144")
    a("s_add_u32 s3, s3, s69")
    a("s_lshl_b32 s3, s3, 10")
    a(f"s_add_u32 s3, s3, {WS_WT}")
    a("v_add_u32 v6, 1024, v6")
    a("s_waitcnt lgkmcnt(0)")
    a(f"buffer_store_dwordx4 v[8:11], v7, s[{SWS}:{SWS+3}], s3 offen{SC}")
    a("s_add_u32 s69, s69, 2")
    a("s_sub_u32 s74, s74, 1")
    a("s_cmp_lg_u32 s74, 0")
    a("s_nop 0")
    a(f"s_cbranch_scc1 {name}_sjfin1")
    a(f"{name}_fin:")
    ST.dump(sW, None)
    a(f"{name}_end:")
    a("s_endpgm")
    kernel_desc(a, name, 256)
```

```python
from common import *
LDS_K, LDS_V, LDS_ONES = 0, 65536, 131072
K2_LDS = 141312
NGW = 4
def gen_k2(a, name="attn_kernel", stamps=False, exp={}):
    kernel_header(a, name)
    Q, KB, VB = [8, 12], [16, 20], [24, 32]
    P, S, O, C = [40, 48], [[56, 72], [88, 104]], [120, 136], 152
    vL16, vK, vV, vInc, vT, vT2 = 1, 2, 3, 4, 5, 6
    sW, sHead, sQt, sI, sG, sL = 16, 17, 18, 20, 21, 22
    SC = " sc1" if exp.get("sc1", 1) else ""
    a("s_cmp_ge_u32 s2, 256")
    a(f"s_cbranch_scc1 {name}_end")
    a(f"s_load_dwordx2 s[4:5], s[0:1], {ARG_WS}")
    a(f"s_load_dwordx2 s[6:7], s[0:1], {ARG_X}")
    a(f"s_load_dwordx2 s[32:33], s[0:1], {ARG_OUT}")
    ST = Stamper(a, stamps, 230, 0)
    ST.init()
    a(f"v_lshrrev_b32 v{vT}, 6, v0")
    a(f"v_and_b32 v{vL16}, 63, v0")
    a(f"v_readfirstlane_b32 s{sW}, v{vT}")
    a(f"v_lshlrev_b32 v{vL16}, 4, v{vL16}")
    a("s_and_b32 s17, s2, 7")
    a("s_lshr_b32 s18, s2, 3")
    a("s_and_b32 s19, s18, 3")
    a("s_lshl_b32 s26, s17, 2")
    a(f"s_add_u32 s{sHead}, s26, s19")
    a("s_lshr_b32 s27, s18, 2")
    a("s_mov_b32 s34, s27")
    a(f"s_lshl_b32 s23, s{sHead}, 16")
    a(f"s_cmp_ge_u32 s{sW}, 4")
    a(f"s_cbranch_scc1 {name}_G")
    XR = 208
    def resid():
        srd(a, 12, 6, 2048*1024)
        srd(a, 36, 32, 2048*1024)
        a(f"v_lshrrev_b32 v9, 3, v0")
        a(f"v_lshlrev_b32 v9, 10, v9")
        a(f"v_and_b32 v10, 7, v0")
        a(f"v_lshlrev_b32 v10, 4, v10")
        a(f"v_add_u32 v7, v9, v10")
        a(f"s_lshl_b32 s25, s{sHead}, 16")
        a(f"s_lshl_b32 s26, s34, 7")
        a("s_add_u32 s25, s25, s26")
        a(f"buffer_load_dwordx4 {vr(XR,4)}, v7, s[12:15], s25 offen")
    MF = "v_mfma_f32_32x32x16_bf16"
    a("s_lshl_b32 s18, s27, 3")
    a(f"s_lshl_b32 s19, s{sW}, 1")
    a(f"s_add_u32 s{sQt}, s18, s19")
    a(f"s_lshl_b32 s24, s{sQt}, 10")
    a("s_add_u32 s24, s24, s23")
    a(f"s_lshl_b32 s{sL}, s{sW}, 11")
    a(f"s_add_u32 s{sG}, s23, s{sL}")
    a(f"s_add_u32 s{sG}, s{sG}, {WS_K}")
    a("s_waitcnt lgkmcnt(0)")
    srd(a, 8, 4, WS_SIZE)
    a(f"s_mov_b32 m0, s{sL}")
    a(f"s_add_u32 s25, s{sG}, {WS_V-WS_K}")
    a(f"buffer_load_dwordx4 v{vL16}, s[8:11], s{sG} offen lds")
    a(f"buffer_load_dwordx4 v{vL16}, s[8:11], s{sG} offen offset:1024 lds")
    a(f"s_add_u32 m0, s{sL}, {LDS_V}")
    a(f"buffer_load_dwordx4 {vr(Q[0],4)}, v{vL16}, s[8:11], s24 offen")
    a(f"buffer_load_dwordx4 v{vL16}, s[8:11], s25 offen lds")
    a(f"buffer_load_dwordx4 v{vL16}, s[8:11], s25 offen offset:1024 lds")
    a(f"buffer_load_dwordx4 {vr(Q[1],4)}, v{vL16}, s[8:11], s24 offen offset:1024")
    a(f"v_lshlrev_b32 v{vT}, 4, v0")
    a(f"v_add_u32 v{vT}, {LDS_ONES}, v{vT}")
    a(f"v_and_b32 v{vT2}, 11, v0")
    a(f"v_cmp_eq_u32 vcc, 0, v{vT2}")
    a(f"v_mov_b32 v{vT2}, 0x3f803f80")
    if exp.get("allones"): a("s_mov_b64 vcc, -1")
    a("s_nop 0")
    a(f"v_cndmask_b32 v{P[0]}, 0, v{vT2}, vcc")
    for i in range(1, 4):
        a(f"v_mov_b32 v{P[0]+i}, v{P[0]}")
    for off in (0, 4096, 6144):
        a(f"ds_write_b128 v{vT}, {vr(P[0],4)} offset:{off}")
    a(f"v_mov_b32 v{vK}, v{vL16}")
    a(f"v_and_b32 v{vT}, 15, v0")
    a(f"v_lshlrev_b32 v{vT}, 4, v{vT}")
    a(f"v_and_b32 v{vT2}, 32, v0")
    a(f"v_lshlrev_b32 v{vT2}, 3, v{vT2}")
    a(f"v_add_u32 v{vT}, v{vT}, v{vT2}")
    a(f"v_add_u32 v{vV}, {LDS_V}, v{vT}")
    a(f"v_and_b32 v{vT}, 31, v0")
    a(f"v_subrev_u32 v{vT2}, 20, v{vT}")
    a(f"v_cmp_gt_u32 vcc, 8, v{vT2}")
    a(f"v_mov_b32 v{vT2}, {LDS_ONES}")
    a(f"v_mov_b32 v{vInc}, {LDS_ONES+64}")
    a(f"v_cndmask_b32 v{vT2}, v{vT2}, v{vInc}, vcc")
    a(f"v_and_b32 v{vInc}, 27, v0")
    a(f"v_cmp_ne_u32 vcc, 16, v{vInc}")
    a(f"v_add_u32 v{vInc}, 16, v{vT2}")
    a("s_nop 0")
    a(f"v_cndmask_b32 v{vT2}, v{vT2}, v{vInc}, vcc")
    a(f"v_cmp_gt_u32 vcc, 16, v{vT}")
    a(f"v_mov_b32 v{vInc}, 0")
    a(f"v_mov_b32 v{vT}, 8192")
    a(f"v_cndmask_b32 v{vV}, v{vT2}, v{vV}, vcc")
    a(f"v_cndmask_b32 v{vInc}, v{vInc}, v{vT}, vcc")
    for i in range(32):
        a(f"v_mov_b32 v{O[0]+i}, 0")
    for i in range(4):
        a(f"v_mov_b32 v{P[1]+4+i}, 0")
        a(f"v_mov_b32 v{VB[1]+4+i}, 0")
    a("s_waitcnt vmcnt(0) lgkmcnt(0)")
    a("s_barrier")
    a(f"ds_read_b128 {vr(KB[0],4)}, v{vK}")
    a(f"ds_read_b128 {vr(KB[1],4)}, v{vK} offset:1024")
    a(f"ds_read_b128 {vr(VB[0],4)}, v{vV}")
    a(f"ds_read_b128 {vr(VB[0]+4,4)}, v{vV} offset:512")
    a(f"s_mov_b32 s{sI}, 0")
    a("s_waitcnt lgkmcnt(3)")
    a(f"{MF} {vr(S[0][0],16)}, {vr(KB[0],4)}, {vr(Q[0],4)}, 0")
    a(f"{MF} {vr(S[1][0],16)}, {vr(KB[0],4)}, {vr(Q[1],4)}, 0")
    a("s_nop 15")
    ST(1)
    if exp.get("aprio"): a(f"s_setprio {exp['aprio']}")
    a(".p2align 6")
    a(f"{name}_loop:")
    for p in range(8):
        cur, nxt = p & 1, (p & 1) ^ 1
        E = lambda x, lo, hi: [f"v_exp_f32 v{S[x][cur]+i}, v{S[x][cur]+i}" for i in range(lo, hi)]
        Cv = lambda x, lo, hi: [f"v_cvt_pk_bf16_f32 v{P[x]+i}, v{S[x][cur]+2*i}, v{S[x][cur]+2*i+1}" for i in range(lo, hi)]
        QK = lambda x: [f"{MF} {vr(S[x][nxt],16)}, {vr(KB[nxt],4)}, {vr(Q[x],4)}, 0"]
        PV0 = lambda x: [f"{MF} {vr(O[x],16)}, {vr(VB[cur],4)}, {vr(P[x],4)}, {vr(O[x],16)}"]
        PV1 = lambda x: [f"{MF} {vr(O[x],16)}, {vr(VB[cur]+4,4)}, {vr(P[x]+4,4)}, {vr(O[x],16)}"]
        PV1d = [f"{MF} {vr(O[1],16)}, {vr(VB[nxt]+4,4)}, {vr(P[1]+4,4)}, {vr(O[1],16)}"]
        RK = [f"ds_read_b128 {vr(KB[cur],4)}, v{vK} offset:{(p+2)*1024}"]
        RV0 = [f"ds_read_b128 {vr(VB[nxt],4)}, v{vV} offset:{(p+1)*1024}"]
        RV1 = [f"ds_read_b128 {vr(VB[nxt]+4,4)}, v{vV} offset:{(p+1)*1024+512}"]
        if exp.get("noread"): RK = RV0 = RV1 = []
        a.extend(["s_waitcnt lgkmcnt(0)"] + QK(0))
        if p == 6:
            a(f"s_cmp_lt_u32 s{sI}, 3")
            a(f"s_cbranch_scc1 {name}_sync")
            a(f"{name}_syncret:")
        order = exp.get("order", 0)
        if order == 0:
            a.extend(RK + E(0,0,4) + PV1d + RV0 + RV1 + E(0,4,8) + Cv(0,0,4) + QK(1) + E(0,8,12) + PV0(0) + E(0,12,16) + Cv(0,4,8)
                     + E(1,0,4) + PV1(0) + E(1,4,8) + Cv(1,0,4) + E(1,8,12) + PV0(1) + E(1,12,16) + Cv(1,4,8))
        elif order == 1:
            a.extend(RK + E(0,0,4) + PV1d + RV1 + E(0,4,8) + Cv(0,0,4) + QK(1) + RV0 + E(0,8,12) + PV0(0) + E(0,12,16) + Cv(0,4,8)
                     + E(1,0,4) + PV1(0) + E(1,4,8) + Cv(1,0,4) + E(1,8,12) + PV0(1) + E(1,12,16) + Cv(1,4,8))
    if stamps and exp.get("itstamp"):
        a(f"s_add_u32 m0, s{sI}, 8")
        a("s_memtime s[84:85]")
        a("s_waitcnt lgkmcnt(0)")
        a("s_nop 3")
        a("v_writelane_b32 v230, s84, m0")
    a(f"v_add_u32 v{vK}, 8192, v{vK}")
    a(f"v_add_u32 v{vV}, v{vInc}, v{vV}")
    a(f"s_add_u32 s{sI}, s{sI}, 1")
    a(f"s_cmp_lt_u32 s{sI}, 8")
    a(f"s_cbranch_scc1 {name}_loop")
    a("s_waitcnt lgkmcnt(0)")
    a(f"{MF} {vr(O[1],16)}, {vr(VB[1]+4,4)}, {vr(P[1]+4,4)}, {vr(O[1],16)}")
    a("s_nop 15")
    ST(2)
    vSt = 7
    for x in range(2):
        Ox, Px, Qx = O[x], P[x], Q[x]
        a(f"v_mul_f32 v{vT}, 0, v{Ox}")
        for i in range(1, 8): a(f"v_fmac_f32 v{vT}, 0, v{Ox+i}")
        a(f"v_add_f32 v{vT}, v{vT}, v{Ox+8}")
        a(f"s_mov_b32 s26, 0x21800000")
        a(f"s_mov_b32 s27, 0x5d800000")
        a(f"v_cmp_le_f32 s[28:29], s26, v{vT}")
        a(f"v_cmp_ge_f32 vcc, s27, v{vT}")
        a("s_nop 1")
        a("s_and_b64 s[28:29], s[28:29], vcc")
        a("s_cmp_eq_u64 s[28:29], exec")
        a(f"s_cbranch_scc0 {name}_slow{x}")
        a(f"{name}_fin{x}:")
        a(f"v_rcp_f32 v{vT}, v{Ox+8}")
        a(f"s_add_u32 s24, s{sQt}, {x}")
        a(f"s_mul_i32 s24, s24, 144")
        a(f"s_add_u32 s24, s24, s{sHead}")
        a("s_lshl_b32 s24, s24, 10")
        a(f"s_add_u32 s24, s24, {WS_A2}")
        for i in range(8): a(f"v_mul_f32 v{Ox+i}, v{Ox+i}, v{vT}")
        for i in range(4): a(f"v_cvt_pk_bf16_f32 v{Px+i}, v{Ox+2*i}, v{Ox+2*i+1}")
        a(f"v_add_u32 v{vT2}, s24, v{vL16}")
        a(f"global_store_dwordx4 v{vT2}, {vr(Px,4)}, s[4:5] sc1")
    a(f"s_lshr_b32 s24, s{sQt}, 1")
    a("s_lshl_b32 s24, s24, 7")
    a(f"s_add_u32 s24, s24, {WS_CNT}")
    a(f"v_mov_b32 v{vT}, s24")
    a(f"v_mov_b32 v{vT2}, 1")
    a("s_waitcnt vmcnt(0)")
    a("s_mov_b64 exec, 1")
    a(f"global_atomic_add v{vT}, v{vT2}, s[4:5] sc1")
    a("s_mov_b64 exec, -1")
    ST(3)
    a("s_barrier")
    resid()
    a("s_barrier          ; B2e")
    a(f"s_branch {name}_red")
    a(f"{name}_done:")
    ST.dump(sW, None)
    a(f"{name}_end:")
    a("s_endpgm")
    a(f"{name}_sync:")
    a(f"s_cmp_eq_u32 s{sI}, 1")
    a(f"s_cbranch_scc1 {name}_syncret")
    a("s_barrier")
    a(f"s_branch {name}_syncret")
    for x in range(2):
        Ox, Px, Qx, S0 = O[x], P[x], Q[x], S[x][0]
        a(f"{name}_slow{x}:")
        a(f"v_mov_b32 v{vK}, v{vL16}")
        a(f"v_mov_b32 v{vT}, 0xff800000")
        a(f"s_mov_b32 s{sI}, 0")
        a(f"{name}_slow{x}a:")
        a(f"ds_read_b128 {vr(KB[0],4)}, v{vK}")
        a(f"v_add_u32 v{vK}, 1024, v{vK}")
        a("s_waitcnt lgkmcnt(0)")
        a(f"{MF} {vr(S0,16)}, {vr(KB[0],4)}, {vr(Qx,4)}, 0")
        a("s_nop 15")
        for i in range(8): a(f"v_max3_f32 v{vT}, v{vT}, v{S0+2*i}, v{S0+2*i+1}")
        a(f"s_add_u32 s{sI}, s{sI}, 1")
        a(f"s_cmp_lt_u32 s{sI}, 64")
        a(f"s_cbranch_scc1 {name}_slow{x}a")
        a(f"v_mov_b32 v{vT2}, v{vT}")
        a("s_nop 1")
        a(f"v_permlane32_swap_b32 v{vT}, v{vT2}")
        a("s_nop 1")
        a(f"v_max_f32 v{vT}, v{vT}, v{vT2}")
        for i in range(16): a(f"v_sub_f32 v{C+i}, 0, v{vT}")
        for i in range(16): a(f"v_mov_b32 v{Ox+i}, 0")
        a(f"v_mov_b32 v{vK}, v{vL16}")
        a(f"v_lshlrev_b32 v{vT2}, 3, v{vInc}")
        a(f"v_sub_u32 v{vT2}, v{vV}, v{vT2}")
        a(f"v_lshrrev_b32 v{vSt}, 3, v{vInc}")
        a(f"s_mov_b32 s{sI}, 0")
        a(f"{name}_slow{x}b:")
        a(f"ds_read_b128 {vr(KB[0],4)}, v{vK}")
        a(f"ds_read_b128 {vr(VB[0],4)}, v{vT2}")
        a(f"ds_read_b128 {vr(VB[0]+4,4)}, v{vT2} offset:512")
        a(f"v_add_u32 v{vK}, 1024, v{vK}")
        a(f"v_add_u32 v{vT2}, v{vSt}, v{vT2}")
        a("s_waitcnt lgkmcnt(0)")
        a(f"{MF} {vr(S0,16)}, {vr(KB[0],4)}, {vr(Qx,4)}, {vr(C,16)}")
        a("s_nop 15")
        for i in range(16): a(f"v_exp_f32 v{S0+i}, v{S0+i}")
        a("s_nop 0")
        for i in range(8): a(f"v_cvt_pk_bf16_f32 v{Px+i}, v{S0+2*i}, v{S0+2*i+1}")
        a("s_nop 1")
        a(f"{MF} {vr(Ox,16)}, {vr(VB[0],4)}, {vr(Px,4)}, {vr(Ox,16)}")
        a(f"{MF} {vr(Ox,16)}, {vr(VB[0]+4,4)}, {vr(Px+4,4)}, {vr(Ox,16)}")
        a(f"s_add_u32 s{sI}, s{sI}, 1")
        a(f"s_cmp_lt_u32 s{sI}, 64")
        a(f"s_cbranch_scc1 {name}_slow{x}b")
        a("s_nop 15")
        a(f"s_branch {name}_fin{x}")
    a(f"{name}_G:")
    sU = 30
    ACC, RING, R = 16, 80, 4
    vT0, vT1, vW0, vW1, vA = 2, 3, 4, 5, 6
    a(f"s_sub_u32 s{sU}, s{sW}, 4")
    a(f"s_lshl_b32 s{sL}, s{sU}, 11")
    a(f"s_add_u32 s{sL}, s{sL}, 8192")
    a(f"s_add_u32 s{sG}, s23, s{sL}")
    a(f"s_add_u32 s{sG}, s{sG}, {WS_K}")
    a("s_waitcnt lgkmcnt(0)")
    srd(a, 8, 4, WS_SIZE)
    def stage():
        a(f"s_mov_b32 m0, s{sL}")
        a(f"s_add_u32 s25, s{sG}, {WS_V-WS_K}")
        a(f"buffer_load_dwordx4 v{vL16}, s[8:11], s{sG} offen lds")
        a(f"buffer_load_dwordx4 v{vL16}, s[8:11], s{sG} offen offset:1024 lds")
        a(f"s_add_u32 m0, s{sL}, {LDS_V}")
        a(f"s_add_u32 s{sL}, s{sL}, 8192")
        a(f"buffer_load_dwordx4 v{vL16}, s[8:11], s25 offen lds")
        a(f"buffer_load_dwordx4 v{vL16}, s[8:11], s25 offen offset:1024 lds")
        a(f"s_add_u32 s{sG}, s{sG}, 8192")
    stage()
    if exp.get("codepf", 1):
        code_touch(a, name + "_cp", name, name + "_end2", 8, 9, 40, name)
    a("s_barrier          ; Ba")
    stage()
    a("s_waitcnt vmcnt(0)")
    a("s_barrier          ; Bb")
    a("s_mov_b32 s28, 5")
    a(f"{name}_Gst:")
    stage()
    a("s_sub_u32 s28, s28, 1")
    a("s_cmp_lg_u32 s28, 0")
    a(f"s_cbranch_scc1 {name}_Gst")
    a(f"s_mul_i32 s22, s{sHead}, {2*144*1024}")
    a(f"s_add_u32 s22, s22, {WS_A2}")
    a(f"s_mul_i32 s23, s27, {2*144*1024}")
    a(f"s_add_u32 s23, s23, {WS_WT}")
    a(f"s_mul_i32 s24, s{sU}, {28*1024}")
    a(f"s_add_u32 s24, s24, {32*1024}")
    a(f"v_add_u32 v{vT0}, s22, v{vL16}")
    a(f"v_add_u32 v{vW0}, s23, v{vL16}")
    a(f"v_add_u32 v{vT1}, {144*1024}, v{vT0}")
    a(f"v_add_u32 v{vW1}, {144*1024}, v{vW0}")
    if exp.get("gprio", 0): a(f"s_setprio {exp.get('gprio', 0)}")
    ST(1)
    def loads(slot):
        b = RING + slot*16
        for i, v in enumerate((vT0, vT1, vW0, vW1)):
            a(f"buffer_load_dwordx4 {vr(b+4*i,4)}, v{v}, s[8:11], s24 offen offset:{slot*1024}")
    gap = exp.get("ggap", 0)
    def mfmas(slot, first=False):
        b = RING + slot*16
        for aa in range(2):
            for bb in range(2):
                d = ACC + (aa*2+bb)*16
                a(f"v_mfma_f32_32x32x16_bf16 {vr(d,16)}, {vr(b+8+4*aa,4)}, {vr(b+4*bb,4)}, {'0' if first else vr(d,16)}")
                if gap == 1: a("s_nop 15")
                if gap == 2: a("s_sleep 1")
    for i in range(R): loads(i)
    a("s_add_u32 s24, s24, 4096")
    for i in range(R):
        a(f"s_waitcnt vmcnt({4*(R-1)})")
        mfmas(i, first=(i == 0))
        loads(i)
    a("s_add_u32 s24, s24, 4096")
    a("s_barrier          ; Bc")
    a("s_mov_b32 s28, 5")
    a(f"{name}_Gl:")
    for i in range(R):
        a(f"s_waitcnt vmcnt({4*(R-1)})")
        mfmas(i)
        loads(i)
    a("s_add_u32 s24, s24, 4096")
    a("s_sub_u32 s28, s28, 1")
    a("s_cmp_lg_u32 s28, 0")
    a(f"s_cbranch_scc1 {name}_Gl")
    for i in range(R):
        a(f"s_waitcnt vmcnt({4*(R-1-i)})")
        mfmas(i)
    ST(2)
    WO, OF = 80, 144
    a(f"s_lshl_b32 s24, s{sU}, 13")
    for i in range(8):
        for j, v in enumerate((vW0, vW1)):
            a(f"buffer_load_dwordx4 {vr(WO+8*i+4*j,4)}, v{v}, s[8:11], s24 offen offset:{(i%4)*1024}")
        if i == 3: a("s_add_u32 s24, s24, 4096")
    resid()
    a(f"s_lshl_b32 s24, s{sU}, 13")
    a(f"v_add_u32 v{vT0}, s24, v{vT0}")
    a(f"v_add_u32 v{vT1}, s24, v{vT1}")
    a("s_barrier          ; B1e")
    ST(3)
    a(f"s_cmp_lg_u32 s{sU}, 0")
    a(f"s_cbranch_scc1 {name}_Gnp")
    a(f"s_lshl_b32 s24, s{sHead}, 7")
    a(f"s_add_u32 s24, s24, {WS_CNT}")
    a(f"v_mov_b32 v8, s24")
    a("s_mov_b32 s28, 0x10000")
    a(f"{name}_Gpoll:")
    a("global_load_dword v9, v8, s[4:5] sc1")
    a("s_waitcnt vmcnt(0)")
    a(f"v_readfirstlane_b32 s29, v9   ; @chk s29=32")
    a("s_nop 1")
    a("s_cmp_ge_u32 s29, 32")
    a(f"s_cbranch_scc1 {name}_Gnp")
    a("s_sub_u32 s28, s28, 1")
    a("s_cmp_lg_u32 s28, 0")
    a(f"s_cbranch_scc1 {name}_Gpoll")
    a(f"{name}_Gnp:")
    a("s_barrier")
    ST(4)
    for i in range(8):
        for j, v in enumerate((vT0, vT1)):
            a(f"global_load_dwordx4 {vr(OF+8*i+4*j,4)}, v{v}, s[4:5] offset:{(i%4)*1024} sc1")
        if i == 3:
            a(f"v_add_u32 v{vT0}, 4096, v{vT0}")
            a(f"v_add_u32 v{vT1}, 4096, v{vT1}")
    a(f"v_and_b32 v8, 31, v0")
    a(f"v_mul_u32_u24 v8, 272, v8")
    a(f"v_and_b32 v9, 32, v0")
    a(f"v_lshrrev_b32 v9, 1, v9")
    a(f"v_add_u32 v8, v8, v9")
    a(f"s_mul_i32 s26, s{sU}, 17408")
    a(f"v_add_u32 v{vA}, s26, v8")
    def fm(i, t):
        aa, bb = t >> 1, t & 1
        d = ACC + t*16
        return f"v_mfma_f32_32x32x16_bf16 {vr(d,16)}, {vr(WO+8*i+4*aa,4)}, {vr(OF+8*i+4*bb,4)}, {vr(d,16)}"
    def wr(t):
        aa, bb = t >> 1, t & 1
        return [f"ds_write_b128 v{vA}, {vr(ACC+t*16+4*q,4)} offset:{bb*32*272 + aa*128 + q*32}" for q in range(4)]
    for i in range(4):
        a(f"s_waitcnt vmcnt({2*(7-i)})")
        for t in range(4): a(fm(i, t))
    for i in range(4, 8):
        a(f"s_waitcnt vmcnt({2*(7-i)})")
        a(fm(i, 0))
    for i in range(4, 8): a(fm(i, 1))
    for i in range(4, 8): a(fm(i, 2))
    a("s_nop 3")
    a.extend(wr(0))
    for i in range(4, 8): a(fm(i, 3))
    a.extend(wr(1))
    a("s_nop 3")
    a.extend(wr(2))
    a("s_nop 3")
    a.extend(wr(3))
    ST(5)
    a(f"{name}_red:")
    a(f"v_lshrrev_b32 v8, 3, v0")
    a(f"v_mul_u32_u24 v8, 272, v8")
    a(f"v_and_b32 v9, 7, v0")
    a(f"v_lshlrev_b32 v9, 5, v9")
    a(f"v_add_u32 v6, v8, v9")
    a("s_waitcnt lgkmcnt(0)")
    a("s_barrier          ; B3e")
    SS = 80
    for w in range(4):
        for i in range(2):
            a(f"ds_read_b128 {vr(SS+w*8+4*i,4)}, v6 offset:{w*17408 + i*16}")
    a("s_waitcnt vmcnt(0)")
    for i in range(4):
        a(f"v_lshlrev_b32 v{16+2*i}, 16, v{XR+i}")
        a(f"v_and_b32 v{17+2*i}, 0xffff0000, v{XR+i}")
    for w in range(4):
        a(f"s_waitcnt lgkmcnt({2*(3-w)})")
        for i in range(8): a(f"v_add_f32 v{16+i}, v{16+i}, v{SS+w*8+i}")
    for i in range(4): a(f"v_cvt_pk_bf16_f32 v{32+i}, v{16+2*i}, v{17+2*i}")
    a(f"buffer_store_dwordx4 {vr(32,4)}, v7, s[36:39], s25 offen")
    a(f"s_branch {name}_done")
    a(f"{name}_end2:")
    a("s_endpgm")
    kernel_desc(a, name, 232 if stamps else 216)

if __name__ == "__main__":
    a = Asm()
    a('.amdgcn_target "amdgcn-amd-amdhsa--gfx950"')
    gen_k2(a)
    txt = a.text()
    ins, labels = parse_kernel(txt, "attn_kernel")
    for (wave, safe) in ((3, 1), (3, 0), (4, 1), (5, 1), (7, 1)):
        tr = trace(ins, labels, {2: 5, "wave": wave, "$safe": safe, "$flag": max(wave-4, 0)})
        pr = check_trace(tr)
        print("wave", wave, "safe", safe, "trace len", len(tr), "barriers", sum(1 for I in tr if I.op == "s_barrier"), "problems", len(pr))
        for p in pr[:20]: print("  ", p)
    open("k2f.s", "w").write(txt)
```

```python
from common import *
LDS_K, LDS_V, LDS_ONES = 0, 65536, 131072
K2_LDS = 141312
NGW = 4
def gen_k2(a, name="attn_kernel", stamps=False, exp={}):
    kernel_header(a, name)
    Q, KB, VB = [8, 12], [16, 20], [24, 32]
    P, S, O, C = [40, 48], [[56, 72], [88, 104]], [120, 136], 152
    vL16, vK, vV, vInc, vT, vT2 = 1, 2, 3, 4, 5, 6
    sW, sHead, sQt, sI, sG, sL = 16, 17, 18, 20, 21, 22
    SC = " sc1" if exp.get("sc1", 1) else ""
    a("s_cmp_ge_u32 s2, 256")
    a(f"s_cbranch_scc1 {name}_end")
    a(f"s_load_dwordx2 s[4:5], s[0:1], {ARG_WS}")
    a(f"s_load_dwordx2 s[6:7], s[0:1], {ARG_X}")
    a(f"s_load_dwordx2 s[32:33], s[0:1], {ARG_OUT}")
    ST = Stamper(a, stamps, 230, 0)
    ST.init()
    a(f"v_lshrrev_b32 v{vT}, 6, v0")
    a(f"v_and_b32 v{vL16}, 63, v0")
    a(f"v_readfirstlane_b32 s{sW}, v{vT}")
    a(f"v_lshlrev_b32 v{vL16}, 4, v{vL16}")
    a("s_and_b32 s17, s2, 7")
    a("s_lshr_b32 s18, s2, 3")
    a("s_and_b32 s19, s18, 3")
    a("s_lshl_b32 s26, s17, 2")
    a(f"s_add_u32 s{sHead}, s26, s19")
    a("s_lshr_b32 s27, s18, 2")
    a("s_mov_b32 s34, s27")
    a(f"s_lshl_b32 s23, s{sHead}, 16")
    a(f"s_cmp_ge_u32 s{sW}, 4")
    a(f"s_cbranch_scc1 {name}_G")
    XR = 208
    def resid():
        srd(a, 12, 6, 2048*1024)
        srd(a, 36, 32, 2048*1024)
        a(f"v_lshrrev_b32 v9, 3, v0")
        a(f"v_lshlrev_b32 v9, 10, v9")
        a(f"v_and_b32 v10, 7, v0")
        a(f"v_lshlrev_b32 v10, 4, v10")
        a(f"v_add_u32 v7, v9, v10")
        a(f"s_lshl_b32 s25, s{sHead}, 16")
        a(f"s_lshl_b32 s26, s34, 7")
        a("s_add_u32 s25, s25, s26")
        a(f"buffer_load_dwordx4 {vr(XR,4)}, v7, s[12:15], s25 offen")
    MF = "v_mfma_f32_32x32x16_bf16"
    a("s_lshl_b32 s18, s27, 3")
    a(f"s_lshl_b32 s19, s{sW}, 1")
    a(f"s_add_u32 s{sQt}, s18, s19")
    a(f"s_lshl_b32 s24, s{sQt}, 10")
    a("s_add_u32 s24, s24, s23")
    a(f"s_lshl_b32 s{sL}, s{sW}, 11")
    a(f"s_add_u32 s{sG}, s23, s{sL}")
    a(f"s_add_u32 s{sG}, s{sG}, {WS_K}")
    a("s_waitcnt lgkmcnt(0)")
    srd(a, 8, 4, WS_SIZE)
    a(f"s_mov_b32 m0, s{sL}")
    a(f"s_add_u32 s25, s{sG}, {WS_V-WS_K}")
    a(f"buffer_load_dwordx4 v{vL16}, s[8:11], s{sG} offen lds")
    a(f"buffer_load_dwordx4 v{vL16}, s[8:11], s{sG} offen offset:1024 lds")
    a(f"s_add_u32 m0, s{sL}, {LDS_V}")
    a(f"buffer_load_dwordx4 {vr(Q[0],4)}, v{vL16}, s[8:11], s24 offen")
    a(f"buffer_load_dwordx4 v{vL16}, s[8:11], s25 offen lds")
    a(f"buffer_load_dwordx4 v{vL16}, s[8:11], s25 offen offset:1024 lds")
    a(f"buffer_load_dwordx4 {vr(Q[1],4)}, v{vL16}, s[8:11], s24 offen offset:1024")
    a(f"v_lshlrev_b32 v{vT}, 4, v0")
    a(f"v_add_u32 v{vT}, {LDS_ONES}, v{vT}")
    a(f"v_and_b32 v{vT2}, 11, v0")
    a(f"v_cmp_eq_u32 vcc, 0, v{vT2}")
    a(f"v_mov_b32 v{vT2}, 0x3f803f80")
    if exp.get("allones"): a("s_mov_b64 vcc, -1")
    a("s_nop 0")
    a(f"v_cndmask_b32 v{P[0]}, 0, v{vT2}, vcc")
    for i in range(1, 4):
        a(f"v_mov_b32 v{P[0]+i}, v{P[0]}")
    for off in (0, 4096, 6144):
        a(f"ds_write_b128 v{vT}, {vr(P[0],4)} offset:{off}")
    a(f"v_mov_b32 v{vK}, v{vL16}")
    a(f"v_and_b32 v{vT}, 15, v0")
    a(f"v_lshlrev_b32 v{vT}, 4, v{vT}")
    a(f"v_and_b32 v{vT2}, 32, v0")
    a(f"v_lshlrev_b32 v{vT2}, 3, v{vT2}")
    a(f"v_add_u32 v{vT}, v{vT}, v{vT2}")
    a(f"v_add_u32 v{vV}, {LDS_V}, v{vT}")
    a(f"v_and_b32 v{vT}, 31, v0")
    a(f"v_subrev_u32 v{vT2}, 20, v{vT}")
    a(f"v_cmp_gt_u32 vcc, 8, v{vT2}")
    a(f"v_mov_b32 v{vT2}, {LDS_ONES}")
    a(f"v_mov_b32 v{vInc}, {LDS_ONES+64}")
    a(f"v_cndmask_b32 v{vT2}, v{vT2}, v{vInc}, vcc")
    a(f"v_and_b32 v{vInc}, 27, v0")
    a(f"v_cmp_ne_u32 vcc, 16, v{vInc}")
    a(f"v_add_u32 v{vInc}, 16, v{vT2}")
    a("s_nop 0")
    a(f"v_cndmask_b32 v{vT2}, v{vT2}, v{vInc}, vcc")
    a(f"v_cmp_gt_u32 vcc, 16, v{vT}")
    a(f"v_mov_b32 v{vInc}, 0")
    a(f"v_mov_b32 v{vT}, 8192")
    a(f"v_cndmask_b32 v{vV}, v{vT2}, v{vV}, vcc")
    a(f"v_cndmask_b32 v{vInc}, v{vInc}, v{vT}, vcc")
    for i in range(32):
        a(f"v_mov_b32 v{O[0]+i}, 0")
    for i in range(4):
        a(f"v_mov_b32 v{P[1]+4+i}, 0")
        a(f"v_mov_b32 v{VB[1]+4+i}, 0")
    a("s_waitcnt vmcnt(0) lgkmcnt(0)")
    a("s_barrier")
    a(f"ds_read_b128 {vr(KB[0],4)}, v{vK}")
    a(f"ds_read_b128 {vr(KB[1],4)}, v{vK} offset:1024")
    a(f"ds_read_b128 {vr(VB[0],4)}, v{vV}")
    a(f"ds_read_b128 {vr(VB[0]+4,4)}, v{vV} offset:512")
    a(f"s_mov_b32 s{sI}, 0")
    a("s_waitcnt lgkmcnt(3)")
    a(f"{MF} {vr(S[0][0],16)}, {vr(KB[0],4)}, {vr(Q[0],4)}, 0")
    a(f"{MF} {vr(S[1][0],16)}, {vr(KB[0],4)}, {vr(Q[1],4)}, 0")
    a("s_nop 15")
    ST(1)
    if exp.get("aprio"): a(f"s_setprio {exp['aprio']}")
    a(".p2align 6")
    a(f"{name}_loop:")
    for p in range(8):
        cur, nxt = p & 1, (p & 1) ^ 1
        E = lambda x, lo, hi: [f"v_exp_f32 v{S[x][cur]+i}, v{S[x][cur]+i}" for i in range(lo, hi)]
        Cv = lambda x, lo, hi: [f"v_cvt_pk_bf16_f32 v{P[x]+i}, v{S[x][cur]+2*i}, v{S[x][cur]+2*i+1}" for i in range(lo, hi)]
        QK = lambda x: [f"{MF} {vr(S[x][nxt],16)}, {vr(KB[nxt],4)}, {vr(Q[x],4)}, 0"]
        PV0 = lambda x: [f"{MF} {vr(O[x],16)}, {vr(VB[cur],4)}, {vr(P[x],4)}, {vr(O[x],16)}"]
        PV1 = lambda x: [f"{MF} {vr(O[x],16)}, {vr(VB[cur]+4,4)}, {vr(P[x]+4,4)}, {vr(O[x],16)}"]
        PV1d = [f"{MF} {vr(O[1],16)}, {vr(VB[nxt]+4,4)}, {vr(P[1]+4,4)}, {vr(O[1],16)}"]
        RK = [f"ds_read_b128 {vr(KB[cur],4)}, v{vK} offset:{(p+2)*1024}"]
        RV0 = [f"ds_read_b128 {vr(VB[nxt],4)}, v{vV} offset:{(p+1)*1024}"]
        RV1 = [f"ds_read_b128 {vr(VB[nxt]+4,4)}, v{vV} offset:{(p+1)*1024+512}"]
        if exp.get("noread"): RK = RV0 = RV1 = []
        a.extend(["s_waitcnt lgkmcnt(0)"] + QK(0))
        if p == 6:
            a(f"s_cmp_lt_u32 s{sI}, 3")
            a(f"s_cbranch_scc1 {name}_sync")
            a(f"{name}_syncret:")
        order = exp.get("order", 0)
        if order == 0:
            a.extend(RK + E(0,0,4) + PV1d + RV0 + RV1 + E(0,4,8) + Cv(0,0,4) + QK(1) + E(0,8,12) + PV0(0) + E(0,12,16) + Cv(0,4,8)
                     + E(1,0,4) + PV1(0) + E(1,4,8) + Cv(1,0,4) + E(1,8,12) + PV0(1) + E(1,12,16) + Cv(1,4,8))
        elif order == 1:
            a.extend(RK + E(0,0,4) + PV1d + RV1 + E(0,4,8) + Cv(0,0,4) + QK(1) + RV0 + E(0,8,12) + PV0(0) + E(0,12,16) + Cv(0,4,8)
                     + E(1,0,4) + PV1(0) + E(1,4,8) + Cv(1,0,4) + E(1,8,12) + PV0(1) + E(1,12,16) + Cv(1,4,8))
    if stamps and exp.get("itstamp"):
        a(f"s_add_u32 m0, s{sI}, 8")
        a("s_memtime s[84:85]")
        a("s_waitcnt lgkmcnt(0)")
        a("s_nop 3")
        a("v_writelane_b32 v230, s84, m0")
    a(f"v_add_u32 v{vK}, 8192, v{vK}")
    a(f"v_add_u32 v{vV}, v{vInc}, v{vV}")
    a(f"s_add_u32 s{sI}, s{sI}, 1")
    a(f"s_cmp_lt_u32 s{sI}, 8")
    a(f"s_cbranch_scc1 {name}_loop")
    a("s_waitcnt lgkmcnt(0)")
    a(f"{MF} {vr(O[1],16)}, {vr(VB[1]+4,4)}, {vr(P[1]+4,4)}, {vr(O[1],16)}")
    a("s_nop 15")
    ST(2)
    vSt = 7
    for x in range(2):
        Ox, Px, Qx = O[x], P[x], Q[x]
        a(f"v_mul_f32 v{vT}, 0, v{Ox}")
        for i in range(1, 8): a(f"v_fmac_f32 v{vT}, 0, v{Ox+i}")
        a(f"v_add_f32 v{vT}, v{vT}, v{Ox+8}")
        a(f"s_mov_b32 s26, 0x21800000")
        a(f"s_mov_b32 s27, 0x5d800000")
        a(f"v_cmp_le_f32 s[28:29], s26, v{vT}")
        a(f"v_cmp_ge_f32 vcc, s27, v{vT}")
        a("s_nop 1")
        a("s_and_b64 s[28:29], s[28:29], vcc")
        a("s_cmp_eq_u64 s[28:29], exec")
        a(f"s_cbranch_scc0 {name}_slow{x}")
        a(f"{name}_fin{x}:")
        a(f"v_rcp_f32 v{vT}, v{Ox+8}")
        a(f"s_add_u32 s24, s{sQt}, {x}")
        a(f"s_mul_i32 s24, s24, 144")
        a(f"s_add_u32 s24, s24, s{sHead}")
        a("s_lshl_b32 s24, s24, 10")
        a(f"s_add_u32 s24, s24, {WS_A2}")
        for i in range(8): a(f"v_mul_f32 v{Ox+i}, v{Ox+i}, v{vT}")
        for i in range(4): a(f"v_cvt_pk_bf16_f32 v{Px+i}, v{Ox+2*i}, v{Ox+2*i+1}")
        a(f"v_add_u32 v{vT2}, s24, v{vL16}")
        a(f"global_store_dwordx4 v{vT2}, {vr(Px,4)}, s[4:5] sc1")
    a("s_waitcnt vmcnt(0)")
    ST(3)
    a("s_barrier")
    a(f"s_cmp_lg_u32 s{sW}, 0")
    a(f"s_cbranch_scc1 {name}_nosig")
    a("s_lshl_b32 s24, s34, 2")
    a(f"s_lshr_b32 s26, s{sHead}, 3")
    a("s_add_u32 s24, s24, s26")
    a("s_lshl_b32 s24, s24, 7")
    a(f"s_add_u32 s24, s24, {WS_CNT}")
    a(f"v_mov_b32 v{vT}, s24")
    a(f"v_mov_b32 v{vT2}, 1")
    a("s_mov_b64 exec, 1")
    a(f"global_atomic_add v{vT}, v{vT2}, s[4:5] sc1")
    a("s_mov_b64 exec, -1")
    a(f"{name}_nosig:")
    resid()
    a(f"s_branch {name}_red")
    a(f"{name}_done:")
    ST.dump(sW, None)
    a(f"{name}_end:")
    a("s_endpgm")
    a(f"{name}_sync:")
    a(f"s_cmp_eq_u32 s{sI}, 1")
    a(f"s_cbranch_scc1 {name}_syncret")
    a("s_barrier")
    a(f"s_branch {name}_syncret")
    for x in range(2):
        Ox, Px, Qx, S0 = O[x], P[x], Q[x], S[x][0]
        a(f"{name}_slow{x}:")
        a(f"v_mov_b32 v{vK}, v{vL16}")
        a(f"v_mov_b32 v{vT}, 0xff800000")
        a(f"s_mov_b32 s{sI}, 0")
        a(f"{name}_slow{x}a:")
        a(f"ds_read_b128 {vr(KB[0],4)}, v{vK}")
        a(f"v_add_u32 v{vK}, 1024, v{vK}")
        a("s_waitcnt lgkmcnt(0)")
        a(f"{MF} {vr(S0,16)}, {vr(KB[0],4)}, {vr(Qx,4)}, 0")
        a("s_nop 15")
        for i in range(8): a(f"v_max3_f32 v{vT}, v{vT}, v{S0+2*i}, v{S0+2*i+1}")
        a(f"s_add_u32 s{sI}, s{sI}, 1")
        a(f"s_cmp_lt_u32 s{sI}, 64")
        a(f"s_cbranch_scc1 {name}_slow{x}a")
        a(f"v_mov_b32 v{vT2}, v{vT}")
        a("s_nop 1")
        a(f"v_permlane32_swap_b32 v{vT}, v{vT2}")
        a("s_nop 1")
        a(f"v_max_f32 v{vT}, v{vT}, v{vT2}")
        for i in range(16): a(f"v_sub_f32 v{C+i}, 0, v{vT}")
        for i in range(16): a(f"v_mov_b32 v{Ox+i}, 0")
        a(f"v_mov_b32 v{vK}, v{vL16}")
        a(f"v_lshlrev_b32 v{vT2}, 3, v{vInc}")
        a(f"v_sub_u32 v{vT2}, v{vV}, v{vT2}")
        a(f"v_lshrrev_b32 v{vSt}, 3, v{vInc}")
        a(f"s_mov_b32 s{sI}, 0")
        a(f"{name}_slow{x}b:")
        a(f"ds_read_b128 {vr(KB[0],4)}, v{vK}")
        a(f"ds_read_b128 {vr(VB[0],4)}, v{vT2}")
        a(f"ds_read_b128 {vr(VB[0]+4,4)}, v{vT2} offset:512")
        a(f"v_add_u32 v{vK}, 1024, v{vK}")
        a(f"v_add_u32 v{vT2}, v{vSt}, v{vT2}")
        a("s_waitcnt lgkmcnt(0)")
        a(f"{MF} {vr(S0,16)}, {vr(KB[0],4)}, {vr(Qx,4)}, {vr(C,16)}")
        a("s_nop 15")
        for i in range(16): a(f"v_exp_f32 v{S0+i}, v{S0+i}")
        a("s_nop 0")
        for i in range(8): a(f"v_cvt_pk_bf16_f32 v{Px+i}, v{S0+2*i}, v{S0+2*i+1}")
        a("s_nop 1")
        a(f"{MF} {vr(Ox,16)}, {vr(VB[0],4)}, {vr(Px,4)}, {vr(Ox,16)}")
        a(f"{MF} {vr(Ox,16)}, {vr(VB[0]+4,4)}, {vr(Px+4,4)}, {vr(Ox,16)}")
        a(f"s_add_u32 s{sI}, s{sI}, 1")
        a(f"s_cmp_lt_u32 s{sI}, 64")
        a(f"s_cbranch_scc1 {name}_slow{x}b")
        a("s_nop 15")
        a(f"s_branch {name}_fin{x}")
    a(f"{name}_G:")
    sU = 30
    ACC, RING, R = 16, 80, 4
    vT0, vT1, vW0, vW1, vA = 2, 3, 4, 5, 6
    a(f"s_sub_u32 s{sU}, s{sW}, 4")
    a(f"s_lshl_b32 s{sL}, s{sU}, 11")
    a(f"s_add_u32 s{sL}, s{sL}, 8192")
    a(f"s_add_u32 s{sG}, s23, s{sL}")
    a(f"s_add_u32 s{sG}, s{sG}, {WS_K}")
    a("s_waitcnt lgkmcnt(0)")
    srd(a, 8, 4, WS_SIZE)
    def stage():
        a(f"s_mov_b32 m0, s{sL}")
        a(f"s_add_u32 s25, s{sG}, {WS_V-WS_K}")
        a(f"buffer_load_dwordx4 v{vL16}, s[8:11], s{sG} offen lds")
        a(f"buffer_load_dwordx4 v{vL16}, s[8:11], s{sG} offen offset:1024 lds")
        a(f"s_add_u32 m0, s{sL}, {LDS_V}")
        a(f"s_add_u32 s{sL}, s{sL}, 8192")
        a(f"buffer_load_dwordx4 v{vL16}, s[8:11], s25 offen lds")
        a(f"buffer_load_dwordx4 v{vL16}, s[8:11], s25 offen offset:1024 lds")
        a(f"s_add_u32 s{sG}, s{sG}, 8192")
    stage()
    if exp.get("codepf", 1):
        code_touch(a, name + "_cp", name, name + "_end2", 8, 9, 40, name)
    a("s_barrier          ; Ba")
    stage()
    a("s_waitcnt vmcnt(0)")
    a("s_barrier          ; Bb")
    a("s_mov_b32 s28, 5")
    a(f"{name}_Gst:")
    stage()
    a("s_sub_u32 s28, s28, 1")
    a("s_cmp_lg_u32 s28, 0")
    a(f"s_cbranch_scc1 {name}_Gst")
    a(f"s_mul_i32 s22, s{sHead}, {2*144*1024}")
    a(f"s_add_u32 s22, s22, {WS_A2}")
    a(f"s_mul_i32 s23, s27, {2*144*1024}")
    a(f"s_add_u32 s23, s23, {WS_WT}")
    a(f"s_mul_i32 s24, s{sU}, {28*1024}")
    a(f"s_add_u32 s24, s24, {32*1024}")
    a(f"v_add_u32 v{vT0}, s22, v{vL16}")
    a(f"v_add_u32 v{vW0}, s23, v{vL16}")
    a(f"v_add_u32 v{vT1}, {144*1024}, v{vT0}")
    a(f"v_add_u32 v{vW1}, {144*1024}, v{vW0}")
    if exp.get("gprio", 0): a(f"s_setprio {exp.get('gprio', 0)}")
    ST(1)
    def loads(slot):
        b = RING + slot*16
        for i, v in enumerate((vT0, vT1, vW0, vW1)):
            a(f"buffer_load_dwordx4 {vr(b+4*i,4)}, v{v}, s[8:11], s24 offen offset:{slot*1024}")
    gap = exp.get("ggap", 0)
    def mfmas(slot, first=False):
        b = RING + slot*16
        for aa in range(2):
            for bb in range(2):
                d = ACC + (aa*2+bb)*16
                a(f"v_mfma_f32_32x32x16_bf16 {vr(d,16)}, {vr(b+8+4*aa,4)}, {vr(b+4*bb,4)}, {'0' if first else vr(d,16)}")
                if gap == 1: a("s_nop 15")
                if gap == 2: a("s_sleep 1")
    for i in range(R): loads(i)
    a("s_add_u32 s24, s24, 4096")
    for i in range(R):
        a(f"s_waitcnt vmcnt({4*(R-1)})")
        mfmas(i, first=(i == 0))
        loads(i)
    a("s_add_u32 s24, s24, 4096")
    a("s_barrier          ; Bc")
    a("s_mov_b32 s28, 5")
    a(f"{name}_Gl:")
    for i in range(R):
        a(f"s_waitcnt vmcnt({4*(R-1)})")
        mfmas(i)
        loads(i)
    a("s_add_u32 s24, s24, 4096")
    a("s_sub_u32 s28, s28, 1")
    a("s_cmp_lg_u32 s28, 0")
    a(f"s_cbranch_scc1 {name}_Gl")
    for i in range(R):
        a(f"s_waitcnt vmcnt({4*(R-1-i)})")
        mfmas(i)
    ST(2)
    WO, OF = 80, 144
    a(f"s_lshl_b32 s24, s{sU}, 13")
    for i in range(8):
        for j, v in enumerate((vW0, vW1)):
            a(f"buffer_load_dwordx4 {vr(WO+8*i+4*j,4)}, v{v}, s[8:11], s24 offen offset:{(i%4)*1024}")
        if i == 3: a("s_add_u32 s24, s24, 4096")
    resid()
    a(f"s_lshl_b32 s24, s{sU}, 13")
    a(f"v_add_u32 v{vT0}, s24, v{vT0}")
    a(f"v_add_u32 v{vT1}, s24, v{vT1}")
    a("s_barrier          ; B1e")
    ST(3)
    a(f"s_lshr_b32 s24, s{sHead}, 2")
    a("s_lshl_b32 s24, s24, 2")
    a(f"s_add_u32 s24, s24, s{sU}")
    a("s_lshl_b32 s24, s24, 7")
    a(f"s_add_u32 s24, s24, {WS_CNT}")
    a(f"v_mov_b32 v8, s24")
    a("s_mov_b32 s28, 0x10000")
    a(f"{name}_Gpoll:")
    a("global_load_dword v9, v8, s[4:5] sc1")
    a("s_waitcnt vmcnt(0)")
    a(f"v_readfirstlane_b32 s29, v9   ; @chk s29=8")
    a("s_nop 1")
    a("s_cmp_ge_u32 s29, 8")
    a(f"s_cbranch_scc1 {name}_Gnp")
    a("s_sub_u32 s28, s28, 1")
    a("s_cmp_lg_u32 s28, 0")
    a(f"s_cbranch_scc1 {name}_Gpoll")
    a(f"{name}_Gnp:")
    ST(4)
    for i in range(8):
        for j, v in enumerate((vT0, vT1)):
            a(f"global_load_dwordx4 {vr(OF+8*i+4*j,4)}, v{v}, s[4:5] offset:{(i%4)*1024} sc1")
        if i == 3:
            a(f"v_add_u32 v{vT0}, 4096, v{vT0}")
            a(f"v_add_u32 v{vT1}, 4096, v{vT1}")
    a(f"v_and_b32 v8, 31, v0")
    a(f"v_mul_u32_u24 v8, 272, v8")
    a(f"v_and_b32 v9, 32, v0")
    a(f"v_lshrrev_b32 v9, 1, v9")
    a(f"v_add_u32 v8, v8, v9")
    a(f"s_mul_i32 s26, s{sU}, 17408")
    a(f"v_add_u32 v{vA}, s26, v8")
    def fm(i, t):
        aa, bb = t >> 1, t & 1
        d = ACC + t*16
        return f"v_mfma_f32_32x32x16_bf16 {vr(d,16)}, {vr(WO+8*i+4*aa,4)}, {vr(OF+8*i+4*bb,4)}, {vr(d,16)}"
    def wr(t):
        aa, bb = t >> 1, t & 1
        return [f"ds_write_b128 v{vA}, {vr(ACC+t*16+4*q,4)} offset:{bb*32*272 + aa*128 + q*32}" for q in range(4)]
    for i in range(4):
        a(f"s_waitcnt vmcnt({2*(7-i)})")
        for t in range(4): a(fm(i, t))
    for i in range(4, 8):
        a(f"s_waitcnt vmcnt({2*(7-i)})")
        a(fm(i, 0))
    for i in range(4, 8): a(fm(i, 1))
    for i in range(4, 8): a(fm(i, 2))
    a("s_nop 3")
    a.extend(wr(0))
    for i in range(4, 8): a(fm(i, 3))
    a.extend(wr(1))
    a("s_nop 3")
    a.extend(wr(2))
    a("s_nop 3")
    a.extend(wr(3))
    ST(5)
    a(f"{name}_red:")
    a(f"v_lshrrev_b32 v8, 3, v0")
    a(f"v_mul_u32_u24 v8, 272, v8")
    a(f"v_and_b32 v9, 7, v0")
    a(f"v_lshlrev_b32 v9, 5, v9")
    a(f"v_add_u32 v6, v8, v9")
    a("s_waitcnt lgkmcnt(0)")
    a("s_barrier          ; B3e")
    SS = 80
    for w in range(4):
        for i in range(2):
            a(f"ds_read_b128 {vr(SS+w*8+4*i,4)}, v6 offset:{w*17408 + i*16}")
    a("s_waitcnt vmcnt(0)")
    for i in range(4):
        a(f"v_lshlrev_b32 v{16+2*i}, 16, v{XR+i}")
        a(f"v_and_b32 v{17+2*i}, 0xffff0000, v{XR+i}")
    for w in range(4):
        a(f"s_waitcnt lgkmcnt({2*(3-w)})")
        for i in range(8): a(f"v_add_f32 v{16+i}, v{16+i}, v{SS+w*8+i}")
    for i in range(4): a(f"v_cvt_pk_bf16_f32 v{32+i}, v{16+2*i}, v{17+2*i}")
    a(f"buffer_store_dwordx4 {vr(32,4)}, v7, s[36:39], s25 offen")
    a(f"s_branch {name}_done")
    a(f"{name}_end2:")
    a("s_endpgm")
    kernel_desc(a, name, 232 if stamps else 216)

if __name__ == "__main__":
    a = Asm()
    a('.amdgcn_target "amdgcn-amd-amdhsa--gfx950"')
    gen_k2(a)
    txt = a.text()
    ins, labels = parse_kernel(txt, "attn_kernel")
    for (wave, safe) in ((3, 1), (3, 0), (4, 1), (5, 1), (7, 1)):
        tr = trace(ins, labels, {2: 5, "wave": wave, "$safe": safe, "$flag": max(wave-4, 0)})
        pr = check_trace(tr)
        print("wave", wave, "safe", safe, "trace len", len(tr), "barriers", sum(1 for I in tr if I.op == "s_barrier"), "problems", len(pr))
        for p in pr[:20]: print("  ", p)
    open("k2f.s", "w").write(txt)
```

```python
from common import *
import math, struct
K1_LDS = 163840
def f2u(x): return struct.unpack("<I", struct.pack("<f", x))[0]
LOG2E = 1.4426950408889634
LN2 = 0.6931471805599453
QSCALE = 0.25*LOG2E
F_G0 = [0, 6, 12, 18, 24, 30, 36, 41, 46, 51]
F_N  = [6, 6, 6, 6, 6, 6, 5, 5, 5, 5]
CS_TABLE = list(zip(F_G0, F_N)) + [(8*i, 8) for i in range(6)]
def wg_decode(wg):
    x, idx = wg & 7, wg >> 3
    return 4*(x >> 1) + (idx & 3), 8*(x & 1) + (idx >> 2)

def weave(pre, main, fill, npre, start, end):
    out = list(pre) + fill[:npre]
    rest = fill[npre:]
    n = end - start
    k = 0
    for g, gap in enumerate(main):
        out += gap
        if start <= g < end:
            upto = (len(rest)*(g-start+1) + n - 1)//n
            out += rest[k:upto]; k = upto
    out += rest[k:]
    return out

def gen_k1(a, name, stamps=False, exp={}, next_kernel=None):
    kernel_header(a, name)
    X = 128; ACC = 16; E = 32; WB = 48; NWB = 8; T = 80
    BIAS = 100; XAUG = 104; SEL = 108; RTOK = 108
    PF = exp.get("pf", 4)
    SC = " sc1" if exp.get("sc1", 1) else ""
    vL16, vWa, vWn, vSt, vR, vB2, vC1 = 1, 2, 3, 4, 5, 6, 7
    t8, t9, t10, t11 = 8, 9, 10, 11
    vXA, vXB = 12, 13
    XNT = " nt" if exp.get("xnt") else ""
    TNT = " nt" if exp.get("tnt") else ""
    sW, sRB, sCS, sG0, sN, sTile = 32, 33, 34, 35, 36, 37
    sJ, sG, sSt, sStN, sRS, sNP, sStep = 38, 39, 40, 41, 44, 45, 46
    SX, SWm, SWS, SB1, SWO, SW2 = 8, 12, 16, 20, 24, 28
    a("s_cmp_ge_u32 s2, 256")
    a(f"s_cbranch_scc1 {name}_end")
    a("s_load_dwordx4 s[48:51], s[0:1], 0")
    a("s_load_dwordx2 s[52:53], s[0:1], 16")
    a("s_load_dwordx4 s[56:59], s[0:1], 32")
    a("s_load_dwordx2 s[60:61], s[0:1], 48")
    a(f"s_load_dwordx2 s[62:63], s[0:1], {ARG_WS}")
    ST = Stamper(a, stamps, 126, 1)
    ST.init()
    a(f"v_lshrrev_b32 v{t8}, 6, v0")
    a(f"v_and_b32 v{vL16}, 63, v0")
    a(f"v_readfirstlane_b32 s{sW}, v{t8}")
    a(f"v_lshlrev_b32 v{vL16}, 4, v{vL16}")
    a("s_lshr_b32 s4, s2, 3")
    if exp.get("xmap", 0):
        a("s_and_b32 s3, s2, 3")
        a("s_lshl_b32 s3, s3, 2")
        a("s_and_b32 s5, s4, 3")
        a(f"s_add_u32 s{sRB}, s3, s5")
        a("s_bfe_u32 s3, s2, 0x10002")
        a("s_lshl_b32 s3, s3, 3")
    else:
        a("s_bfe_u32 s3, s2, 0x20001")
        a("s_lshl_b32 s3, s3, 2")
        a("s_and_b32 s5, s4, 3")
        a(f"s_add_u32 s{sRB}, s3, s5")
        a("s_and_b32 s3, s2, 1")
        a("s_lshl_b32 s3, s3, 3")
    a("s_lshr_b32 s4, s4, 2")
    a(f"s_add_u32 s{sCS}, s3, s4")
    a(f"s_mul_i32 s4, s{sCS}, 6")
    a(f"s_sub_u32 s5, s{sCS}, 6")
    a(f"s_cmp_ge_u32 s{sCS}, 6")
    a("s_cselect_b32 s5, s5, 0")
    a("s_cselect_b32 s6, 5, 6")
    a("s_sub_u32 s4, s4, s5")
    a(f"s_sub_u32 s5, s{sCS}, 10")
    a("s_lshl_b32 s5, s5, 3")
    a(f"s_cmp_lt_u32 s{sCS}, 10")
    a(f"s_cselect_b32 s{sG0}, s4, s5")
    a(f"s_cselect_b32 s{sN}, s6, 8")
    a(f"s_movk_i32 s4, 3072")
    a(f"s_cselect_b32 s{sRS}, 3584, s4")
    a(f"s_and_b32 s3, s{sG0}, 1")
    a(f"s_add_u32 s3, s3, s{sN}")
    a("s_add_u32 s3, s3, 1")
    a(f"s_lshr_b32 s{sNP}, s3, 1")
    a(f"s_lshl_b32 s{sTile}, s{sRB}, 2")
    a(f"s_add_u32 s{sTile}, s{sTile}, s{sW}")
    a("s_waitcnt lgkmcnt(0)")
    ST(1)
    a(f"s_cmp_ge_u32 s{sW}, 4")
    a(f"s_cbranch_scc1 {name}_loader")
    srd(a, SX, 48, 2048*1024)
    a(f"v_bfe_u32 v{t8}, v0, 3, 3")
    a(f"v_lshlrev_b32 v{t8}, 10, v{t8}")
    a(f"v_and_b32 v{t9}, 7, v0")
    a(f"v_bfe_u32 v{t10}, v0, 4, 2")
    a(f"v_xor_b32 v{t9}, v{t9}, v{t10}")
    a(f"v_lshlrev_b32 v{t9}, 4, v{t9}")
    a(f"v_add_u32 v{vXA}, v{t8}, v{t9}")
    a(f"v_xor_b32 v{vXB}, 64, v{vXA}")
    a(f"s_lshl_b32 s3, s{sW}, 15")
    a("s_add_u32 s3, s3, 32768")
    a(f"s_lshl_b32 s4, s{sTile}, 15")
    def xchunk():
        for rg in range(4):
            a(f"s_add_u32 m0, s6, {rg*1024}" if rg else "s_mov_b32 m0, s6")
            a(f"s_add_u32 s5, s7, {rg*8192}" if rg else "s_mov_b32 s5, s7")
            a(f"buffer_load_dwordx4 v{vXA if rg % 2 == 0 else vXB}, s[{SX}:{SX+3}], s5 offen{XNT} lds")
        a("s_add_u32 s6, s6, 4096")
        a("s_add_u32 s7, s7, 128")
    a("s_mov_b32 s6, s3")
    a("s_mov_b32 s7, s4")
    NUP = exp.get("nup", 4)
    a(f"s_mov_b32 s42, {NUP}")
    a(f"{name}_xl:")
    xchunk()
    a("s_sub_u32 s42, s42, 1")
    a("s_cmp_lg_u32 s42, 0")
    a(f"s_cbranch_scc1 {name}_xl")
    ST(2)
    srd(a, SWS, 62, WS_SIZE)
    a(f"v_and_b32 v{t8}, 31, v0")
    a(f"v_bfe_u32 v{t9}, v0, 5, 1")
    a(f"v_lshlrev_b32 v{t9}, 3, v{t9}")
    a(f"v_sub_u32 v{t8}, v{t8}, v{t9}")
    a(f"v_mov_b32 v{t10}, 0x3f80")
    a(f"v_mov_b32 v{t11}, 0x3f800000")
    for r in range(4):
        a(f"v_cmp_eq_u32 vcc, {2*r}, v{t8}")
        a(f"v_cmp_eq_u32 s[42:43], {2*r+1}, v{t8}")
        a(f"v_mov_b32 v{SEL+r}, 0")
        a(f"v_mov_b32 v{BIAS+r}, 0")
        a(f"v_cndmask_b32 v{SEL+r}, v{SEL+r}, v{t10}, vcc")
        a(f"v_cndmask_b32 v{SEL+r}, v{SEL+r}, v{t11}, s[42:43]")
        a(f"v_mov_b32 v{XAUG+r}, 0")
    XA = 80
    a(f"v_bfe_u32 v{t8}, v0, 3, 2")
    a(f"v_lshlrev_b32 v{t8}, 10, v{t8}")
    a(f"v_and_b32 v{t9}, 7, v0")
    a(f"v_lshlrev_b32 v{t9}, 7, v{t9}")
    a(f"v_add_u32 v{t8}, v{t8}, v{t9}")
    a(f"v_bfe_u32 v{t9}, v0, 1, 3")
    a(f"v_bfe_u32 v{t10}, v0, 5, 1")
    a(f"v_xor_b32 v{t9}, v{t9}, v{t10}")
    a(f"v_lshlrev_b32 v{t9}, 4, v{t9}")
    a(f"v_add_u32 v{t8}, v{t8}, v{t9}")
    a(f"v_add_u32 v{t8}, s3, v{t8}")
    for j in range(4): a(f"v_xor_b32 v{XA+j}, {32*j}, v{t8}")
    a(f"v_bfe_u32 v{t8}, v0, 5, 1")
    a(f"v_lshlrev_b32 v{t8}, 2, v{t8}")
    a(f"v_bfe_u32 v{t10}, v0, 2, 2")
    a(f"v_add_u32 v{t8}, v{t8}, v{t10}")
    a(f"v_lshlrev_b32 v{t8}, 7, v{t8}")
    a(f"v_bfe_u32 v{t10}, v0, 4, 1")
    a(f"v_lshlrev_b32 v{t10}, 1, v{t10}")
    a(f"v_bfe_u32 v{t11}, v0, 1, 1")
    a(f"v_add_u32 v{t10}, v{t10}, v{t11}")
    a(f"v_bfe_u32 v{t11}, v0, 3, 1")
    a(f"v_lshlrev_b32 v{t11}, 2, v{t11}")
    a(f"v_xor_b32 v{t10}, v{t10}, v{t11}")
    a(f"v_lshlrev_b32 v{t10}, 4, v{t10}")
    a(f"v_add_u32 v{t8}, v{t8}, v{t10}")
    a(f"v_and_b32 v{t10}, 1, v0")
    a(f"v_lshlrev_b32 v{t10}, 3, v{t10}")
    a(f"v_add_u32 v{vWa}, v{t8}, v{t10}")
    a(f"s_and_b32 s42, s{sG0}, 1")
    a("s_lshl_b32 s42, s42, 6")
    a(f"v_xor_b32 v{vWa}, s42, v{vWa}")
    a(f"v_mov_b32 v{t11}, 0x3f803f80")
    for i in range(16): a(f"v_mov_b32 v{ACC+i}, 0")
    def rdchunk(c):
        for j in range(4): a(f"ds_read_b128 {vr(X+4*(4*c+j),4)}, v{XA+j} offset:{4096*c}")
    def dots(c):
        for j in range(4):
            s = 4*c + j
            o = 4*(s & 1)
            a(f"s_waitcnt lgkmcnt({4+3-j if c < 7 else 3-j})") if False else None
            for r in range(4):
                a(f"v_dot2c_f32_bf16 v{ACC+o+r}, v{X+4*s+r}, v{t11}")
                a(f"v_dot2c_f32_bf16 v{ACC+8+o+r}, v{X+4*s+r}, v{X+4*s+r}")
    B0C = exp.get("b0c", 4)
    for c in range(8):
        if c == B0C: a("s_barrier")
        if c + NUP < 8: xchunk()
        issued = min(8, c + NUP + 1)
        a(f"s_waitcnt vmcnt({4*(issued - c - 1)})")
        rdchunk(c)
        if c >= 1:
            a("s_waitcnt lgkmcnt(4)")
            dots(c - 1)
    ST(3)
    a("s_waitcnt lgkmcnt(0)")
    dots(7)
    ST(4)
    a("s_barrier")
    ST(5)
    a("s_nop 1")
    for st in (4, 2, 1):
        for i in range(st):
            a(f"v_add_f32 v{ACC+i}, v{ACC+i}, v{ACC+i+st}")
            a(f"v_add_f32 v{ACC+8+i}, v{ACC+8+i}, v{ACC+8+i+st}")
    a(f"v_mov_b32 v{ACC+1}, v{ACC}")
    a(f"v_mov_b32 v{ACC+9}, v{ACC+8}")
    a("s_nop 1")
    a(f"v_permlane32_swap_b32 v{ACC}, v{ACC+1}")
    a(f"v_permlane32_swap_b32 v{ACC+8}, v{ACC+9}")
    a("s_nop 1")
    a(f"v_add_f32 v{ACC}, v{ACC}, v{ACC+1}")
    a(f"v_add_f32 v{ACC+8}, v{ACC+8}, v{ACC+9}")
    a(f"v_mul_f32 v{ACC}, {f2u(1.0/512):#x}, v{ACC}")
    a(f"v_mul_f32 v{ACC+8}, {f2u(1.0/512):#x}, v{ACC+8}")
    a(f"v_cvt_pk_bf16_f32 v{ACC+1}, v{ACC}, v{ACC}")
    a(f"v_fma_f32 v{t8}, -v{ACC}, v{ACC}, v{ACC+8}")
    a(f"v_lshlrev_b32 v{ACC+1}, 16, v{ACC+1}")
    a(f"v_max_f32 v{t8}, 0, v{t8}")
    NEG = 48
    for i in range(16): a(f"v_sub_f32 v{NEG+i}, 0, v{ACC+1}")
    SQ = t8
    DB = [ACC, E, 64, 80]
    def cM(s): a(f"v_mfma_f32_32x32x16_bf16 {vr(DB[s%4],16)}, {vr(SEL,4)}, {vr(X+4*s,4)}, {vr(NEG,16)}")
    def cC(s):
        for r in range(4): a(f"v_cvt_pk_bf16_f32 v{X+4*s+r}, v{DB[s%4]+2*r}, v{DB[s%4]+2*r+1}")
    a(f"v_cvt_pk_bf16_f32 v{SQ}, v{SQ}, v{SQ}")
    a(f"v_lshlrev_b32 v{SQ}, 16, v{SQ}")
    cM(0)
    a(f"v_add_f32 v{SQ}, {f2u(1e-5):#x}, v{SQ}")
    a(f"v_cvt_pk_bf16_f32 v{SQ}, v{SQ}, v{SQ}")
    a(f"v_lshlrev_b32 v{SQ}, 16, v{SQ}")
    a(f"v_sqrt_f32 v{SQ}, v{SQ}")
    cM(1)
    a(f"v_cvt_pk_bf16_f32 v{SQ+1}, v{SQ}, v{SQ}")
    a(f"v_and_b32 v{SQ+1}, 0xffff, v{SQ+1}")
    a(f"v_lshlrev_b32 v{SQ}, 16, v{SQ+1}")
    a(f"v_rcp_f32 v{vR}, v{SQ}")
    cM(2)
    a(f"v_bfe_u32 v{SQ+2}, v0, 5, 1")
    a(f"v_cmp_eq_u32 vcc, 0, v{SQ+2}")
    a("s_nop 1")
    a(f"v_cndmask_b32 v{XAUG}, 0, v{SQ+1}, vcc")
    for s in range(32):
        if s + 3 < 32: cM(s + 3)
        else: a("s_nop 3")
        cC(s)
    ST(6)
    a(f"s_mov_b32 s{sJ}, 0")
    a(f"s_mov_b32 s{sG}, s{sG0}")
    a(f"s_mov_b32 s{sSt}, 0x7ff00000")
    a(f"s_cmp_lt_u32 s{sCS}, 10")
    a(f"s_cbranch_scc1 {name}_F")
    a(f"s_cmp_lt_u32 s{sCS}, 14")
    a(f"s_cbranch_scc1 {name}_QK")
    a(f"s_branch {name}_V")

    def epilogue(ty):
        L = []
        P = T + 12
        st = lambda r, off: [f"buffer_store_dwordx4 {vr(r,4)}, v{vSt}, s[{SWS}:{SWS+3}], s{sSt} offen" + (f" offset:{off}" if off else "") + SC]
        if ty == "F":
            t, e, w = T, T+4, T+8
            for q in range(4):
                Eq = E + 4*q
                L += [f"v_mul_f32 v{t+i}, v{Eq+i}, v{vR}" for i in range(4)]
                L += [f"v_exp_f32 v{e+i}, v{t+i}" for i in range(4)]
                L += [f"v_add_f32 v{e+i}, 1.0, v{e+i}" for i in range(4)]
                L += [f"v_fma_f32 v{w+i}, v{e+i}, v{e+i}, 1.0" for i in range(4)]
                L += [f"v_rcp_f32 v{w+i}, v{w+i}" for i in range(4)]
                L += [f"v_fmaak_f32 v{w+i}, v{w+i}, v{vC1}, {f2u(LN2):#x}" for i in range(4)]
                L += [f"v_mul_f32 v{t+i}, v{t+i}, v{w+i}" for i in range(4)]
                L += [f"v_cvt_pk_bf16_f32 v{P+2*q+i}, v{t+2*i}, v{t+2*i+1}" for i in range(2)]
                if q == 1: L += st(P, 0)
                if q == 3: L += st(P+4, 1024)
        elif ty == "QK":
            for q in range(4):
                Eq = E + 4*q
                L += [f"v_mul_f32 v{T+i}, v{Eq+i}, v{vC1}" for i in range(4)]
                L += [f"v_cvt_pk_bf16_f32 v{P+2*q+i}, v{T+2*i}, v{T+2*i+1}" for i in range(2)]
                if q == 1: L += st(P, 0)
                if q == 3: L += [f"buffer_store_dwordx4 {vr(P+4,4)}, v{vB2}, s[{SWS}:{SWS+3}], s{sSt} offen{SC}"]
        else:
            for q in range(4):
                Eq = E + 4*q
                L += [f"v_mul_f32 v{T+i}, v{Eq+i}, v{RTOK+4*q+i}" for i in range(4)]
                L += [f"v_cvt_pk_bf16_f32 v{P+2*q+i}, v{T+2*i}, v{T+2*i+1}" for i in range(2)]
                if q == 1: L += st(P, 0)
                if q == 3: L += st(P+4, 512)
        return L

    def group_loop(ty):
        a(f"{name}_{ty}:")
        if ty == "F":
            a(f"v_mul_f32 v{vR}, {f2u(LOG2E):#x}, v{vR}")
            a(f"v_mov_b32 v{vC1}, {f2u(-2.0*struct.unpack('<f', struct.pack('<f', LN2))[0]):#x}")
            a(f"v_mov_b32 v{vSt}, v{vL16}")
            a(f"v_and_b32 v{vB2}, 31, v0")
            a(f"v_lshlrev_b32 v{vB2}, 1, v{vB2}")
            srd(a, SB1, 58, 1792*2)
            a(f"s_mul_i32 s3, s{sTile}, 144")
            a(f"s_lshl_b32 s4, s{sG0}, 1")
            a("s_add_u32 s3, s3, s4")
            a("s_add_u32 s3, s3, 32")
            a("s_lshl_b32 s3, s3, 10")
            a(f"s_add_u32 s{sStN}, s3, {WS_A2}")
            a(f"s_movk_i32 s{sStep}, 2048")
        elif ty == "QK":
            a(f"v_mov_b32 v{vSt}, v{vL16}")
            a(f"v_add_u32 v{vB2}, 65536, v{vL16}")
            a(f"s_cmp_lt_u32 s{sG0}, 16")
            a(f"s_cselect_b32 s3, {f2u(QSCALE):#x}, 1.0")
            a(f"v_mul_f32 v{vC1}, s3, v{vR}")
            a(f"s_lshl_b32 s3, s{sG0}, 17")
            a(f"s_lshl_b32 s4, s{sTile}, 10")
            a(f"s_add_u32 s{sStN}, s3, s4")
            a(f"s_mov_b32 s{sStep}, 131072")
        else:
            a(f"s_lshl_b32 s3, s{sW}, 7")
            a(f"s_add_u32 s3, s3, {150*1024}")
            a(f"v_and_b32 v{t8}, 31, v0")
            a(f"v_lshlrev_b32 v{t8}, 2, v{t8}")
            a(f"v_add_u32 v{t8}, s3, v{t8}")
            a(f"ds_write_b32 v{t8}, v{vR}")
            a(f"v_bfe_u32 v{t9}, v0, 5, 1")
            a(f"v_lshlrev_b32 v{t9}, 4, v{t9}")
            a(f"v_add_u32 v{t9}, s3, v{t9}")
            a("s_waitcnt lgkmcnt(0)")
            for q in range(4): a(f"ds_read_b128 {vr(RTOK+4*q,4)}, v{t9} offset:{32*q}")
            a(f"v_bfe_u32 v{t8}, v0, 4, 1")
            a(f"v_lshlrev_b32 v{t8}, 16, v{t8}")
            a(f"v_bfe_u32 v{t9}, v0, 5, 1")
            a(f"v_lshlrev_b32 v{t9}, 8, v{t9}")
            a(f"v_add_u32 v{t8}, v{t8}, v{t9}")
            a(f"v_and_b32 v{t9}, 15, v0")
            a(f"v_lshlrev_b32 v{t9}, 4, v{t9}")
            a(f"v_add_u32 v{vSt}, v{t8}, v{t9}")
            a(f"s_lshl_b32 s3, s{sG0}, 17")
            a(f"s_lshl_b32 s4, s{sTile}, 10")
            a(f"s_add_u32 s{sStN}, s3, s4")
            a(f"s_mov_b32 s{sStep}, 131072")
            a("s_waitcnt lgkmcnt(0)")
        a("s_barrier")
        ST(7)
        def rdW(s, v):
            b = WB + 4*(s % NWB)
            return [f"ds_read_b64_tr_b16 {vr(b,2)}, v{v} offset:{s*2048}", f"ds_read_b64_tr_b16 {vr(b+2,2)}, v{v} offset:{s*2048+1024}"]
        for s in range(PF): a.extend(rdW(s, vWa))
        a(f"{name}_{ty}_loop:")
        book0 = [f"s_add_u32 s{sJ}, s{sJ}, 1",
                 f"s_bitcmp1_b32 s{sG}, 0",
                 "s_cselect_b32 s3, 0x10040, 64",
                 "s_cselect_b32 s42, 1, 0",
                 f"v_xor_b32 v{vWn}, s3, v{vWa}",
                 f"s_cmp_lt_u32 s{sJ}, s{sN}",
                 "s_cselect_b32 s42, s42, 0"]
        if ty == "F":
            book0 = [f"s_lshl_b32 s4, s{sG}, 6", f"buffer_load_ushort v{BIAS}, v{vB2}, s[{SB1}:{SB1+3}], s4 offen"] + book0
        book1 = [f"s_mov_b32 s{sSt}, s{sStN}", f"s_add_u32 s{sStN}, s{sStN}, s{sStep}", f"s_add_u32 s{sG}, s{sG}, 1"]
        gaps = []
        for s in range(32):
            g = []
            issued = min(32, s + PF)
            if s % 2 == 0:
                g.append(f"s_waitcnt lgkmcnt({2*(issued - (s + 2))})")
            if s == 30: g.append("s_cmp_eq_u32 s42, 0")
            b = WB + 4*(s % NWB)
            last = (s == 31 and ty != "F")
            D = E if last else ACC
            C = "0" if s == 0 else vr(ACC,16)
            if ty == "V": g.append(f"v_mfma_f32_32x32x16_bf16 {vr(D,16)}, {vr(X+4*s,4)}, {vr(b,4)}, {C}")
            else:         g.append(f"v_mfma_f32_32x32x16_bf16 {vr(D,16)}, {vr(b,4)}, {vr(X+4*s,4)}, {C}")
            if s + PF < 32: g += rdW(s + PF, vWa)
            if s == 0: g += book0[:5]
            if s == 1: g += book0[5:]
            if s == 29: g += book1
            if s == 30:
                g += [f"s_cbranch_scc1 {name}_{ty}_nb", "s_barrier", f"{name}_{ty}_nb:"]
                for q in range(PF//2): g += rdW(q, vWn)
            if s == 31:
                if ty == "F":
                    g += ["s_waitcnt vmcnt(2)", f"v_mfma_f32_32x32x16_bf16 {vr(E,16)}, {vr(BIAS,4)}, {vr(XAUG,4)}, {vr(ACC,16)}"]
                for q in range(PF//2, PF): g += rdW(q, vWn)
                g += [f"v_mov_b32 v{vWa}, v{vWn}", f"s_cmp_lt_u32 s{sJ}, s{sN}"]
            gaps.append(g)
        assert PF <= 7
        epi = epilogue(ty)
        if exp.get("nostore"): epi = [x for x in epi if "buffer_store" not in x]
        if exp.get("noepi"): epi = []
        if exp.get("nord"): gaps = [[x for x in g if "ds_read" not in x] for g in gaps]
        a.extend(weave([], gaps, epi, 0, exp.get("wstart", 3), 29))
        if stamps and exp.get("gstamp", 0):
            a(f"s_add_u32 m0, s{sJ}, 7")
            a("s_memtime s[84:85]")
            a("s_waitcnt lgkmcnt(0)")
            a("s_nop 3")
            a("v_writelane_b32 v126, s84, m0")
            a(f"s_cmp_lt_u32 s{sJ}, s{sN}")
        a(f"s_cbranch_scc1 {name}_{ty}_loop")
        a("s_nop 9")
        a.extend(epi)
        a(f"s_branch {name}_fin")
    for ty in ("F", "QK", "V"): group_loop(ty)

    a(f"{name}_loader:")
    sU, sP, sK, sM = 47, 43, 64, 65
    vD = 2
    a(f"s_cmp_lt_u32 s{sCS}, 10")
    a("s_cselect_b32 s4, s56, s50")
    a("s_cselect_b32 s5, s57, s51")
    a(f"s_mov_b32 s{SWm}, s4")
    a(f"s_and_b32 s{SWm+1}, s5, 0xffff")
    a(f"s_lshl_b32 s{SWm+2}, s{sRS}, 9")
    a(f"s_mov_b32 s{SWm+3}, 0x00020000")
    a(f"s_sub_u32 s{sU}, s{sW}, 4")
    a(f"v_bfe_u32 v3, v0, 3, 3")
    a(f"v_mul_lo_u32 v{vD}, s{sRS}, v3")
    a(f"v_and_b32 v3, 7, v0")
    a(f"v_bfe_u32 v4, v0, 4, 1")
    a(f"v_lshlrev_b32 v4, 2, v4")
    a(f"v_xor_b32 v3, v3, v4")
    a(f"v_lshlrev_b32 v3, 4, v3")
    a(f"v_add_u32 v{vD}, v{vD}, v3")
    a(f"s_lshr_b32 s{sP}, s{sG0}, 1")
    a(f"s_lshl_b32 s{sP}, s{sP}, 7")
    a(f"s_lshl_b32 s66, s{sRS}, 4")
    a(f"s_lshl_b32 s67, s{sRS}, 3")
    a(f"s_mul_i32 s67, s67, s{sU}")
    a("s_lshr_b32 s68, s2, 3")
    a("s_and_b32 s68, s68, 3")
    if exp.get("lprio", 0): a(f"s_setprio {exp.get('lprio', 0)}")
    THR = exp.get("thr", 0)
    def dma_rows(i0, n, slot_s, thr=True):
        a(f"s_lshl_b32 s7, s{sU}, 10")
        a(f"s_add_u32 s7, s7, {slot_s}")
        a(f"s_add_u32 m0, s7, {i0*2048}")
        a(f"s_mul_i32 s42, s66, {i0}")
        a(f"s_add_u32 s42, s42, s67")
        a(f"s_add_u32 s42, s42, s{sP}")
        for k in range(n):
            a(f"buffer_load_dwordx4 v{vD}, s[{SWm}:{SWm+3}], s42 offen lds")
            if THR and thr and k >= THR: a(f"s_waitcnt vmcnt({THR})")
            if k + 1 < n:
                a("s_add_u32 m0, m0, 2048")
                a("s_add_u32 s42, s42, s66")
    ntouch = exp.get("touch", 0)
    if exp.get("touch0", 1):
        srd(a, SX, 48, 2048*1024)
        a(f"v_and_b32 v8, 63, v0")
        a(f"s_lshl_b32 s3, s{sU}, 6")
        a(f"v_add_u32 v9, s3, v8")
        a(f"v_lshlrev_b32 v9, 10, v9")
        a(f"s_lshl_b32 s3, s{sRB}, 17")
        a("s_lshr_b32 s4, s2, 5")
        a("s_lshl_b32 s4, s4, 7")
        a("s_add_u32 s3, s3, s4")
        a(f"buffer_load_dword v20, v9, s[{SX}:{SX+3}], s3 offen{TNT}")
    if exp.get("codepf", 0):
        a("s_getpc_b64 s[76:77]")
        a(f"{name}_pc:")
        a(f"s_sub_u32 s76, s76, {name}_pc-{name}")
        a("s_subb_u32 s77, s77, 0")
        a("s_lshr_b32 s3, s2, 3")
        a("s_lshl_b32 s3, s3, 9")
        a(f"v_and_b32 v9, 3, v0")
        a(f"v_lshlrev_b32 v9, 7, v9")
        a(f"v_add_u32 v9, s3, v9")
        a(f"v_min_u32 v9, {name}_end-{name}-4, v9")
        a(f"global_load_dword v22, v9, s[76:77]")
    if exp.get("touchw", 1):
        if exp.get("twdelay", 1): a("s_waitcnt vmcnt(0)")
        a(f"s_cmp_eq_u32 s{sU}, 0")
        a("s_cselect_b32 s72, s50, s56")
        a("s_cselect_b32 s73, s51, s57")
        a("s_cselect_b32 s3, 48, 56")
        a("s_and_b32 s73, s73, 0xffff")
        a("s_mul_i32 s74, s3, 32768")
        a("s_mov_b32 s75, 0x00020000")
        a("s_mul_i32 s4, s3, s2")
        a("s_lshl_b32 s4, s4, 7")
        a("s_sub_u32 s3, s3, 1")
        a(f"v_and_b32 v9, 63, v0")
        a(f"v_min_u32 v9, s3, v9")
        a(f"v_lshlrev_b32 v9, 7, v9")
        a(f"buffer_load_dword v24, v9, s[72:75], s4 offen")
    if exp.get("tlb", 0):
        srd(a, SWS, 62, WS_SIZE)
        a(f"v_and_b32 v9, 15, v0")
        a(f"v_lshlrev_b32 v9, 21, v9")
        a(f"buffer_load_dword v25, v9, s[{SWS}:{SWS+3}], 0 offen")
    a("s_cmp_lg_u32 s2, 0")
    a(f"s_cbranch_scc1 {name}_nz")
    a(f"s_load_dwordx2 s[78:79], s[0:1], {ARG_WS}") if False else None
    srd(a, SWS, 62, WS_SIZE)
    a(f"v_and_b32 v9, 63, v0")
    a(f"v_lshlrev_b32 v9, 7, v9")
    a(f"v_mov_b32 v10, 0")
    a(f"s_mov_b32 s3, {WS_CNT}")
    a(f"buffer_store_dword v10, v9, s[{SWS}:{SWS+3}], s3 offen sc1")
    a(f"{name}_nz:")
    ST(2)
    a("s_barrier          ; B0")
    dma_rows(0, 16, "0", thr=False)
    srd(a, SWO, 52, 512*1024)
    srd(a, SW2, 60, 1792*1024)
    srd(a, SWS, 62, WS_SIZE)
    ST(3)
    a("s_barrier          ; B1")
    ST(5)
    dma_rows(16, 16, "0")
    a(f"s_add_u32 s{sP}, s{sP}, 128")
    dma_rows(0, 16, "65536")
    ST(6)
    a("s_waitcnt vmcnt(16)")
    ST(4)
    a("s_barrier          ; B2")
    ST(7)
    dma_rows(16, 16, "65536")
    if ntouch:
        a(f"s_lshl_b32 s3, s68, 8")
        a(f"s_lshl_b32 s4, s{sU}, 7")
        a("s_add_u32 s3, s3, s4")
        a(f"v_and_b32 v8, 63, v0")
        a(f"v_add_u32 v8, s3, v8")
        a(f"s_add_u32 s4, s{sP}, 128")
        for i in range(2):
            a(f"v_and_b32 v9, 511, v8")
            a(f"v_mul_lo_u32 v9, s{sRS}, v9")
            a(f"v_lshrrev_b32 v10, 9, v8")
            a(f"v_lshlrev_b32 v10, 7, v10")
            a(f"v_add_u32 v9, v9, v10")
            a(f"buffer_load_dword v{12+i}, v9, s[{SWm}:{SWm+3}], s4 offen")
            a(f"v_add_u32 v8, 64, v8")
    a("s_lshr_b32 s70, s2, 4")
    a("s_and_b32 s69, s2, 15")
    a("s_mul_i32 s69, s69, 9")
    a(f"s_add_u32 s69, s69, s{sU}")
    a(f"s_sub_u32 s74, 5, s{sU}")
    a(f"v_bfe_u32 v3, v0, 2, 4")
    a(f"v_lshlrev_b32 v3, 10, v3")
    a(f"v_and_b32 v4, 3, v0")
    a(f"v_lshlrev_b32 v4, 4, v4")
    a(f"v_add_u32 v5, v3, v4")
    a(f"v_bfe_u32 v3, v0, 5, 1")
    a(f"v_lshlrev_b32 v3, 2, v3")
    a(f"v_bfe_u32 v4, v0, 2, 2")
    a(f"v_add_u32 v3, v3, v4")
    a(f"v_lshlrev_b32 v3, 6, v3")
    a(f"v_bfe_u32 v4, v0, 4, 1")
    a(f"v_lshlrev_b32 v4, 5, v4")
    a(f"v_add_u32 v3, v3, v4")
    a(f"v_and_b32 v4, 3, v0")
    a(f"v_lshlrev_b32 v4, 3, v4")
    a(f"v_add_u32 v3, v3, v4")
    a(f"s_lshl_b32 s3, s{sU}, 13")
    a(f"s_add_u32 s75, s3, {128*1024}")
    a(f"v_add_u32 v6, s75, v3")
    a(f"v_and_b32 v7, 63, v0")
    a(f"v_lshlrev_b32 v7, 4, v7")
    a("s_mov_b32 s80, s69")
    a("s_mov_b32 s81, s74")
    a("s_mov_b32 s82, s75")
    a(f"{name}_sj:")
    a("s_mov_b32 m0, s82")
    a("s_lshl_b32 s4, s70, 6")
    a("s_cmp_lt_u32 s80, 32")
    a(f"s_cbranch_scc0 {name}_sj2")
    a("s_lshl_b32 s3, s80, 14")
    a("s_add_u32 s3, s3, s4")
    a(f"buffer_load_dwordx4 v5, s[{SWO}:{SWO+3}], s3 offen lds")
    a(f"s_branch {name}_sj3")
    a(f"{name}_sj2:")
    a("s_sub_u32 s3, s80, 32")
    a("s_lshl_b32 s3, s3, 14")
    a("s_add_u32 s3, s3, s4")
    a(f"buffer_load_dwordx4 v5, s[{SW2}:{SW2+3}], s3 offen lds")
    a(f"{name}_sj3:")
    a("s_add_u32 s80, s80, 2")
    a("s_add_u32 s82, s82, 1024")
    a("s_sub_u32 s81, s81, 1")
    a("s_cmp_lg_u32 s81, 0")
    a(f"s_cbranch_scc1 {name}_sj")
    a(f"s_mov_b32 s{sK}, 1")
    a("s_waitcnt vmcnt(%d)" % (6 if ntouch else 4))
    a(f"s_branch {name}_lp1")
    a(f"{name}_lp:")
    a("s_waitcnt vmcnt(0)")
    a(f"{name}_lp1:")
    if stamps:
        a(f"s_add_u32 m0, s{sK}, 16")
        a("s_memtime s[84:85]")
        a("s_waitcnt lgkmcnt(0)")
        a("s_nop 3")
        a("v_writelane_b32 v126, s84, m0")
    a("s_barrier")
    if stamps:
        a(f"s_add_u32 m0, s{sK}, 24")
        a("s_memtime s[84:85]")
        a("s_waitcnt lgkmcnt(0)")
        a("s_nop 3")
        a("v_writelane_b32 v126, s84, m0")
    a(f"s_add_u32 s{sK}, s{sK}, 1")
    a(f"s_cmp_ge_u32 s{sK}, s{sNP}")
    a(f"s_cbranch_scc1 {name}_sjfin")
    a(f"s_add_u32 s{sP}, s{sP}, 128")
    a(f"s_and_b32 s{sM}, s{sK}, 1")
    a(f"s_lshl_b32 s{sM}, s{sM}, 16")
    if not exp.get("nodma"): dma_rows(0, 32, f"s{sM}")
    a(f"s_branch {name}_lp")
    a(f"{name}_sjfin:")
    if next_kernel and exp.get("codepf2", 0):
        code_touch(a, name + "_nx", next_kernel, next_kernel + "_end2", 12, 13, 76, name)
    a(f"{name}_sjfin1:")
    a("ds_read_b64_tr_b16 v[8:9], v6")
    a("ds_read_b64_tr_b16 v[10:11], v6 offset:512")
    a("s_mul_i32 s3, s70, 144")
    a("s_add_u32 s3, s3, s69")
    a("s_lshl_b32 s3, s3, 10")
    a(f"s_add_u32 s3, s3, {WS_WT}")
    a("v_add_u32 v6, 1024, v6")
    a("s_waitcnt lgkmcnt(0)")
    a(f"buffer_store_dwordx4 v[8:11], v7, s[{SWS}:{SWS+3}], s3 offen{SC}")
    a("s_add_u32 s69, s69, 2")
    a("s_sub_u32 s74, s74, 1")
    a("s_cmp_lg_u32 s74, 0")
    a("s_nop 0")
    a(f"s_cbranch_scc1 {name}_sjfin1")
    a(f"{name}_fin:")
    ST.dump(sW, None)
    a(f"{name}_end:")
    a("s_endpgm")
    kernel_desc(a, name, 256)
```

```python
from common import *
LDS_K, LDS_V, LDS_ONES = 0, 65536, 131072
K2_LDS = 141312
NGW = 4
def gen_k2(a, name="attn_kernel", stamps=False, exp={}):
    kernel_header(a, name)
    Q, KB, VB = [8, 12], [16, 20], [24, 32]
    P, S, O, C = [40, 48], [[56, 72], [88, 104]], [120, 136], 152
    vL16, vK, vV, vInc, vT, vT2 = 1, 2, 3, 4, 5, 6
    sW, sHead, sQt, sI, sG, sL = 16, 17, 18, 20, 21, 22
    SC = " sc1" if exp.get("sc1", 1) else ""
    a("s_cmp_ge_u32 s2, 256")
    a(f"s_cbranch_scc1 {name}_end")
    a(f"s_load_dwordx2 s[4:5], s[0:1], {ARG_WS}")
    a(f"s_load_dwordx2 s[6:7], s[0:1], {ARG_X}")
    a(f"s_load_dwordx2 s[32:33], s[0:1], {ARG_OUT}")
    ST = Stamper(a, stamps, 230, 0)
    ST.init()
    a(f"v_lshrrev_b32 v{vT}, 6, v0")
    a(f"v_and_b32 v{vL16}, 63, v0")
    a(f"v_readfirstlane_b32 s{sW}, v{vT}")
    a(f"v_lshlrev_b32 v{vL16}, 4, v{vL16}")
    a("s_and_b32 s17, s2, 7")
    a("s_lshr_b32 s18, s2, 3")
    a("s_and_b32 s19, s18, 3")
    a("s_lshl_b32 s26, s17, 2")
    a(f"s_add_u32 s{sHead}, s26, s19")
    a("s_lshr_b32 s27, s18, 2")
    a("s_mov_b32 s34, s27")
    a(f"s_lshl_b32 s23, s{sHead}, 16")
    a(f"s_cmp_ge_u32 s{sW}, 4")
    a(f"s_cbranch_scc1 {name}_G")
    XR = 208
    def resid():
        srd(a, 12, 6, 2048*1024)
        srd(a, 36, 32, 2048*1024)
        a(f"v_lshrrev_b32 v9, 3, v0")
        a(f"v_lshlrev_b32 v9, 10, v9")
        a(f"v_and_b32 v10, 7, v0")
        a(f"v_lshlrev_b32 v10, 4, v10")
        a(f"v_add_u32 v7, v9, v10")
        a(f"s_lshl_b32 s25, s{sHead}, 16")
        a(f"s_lshl_b32 s26, s34, 7")
        a("s_add_u32 s25, s25, s26")
        a(f"buffer_load_dwordx4 {vr(XR,4)}, v7, s[12:15], s25 offen")
    MF = "v_mfma_f32_32x32x16_bf16"
    a("s_lshl_b32 s18, s27, 3")
    a(f"s_lshl_b32 s19, s{sW}, 1")
    a(f"s_add_u32 s{sQt}, s18, s19")
    a(f"s_lshl_b32 s24, s{sQt}, 10")
    a("s_add_u32 s24, s24, s23")
    a(f"s_lshl_b32 s{sL}, s{sW}, 11")
    a(f"s_add_u32 s{sG}, s23, s{sL}")
    a(f"s_add_u32 s{sG}, s{sG}, {WS_K}")
    a("s_waitcnt lgkmcnt(0)")
    srd(a, 8, 4, WS_SIZE)
    a(f"s_mov_b32 m0, s{sL}")
    a(f"s_add_u32 s25, s{sG}, {WS_V-WS_K}")
    a(f"buffer_load_dwordx4 v{vL16}, s[8:11], s{sG} offen lds")
    a(f"buffer_load_dwordx4 v{vL16}, s[8:11], s{sG} offen offset:1024 lds")
    a(f"s_add_u32 m0, s{sL}, {LDS_V}")
    a(f"buffer_load_dwordx4 {vr(Q[0],4)}, v{vL16}, s[8:11], s24 offen")
    a(f"buffer_load_dwordx4 v{vL16}, s[8:11], s25 offen lds")
    a(f"buffer_load_dwordx4 v{vL16}, s[8:11], s25 offen offset:1024 lds")
    a(f"buffer_load_dwordx4 {vr(Q[1],4)}, v{vL16}, s[8:11], s24 offen offset:1024")
    a(f"v_lshlrev_b32 v{vT}, 4, v0")
    a(f"v_add_u32 v{vT}, {LDS_ONES}, v{vT}")
    a(f"v_and_b32 v{vT2}, 11, v0")
    a(f"v_cmp_eq_u32 vcc, 0, v{vT2}")
    a(f"v_mov_b32 v{vT2}, 0x3f803f80")
    if exp.get("allones"): a("s_mov_b64 vcc, -1")
    a("s_nop 0")
    a(f"v_cndmask_b32 v{P[0]}, 0, v{vT2}, vcc")
    for i in range(1, 4):
        a(f"v_mov_b32 v{P[0]+i}, v{P[0]}")
    for off in (0, 4096, 6144):
        a(f"ds_write_b128 v{vT}, {vr(P[0],4)} offset:{off}")
    a(f"v_mov_b32 v{vK}, v{vL16}")
    a(f"v_and_b32 v{vT}, 15, v0")
    a(f"v_lshlrev_b32 v{vT}, 4, v{vT}")
    a(f"v_and_b32 v{vT2}, 32, v0")
    a(f"v_lshlrev_b32 v{vT2}, 3, v{vT2}")
    a(f"v_add_u32 v{vT}, v{vT}, v{vT2}")
    a(f"v_add_u32 v{vV}, {LDS_V}, v{vT}")
    a(f"v_and_b32 v{vT}, 31, v0")
    a(f"v_subrev_u32 v{vT2}, 20, v{vT}")
    a(f"v_cmp_gt_u32 vcc, 8, v{vT2}")
    a(f"v_mov_b32 v{vT2}, {LDS_ONES}")
    a(f"v_mov_b32 v{vInc}, {LDS_ONES+64}")
    a(f"v_cndmask_b32 v{vT2}, v{vT2}, v{vInc}, vcc")
    a(f"v_and_b32 v{vInc}, 27, v0")
    a(f"v_cmp_ne_u32 vcc, 16, v{vInc}")
    a(f"v_add_u32 v{vInc}, 16, v{vT2}")
    a("s_nop 0")
    a(f"v_cndmask_b32 v{vT2}, v{vT2}, v{vInc}, vcc")
    a(f"v_cmp_gt_u32 vcc, 16, v{vT}")
    a(f"v_mov_b32 v{vInc}, 0")
    a(f"v_mov_b32 v{vT}, 8192")
    a(f"v_cndmask_b32 v{vV}, v{vT2}, v{vV}, vcc")
    a(f"v_cndmask_b32 v{vInc}, v{vInc}, v{vT}, vcc")
    for i in range(32):
        a(f"v_mov_b32 v{O[0]+i}, 0")
    for i in range(4):
        a(f"v_mov_b32 v{P[1]+4+i}, 0")
        a(f"v_mov_b32 v{VB[1]+4+i}, 0")
    a("s_waitcnt vmcnt(0) lgkmcnt(0)")
    a("s_barrier")
    a(f"ds_read_b128 {vr(KB[0],4)}, v{vK}")
    a(f"ds_read_b128 {vr(KB[1],4)}, v{vK} offset:1024")
    a(f"ds_read_b128 {vr(VB[0],4)}, v{vV}")
    a(f"ds_read_b128 {vr(VB[0]+4,4)}, v{vV} offset:512")
    a(f"s_mov_b32 s{sI}, 0")
    a("s_waitcnt lgkmcnt(3)")
    a(f"{MF} {vr(S[0][0],16)}, {vr(KB[0],4)}, {vr(Q[0],4)}, 0")
    a(f"{MF} {vr(S[1][0],16)}, {vr(KB[0],4)}, {vr(Q[1],4)}, 0")
    a("s_nop 15")
    ST(1)
    if exp.get("aprio"): a(f"s_setprio {exp['aprio']}")
    a(".p2align 6")
    a(f"{name}_loop:")
    for p in range(8):
        cur, nxt = p & 1, (p & 1) ^ 1
        E = lambda x, lo, hi: [f"v_exp_f32 v{S[x][cur]+i}, v{S[x][cur]+i}" for i in range(lo, hi)]
        Cv = lambda x, lo, hi: [f"v_cvt_pk_bf16_f32 v{P[x]+i}, v{S[x][cur]+2*i}, v{S[x][cur]+2*i+1}" for i in range(lo, hi)]
        QK = lambda x: [f"{MF} {vr(S[x][nxt],16)}, {vr(KB[nxt],4)}, {vr(Q[x],4)}, 0"]
        PV0 = lambda x: [f"{MF} {vr(O[x],16)}, {vr(VB[cur],4)}, {vr(P[x],4)}, {vr(O[x],16)}"]
        PV1 = lambda x: [f"{MF} {vr(O[x],16)}, {vr(VB[cur]+4,4)}, {vr(P[x]+4,4)}, {vr(O[x],16)}"]
        PV1d = [f"{MF} {vr(O[1],16)}, {vr(VB[nxt]+4,4)}, {vr(P[1]+4,4)}, {vr(O[1],16)}"]
        RK = [f"ds_read_b128 {vr(KB[cur],4)}, v{vK} offset:{(p+2)*1024}"]
        RV0 = [f"ds_read_b128 {vr(VB[nxt],4)}, v{vV} offset:{(p+1)*1024}"]
        RV1 = [f"ds_read_b128 {vr(VB[nxt]+4,4)}, v{vV} offset:{(p+1)*1024+512}"]
        if exp.get("noread"): RK = RV0 = RV1 = []
        a.extend(["s_waitcnt lgkmcnt(0)"] + QK(0))
        if p == 6:
            a(f"s_cmp_lt_u32 s{sI}, 3")
            a(f"s_cbranch_scc1 {name}_sync")
            a(f"{name}_syncret:")
        order = exp.get("order", 0)
        if order == 0:
            a.extend(RK + E(0,0,4) + PV1d + RV0 + RV1 + E(0,4,8) + Cv(0,0,4) + QK(1) + E(0,8,12) + PV0(0) + E(0,12,16) + Cv(0,4,8)
                     + E(1,0,4) + PV1(0) + E(1,4,8) + Cv(1,0,4) + E(1,8,12) + PV0(1) + E(1,12,16) + Cv(1,4,8))
        elif order == 1:
            a.extend(RK + E(0,0,4) + PV1d + RV1 + E(0,4,8) + Cv(0,0,4) + QK(1) + RV0 + E(0,8,12) + PV0(0) + E(0,12,16) + Cv(0,4,8)
                     + E(1,0,4) + PV1(0) + E(1,4,8) + Cv(1,0,4) + E(1,8,12) + PV0(1) + E(1,12,16) + Cv(1,4,8))
    if stamps and exp.get("itstamp"):
        a(f"s_add_u32 m0, s{sI}, 8")
        a("s_memtime s[84:85]")
        a("s_waitcnt lgkmcnt(0)")
        a("s_nop 3")
        a("v_writelane_b32 v230, s84, m0")
    a(f"v_add_u32 v{vK}, 8192, v{vK}")
    a(f"v_add_u32 v{vV}, v{vInc}, v{vV}")
    a(f"s_add_u32 s{sI}, s{sI}, 1")
    a(f"s_cmp_lt_u32 s{sI}, 8")
    a(f"s_cbranch_scc1 {name}_loop")
    a("s_waitcnt lgkmcnt(0)")
    a(f"{MF} {vr(O[1],16)}, {vr(VB[1]+4,4)}, {vr(P[1]+4,4)}, {vr(O[1],16)}")
    a("s_nop 15")
    ST(2)
    vSt = 7
    for x in range(2):
        Ox, Px, Qx = O[x], P[x], Q[x]
        a(f"v_mul_f32 v{vT}, 0, v{Ox}")
        for i in range(1, 8): a(f"v_fmac_f32 v{vT}, 0, v{Ox+i}")
        a(f"v_add_f32 v{vT}, v{vT}, v{Ox+8}")
        a(f"s_mov_b32 s26, 0x21800000")
        a(f"s_mov_b32 s27, 0x5d800000")
        a(f"v_cmp_le_f32 s[28:29], s26, v{vT}")
        a(f"v_cmp_ge_f32 vcc, s27, v{vT}")
        a("s_nop 1")
        a("s_and_b64 s[28:29], s[28:29], vcc")
        a("s_cmp_eq_u64 s[28:29], exec")
        a(f"s_cbranch_scc0 {name}_slow{x}")
        a(f"{name}_fin{x}:")
        a(f"v_rcp_f32 v{vT}, v{Ox+8}")
        a(f"s_add_u32 s24, s{sQt}, {x}")
        a(f"s_mul_i32 s24, s24, 144")
        a(f"s_add_u32 s24, s24, s{sHead}")
        a("s_lshl_b32 s24, s24, 10")
        a(f"s_add_u32 s24, s24, {WS_A2}")
        for i in range(8): a(f"v_mul_f32 v{Ox+i}, v{Ox+i}, v{vT}")
        for i in range(4): a(f"v_cvt_pk_bf16_f32 v{Px+i}, v{Ox+2*i}, v{Ox+2*i+1}")
        a(f"v_add_u32 v{vT2}, s24, v{vL16}")
        a(f"global_store_dwordx4 v{vT2}, {vr(Px,4)}, s[4:5] sc1")
    a("s_waitcnt vmcnt(0)")
    ST(3)
    a("s_barrier")
    a(f"s_cmp_lg_u32 s{sW}, 0")
    a(f"s_cbranch_scc1 {name}_nosig")
    a("s_lshl_b32 s24, s34, 2")
    a(f"s_lshr_b32 s26, s{sHead}, 3")
    a("s_add_u32 s24, s24, s26")
    a("s_lshl_b32 s24, s24, 7")
    a(f"s_add_u32 s24, s24, {WS_CNT}")
    a(f"v_mov_b32 v{vT}, s24")
    a(f"v_mov_b32 v{vT2}, 1")
    a("s_mov_b64 exec, 1")
    a(f"global_atomic_add v{vT}, v{vT2}, s[4:5] sc1")
    a("s_mov_b64 exec, -1")
    a(f"{name}_nosig:")
    resid()
    a(f"s_branch {name}_red")
    a(f"{name}_done:")
    ST.dump(sW, None)
    a(f"{name}_end:")
    a("s_endpgm")
    a(f"{name}_sync:")
    a(f"s_cmp_eq_u32 s{sI}, 1")
    a(f"s_cbranch_scc1 {name}_syncret")
    a("s_barrier")
    a(f"s_branch {name}_syncret")
    for x in range(2):
        Ox, Px, Qx, S0 = O[x], P[x], Q[x], S[x][0]
        a(f"{name}_slow{x}:")
        a(f"v_mov_b32 v{vK}, v{vL16}")
        a(f"v_mov_b32 v{vT}, 0xff800000")
        a(f"s_mov_b32 s{sI}, 0")
        a(f"{name}_slow{x}a:")
        a(f"ds_read_b128 {vr(KB[0],4)}, v{vK}")
        a(f"v_add_u32 v{vK}, 1024, v{vK}")
        a("s_waitcnt lgkmcnt(0)")
        a(f"{MF} {vr(S0,16)}, {vr(KB[0],4)}, {vr(Qx,4)}, 0")
        a("s_nop 15")
        for i in range(8): a(f"v_max3_f32 v{vT}, v{vT}, v{S0+2*i}, v{S0+2*i+1}")
        a(f"s_add_u32 s{sI}, s{sI}, 1")
        a(f"s_cmp_lt_u32 s{sI}, 64")
        a(f"s_cbranch_scc1 {name}_slow{x}a")
        a(f"v_mov_b32 v{vT2}, v{vT}")
        a("s_nop 1")
        a(f"v_permlane32_swap_b32 v{vT}, v{vT2}")
        a("s_nop 1")
        a(f"v_max_f32 v{vT}, v{vT}, v{vT2}")
        for i in range(16): a(f"v_sub_f32 v{C+i}, 0, v{vT}")
        for i in range(16): a(f"v_mov_b32 v{Ox+i}, 0")
        a(f"v_mov_b32 v{vK}, v{vL16}")
        a(f"v_lshlrev_b32 v{vT2}, 3, v{vInc}")
        a(f"v_sub_u32 v{vT2}, v{vV}, v{vT2}")
        a(f"v_lshrrev_b32 v{vSt}, 3, v{vInc}")
        a(f"s_mov_b32 s{sI}, 0")
        a(f"{name}_slow{x}b:")
        a(f"ds_read_b128 {vr(KB[0],4)}, v{vK}")
        a(f"ds_read_b128 {vr(VB[0],4)}, v{vT2}")
        a(f"ds_read_b128 {vr(VB[0]+4,4)}, v{vT2} offset:512")
        a(f"v_add_u32 v{vK}, 1024, v{vK}")
        a(f"v_add_u32 v{vT2}, v{vSt}, v{vT2}")
        a("s_waitcnt lgkmcnt(0)")
        a(f"{MF} {vr(S0,16)}, {vr(KB[0],4)}, {vr(Qx,4)}, {vr(C,16)}")
        a("s_nop 15")
        for i in range(16): a(f"v_exp_f32 v{S0+i}, v{S0+i}")
        a("s_nop 0")
        for i in range(8): a(f"v_cvt_pk_bf16_f32 v{Px+i}, v{S0+2*i}, v{S0+2*i+1}")
        a("s_nop 1")
        a(f"{MF} {vr(Ox,16)}, {vr(VB[0],4)}, {vr(Px,4)}, {vr(Ox,16)}")
        a(f"{MF} {vr(Ox,16)}, {vr(VB[0]+4,4)}, {vr(Px+4,4)}, {vr(Ox,16)}")
        a(f"s_add_u32 s{sI}, s{sI}, 1")
        a(f"s_cmp_lt_u32 s{sI}, 64")
        a(f"s_cbranch_scc1 {name}_slow{x}b")
        a("s_nop 15")
        a(f"s_branch {name}_fin{x}")
    a(f"{name}_G:")
    sU = 30
    ACC, RING, R = 16, 80, 4
    vT0, vT1, vW0, vW1, vA = 2, 3, 4, 5, 6
    a(f"s_sub_u32 s{sU}, s{sW}, 4")
    a(f"s_lshl_b32 s{sL}, s{sU}, 11")
    a(f"s_add_u32 s{sL}, s{sL}, 8192")
    a(f"s_add_u32 s{sG}, s23, s{sL}")
    a(f"s_add_u32 s{sG}, s{sG}, {WS_K}")
    a("s_waitcnt lgkmcnt(0)")
    srd(a, 8, 4, WS_SIZE)
    def stage():
        a(f"s_mov_b32 m0, s{sL}")
        a(f"s_add_u32 s25, s{sG}, {WS_V-WS_K}")
        a(f"buffer_load_dwordx4 v{vL16}, s[8:11], s{sG} offen lds")
        a(f"buffer_load_dwordx4 v{vL16}, s[8:11], s{sG} offen offset:1024 lds")
        a(f"s_add_u32 m0, s{sL}, {LDS_V}")
        a(f"s_add_u32 s{sL}, s{sL}, 8192")
        a(f"buffer_load_dwordx4 v{vL16}, s[8:11], s25 offen lds")
        a(f"buffer_load_dwordx4 v{vL16}, s[8:11], s25 offen offset:1024 lds")
        a(f"s_add_u32 s{sG}, s{sG}, 8192")
    stage()
    if exp.get("codepf", 0):
        code_touch(a, name + "_cp", name, name + "_end2", 8, 9, 40, name)
    if exp.get("tlb", 0):
        srd(a, 12, 6, 2048*1024)
        srd(a, 36, 32, 2048*1024)
        a(f"s_lshl_b32 s25, s{sHead}, 16")
        a(f"v_mov_b32 v10, 0")
        a(f"buffer_load_dword v11, v10, s[36:39], s25 offen")
        a(f"buffer_load_dword v12, v10, s[12:15], s25 offen")
    a("s_barrier          ; Ba")
    stage()
    a("s_waitcnt vmcnt(0)")
    a("s_barrier          ; Bb")
    a("s_mov_b32 s28, 5")
    a(f"{name}_Gst:")
    stage()
    a("s_sub_u32 s28, s28, 1")
    a("s_cmp_lg_u32 s28, 0")
    a(f"s_cbranch_scc1 {name}_Gst")
    a(f"s_mul_i32 s22, s{sHead}, {2*144*1024}")
    a(f"s_add_u32 s22, s22, {WS_A2}")
    a(f"s_mul_i32 s23, s27, {2*144*1024}")
    a(f"s_add_u32 s23, s23, {WS_WT}")
    a(f"s_mul_i32 s24, s{sU}, {28*1024}")
    a(f"s_add_u32 s24, s24, {32*1024}")
    a(f"v_add_u32 v{vT0}, s22, v{vL16}")
    a(f"v_add_u32 v{vW0}, s23, v{vL16}")
    a(f"v_add_u32 v{vT1}, {144*1024}, v{vT0}")
    a(f"v_add_u32 v{vW1}, {144*1024}, v{vW0}")
    if exp.get("gprio", 0): a(f"s_setprio {exp.get('gprio', 0)}")
    ST(1)
    def loads(slot):
        b = RING + slot*16
        for i, v in enumerate((vT0, vT1, vW0, vW1)):
            a(f"buffer_load_dwordx4 {vr(b+4*i,4)}, v{v}, s[8:11], s24 offen offset:{slot*1024}")
    gap = exp.get("ggap", 0)
    def mfmas(slot, first=False):
        b = RING + slot*16
        for aa in range(2):
            for bb in range(2):
                d = ACC + (aa*2+bb)*16
                a(f"v_mfma_f32_32x32x16_bf16 {vr(d,16)}, {vr(b+8+4*aa,4)}, {vr(b+4*bb,4)}, {'0' if first else vr(d,16)}")
                if gap == 1: a("s_nop 15")
                if gap == 2: a("s_sleep 1")
    for i in range(R): loads(i)
    a("s_add_u32 s24, s24, 4096")
    for i in range(R):
        a(f"s_waitcnt vmcnt({4*(R-1)})")
        mfmas(i, first=(i == 0))
        loads(i)
    a("s_add_u32 s24, s24, 4096")
    a("s_barrier          ; Bc")
    a("s_mov_b32 s28, 5")
    a(f"{name}_Gl:")
    for i in range(R):
        a(f"s_waitcnt vmcnt({4*(R-1)})")
        mfmas(i)
        loads(i)
    a("s_add_u32 s24, s24, 4096")
    a("s_sub_u32 s28, s28, 1")
    a("s_cmp_lg_u32 s28, 0")
    a(f"s_cbranch_scc1 {name}_Gl")
    for i in range(R):
        a(f"s_waitcnt vmcnt({4*(R-1-i)})")
        mfmas(i)
    ST(2)
    WO, OF = 80, 144
    a(f"s_lshl_b32 s24, s{sU}, 13")
    for i in range(8):
        for j, v in enumerate((vW0, vW1)):
            a(f"buffer_load_dwordx4 {vr(WO+8*i+4*j,4)}, v{v}, s[8:11], s24 offen offset:{(i%4)*1024}")
        if i == 3: a("s_add_u32 s24, s24, 4096")
    resid()
    a(f"s_lshl_b32 s24, s{sU}, 13")
    a(f"v_add_u32 v{vT0}, s24, v{vT0}")
    a(f"v_add_u32 v{vT1}, s24, v{vT1}")
    a("s_barrier          ; B1e")
    ST(3)
    a(f"s_lshr_b32 s24, s{sHead}, 2")
    a("s_lshl_b32 s24, s24, 2")
    a(f"s_add_u32 s24, s24, s{sU}")
    a("s_lshl_b32 s24, s24, 7")
    a(f"s_add_u32 s24, s24, {WS_CNT}")
    a(f"v_mov_b32 v8, s24")
    a("s_mov_b32 s28, 0x10000")
    a(f"{name}_Gpoll:")
    a("global_load_dword v9, v8, s[4:5] sc1")
    a("s_waitcnt vmcnt(0)")
    a(f"v_readfirstlane_b32 s29, v9   ; @chk s29=8")
    a("s_nop 1")
    a("s_cmp_ge_u32 s29, 8")
    a(f"s_cbranch_scc1 {name}_Gnp")
    a("s_sub_u32 s28, s28, 1")
    a("s_cmp_lg_u32 s28, 0")
    a(f"s_cbranch_scc1 {name}_Gpoll")
    a(f"{name}_Gnp:")
    ST(4)
    for i in range(8):
        for j, v in enumerate((vT0, vT1)):
            a(f"global_load_dwordx4 {vr(OF+8*i+4*j,4)}, v{v}, s[4:5] offset:{(i%4)*1024} sc1")
        if i == 3:
            a(f"v_add_u32 v{vT0}, 4096, v{vT0}")
            a(f"v_add_u32 v{vT1}, 4096, v{vT1}")
    a(f"v_and_b32 v8, 31, v0")
    a(f"v_mul_u32_u24 v8, 272, v8")
    a(f"v_and_b32 v9, 32, v0")
    a(f"v_lshrrev_b32 v9, 1, v9")
    a(f"v_add_u32 v8, v8, v9")
    a(f"s_mul_i32 s26, s{sU}, 17408")
    a(f"v_add_u32 v{vA}, s26, v8")
    def fm(i, t):
        aa, bb = t >> 1, t & 1
        d = ACC + t*16
        return f"v_mfma_f32_32x32x16_bf16 {vr(d,16)}, {vr(WO+8*i+4*aa,4)}, {vr(OF+8*i+4*bb,4)}, {vr(d,16)}"
    def wr(t):
        aa, bb = t >> 1, t & 1
        return [f"ds_write_b128 v{vA}, {vr(ACC+t*16+4*q,4)} offset:{bb*32*272 + aa*128 + q*32}" for q in range(4)]
    for i in range(4):
        a(f"s_waitcnt vmcnt({2*(7-i)})")
        for t in range(4): a(fm(i, t))
    for i in range(4, 8):
        a(f"s_waitcnt vmcnt({2*(7-i)})")
        a(fm(i, 0))
    for i in range(4, 8): a(fm(i, 1))
    for i in range(4, 8): a(fm(i, 2))
    a("s_nop 3")
    a.extend(wr(0))
    for i in range(4, 8): a(fm(i, 3))
    a.extend(wr(1))
    a("s_nop 3")
    a.extend(wr(2))
    a("s_nop 3")
    a.extend(wr(3))
    ST(5)
    a(f"{name}_red:")
    a(f"v_lshrrev_b32 v8, 3, v0")
    a(f"v_mul_u32_u24 v8, 272, v8")
    a(f"v_and_b32 v9, 7, v0")
    a(f"v_lshlrev_b32 v9, 5, v9")
    a(f"v_add_u32 v6, v8, v9")
    a("s_waitcnt lgkmcnt(0)")
    a("s_barrier          ; B3e")
    SS = 80
    for w in range(4):
        for i in range(2):
            a(f"ds_read_b128 {vr(SS+w*8+4*i,4)}, v6 offset:{w*17408 + i*16}")
    a("s_waitcnt vmcnt(0)")
    for i in range(4):
        a(f"v_lshlrev_b32 v{16+2*i}, 16, v{XR+i}")
        a(f"v_and_b32 v{17+2*i}, 0xffff0000, v{XR+i}")
    for w in range(4):
        a(f"s_waitcnt lgkmcnt({2*(3-w)})")
        for i in range(8): a(f"v_add_f32 v{16+i}, v{16+i}, v{SS+w*8+i}")
    for i in range(4): a(f"v_cvt_pk_bf16_f32 v{32+i}, v{16+2*i}, v{17+2*i}")
    a(f"buffer_store_dwordx4 {vr(32,4)}, v7, s[36:39], s25 offen")
    a(f"s_branch {name}_done")
    a(f"{name}_end2:")
    a("s_endpgm")
    kernel_desc(a, name, 232 if stamps else 216)

if __name__ == "__main__":
    a = Asm()
    a('.amdgcn_target "amdgcn-amd-amdhsa--gfx950"')
    gen_k2(a)
    txt = a.text()
    ins, labels = parse_kernel(txt, "attn_kernel")
    for (wave, safe) in ((3, 1), (3, 0), (4, 1), (5, 1), (7, 1)):
        tr = trace(ins, labels, {2: 5, "wave": wave, "$safe": safe, "$flag": max(wave-4, 0)})
        pr = check_trace(tr)
        print("wave", wave, "safe", safe, "trace len", len(tr), "barriers", sum(1 for I in tr if I.op == "s_barrier"), "problems", len(pr))
        for p in pr[:20]: print("  ", p)
    open("k2f.s", "w").write(txt)
```

```python
import sys, os
sys.path.insert(0, os.path.dirname(os.path.abspath(__file__)))
import build
os.makedirs("var", exist_ok=True)
for i, e in enumerate(sys.argv[1:]):
    txt, _ = build.build(exp=eval(e))
    bad = build.check(txt)
    assert bad == 0, e
    open(f"v{i}.s", "w").write(txt)
    print(f"var/v{i}.s", e)
```

```python
import sys, os
sys.path.insert(0, os.path.dirname(os.path.abspath(__file__)))
from common import *
import k1, k2, k3, k2b, k3b, k1c, k2c, k2f, k2g
NAME = "parallel_sum__softmax_full_mha__dense_activation_mish__prompt"
HEADER = """; Kernarg layout for this problem (80 bytes, ptrs only, base s[0:1]):
"""
def build(stamps=False, exp={}):
    a = Asm()
    K1, K2, K3 = "lnqkv_kernel", "attn_kernel", NAME + "_kernel"
    plan = exp.get("plan", "g")
    if plan == "f":
        K2 = NAME + "_kernel"
        launches = [(K1, 384, k1c.K1_LDS), (K2, 512, k2f.K2_LDS)]
    elif plan == "g":
        K2 = NAME + "_kernel"
        launches = [(K1, 384, k1c.K1_LDS), (K2, 768, k2g.K2_LDS)]
    else:
        m2, m3 = (k2b, k3b)
        launches = [(K1, 384, k1c.K1_LDS), (K2, 768, m2.K2_LDS), (K3, 256, m3.K3_LDS)]
    hdr = HEADER
    for (k, b, l) in launches:
        hdr += f"; @launch kernel={k} grid=(256,1,1) block=({b},1,1) lds={l}\n"
    a('.amdgcn_target "amdgcn-amd-amdhsa--gfx950"')
    k1c.gen_k1(a, K1, stamps=stamps, exp=exp.get("k1", {}), next_kernel=(K2 if plan in "fg" else None))
    if plan == "f":
        k2f.gen_k2(a, K2, stamps=stamps, exp=exp.get("k2", {}))
    elif plan == "g":
        k2g.gen_k2(a, K2, stamps=stamps, exp=exp.get("k2", {}))
    else:
        m2.gen_k2(a, K2, stamps=stamps, exp=exp.get("k2", {}))
        m3.gen_k3(a, K3, stamps=stamps, exp=exp.get("k3", {}))
    return hdr + a.text(), launches
def check(txt):
    bad = 0
    K1, K2, K3 = "lnqkv_kernel", "attn_kernel", NAME + "_kernel"
    ins, labels = parse_kernel(txt, K1)
    seen = set()
    for wg in range(256):
        rb, cs = k1c.wg_decode(wg)
        if cs in seen: continue
        seen.add(cs)
        nbs = set()
        for wave in (0, 4, 5):
            tr = trace(ins, labels, {2: wg, "wave": wave})
            pr = check_trace(tr); bad += len(pr)
            nbs.add(sum(1 for I in tr if I.op == "s_barrier"))
            for p in pr[:4]: print("  K1", wg, wave, p)
        if len(nbs) != 1: print("K1 barrier mismatch", wg, nbs); bad += 1
    fused = ("attn_kernel:" not in txt)
    ins, labels = parse_kernel(txt, K3 if fused else K2)
    g0 = 4 if (fused and "_spinret:" not in txt) else 8
    nb = {}
    for (wave, safe) in [(3, 1), (3, 0), (g0, 1), (g0+1, 1), (g0+3, 1)] + ([(6, 1), (6, 0)] if (fused and g0 == 8) else []):
        tr = trace(ins, labels, {2: 5, "wave": wave, "$safe": safe, "$flag": max(wave-g0, 0)})
        pr = check_trace(tr); bad += len(pr)
        nb[(wave, safe)] = sum(1 for I in tr if I.op == "s_barrier")
        for p in pr[:8]: print("  K2", p)
    want = {k: nb[(3, 1)] for k in nb}
    if nb != want: print("K2 barrier mismatch", nb); bad += 1
    if not fused:
        ins, labels = parse_kernel(txt, K3)
        for wave in (0, 3):
            pr = check_trace(trace(ins, labels, {2: 5, "wave": wave})); bad += len(pr)
            for p in pr[:8]: print("  K3", p)
    return bad
if __name__ == "__main__":
    txt, _ = build()
    bad = check(txt)
    print("hazard problems:", bad)
    assert bad == 0
    out = "cdna_kernels/" + NAME + ".s"
    open(out, "w").write(txt)
    print("wrote", out, len(txt), "bytes")
```

```python
from asmlib import *
MB = 1 << 20
WS_Q, WS_K, WS_V = 0, 2*MB, 4*MB
WS_A2 = 8*MB
WS_WT = 18*MB
WS_PART = 21*MB
WS_CNT = 26*MB
WS_SIZE = 0x10000000
ARG_X, ARG_WQKV, ARG_WO, ARG_BX, ARG_W1, ARG_B1, ARG_W2, ARG_OUT, ARG_DBG, ARG_WS = [8*i for i in range(10)]

def kernel_header(a, name):
    a(".text")
    a(f".globl {name}")
    a(".p2align 8")
    a(f".type {name},@function")
    a(f"{name}:")

def kernel_desc(a, name, nvgpr, nsgpr=96, nagpr=0):
    acc = (nvgpr + 3)//4*4
    a('.section .rodata,"a"')
    a(".p2align 6")
    a(f".amdhsa_kernel {name}")
    a(f"  .amdhsa_next_free_vgpr {acc + nagpr}")
    a(f"  .amdhsa_next_free_sgpr {nsgpr}")
    a(f"  .amdhsa_accum_offset {acc}")
    a("  .amdhsa_group_segment_fixed_size 0")
    a("  .amdhsa_kernarg_size 80")
    a("  .amdhsa_user_sgpr_count 2")
    a("  .amdhsa_user_sgpr_kernarg_segment_ptr 1")
    a("  .amdhsa_system_sgpr_workgroup_id_x 1")
    a("  .amdhsa_float_denorm_mode_32 3")
    a("  .amdhsa_ieee_mode 0")
    a(".end_amdhsa_kernel")

def srd(a, s, base_s, size):
    a(f"s_mov_b32 s{s}, s{base_s}")
    a(f"s_and_b32 s{s+1}, s{base_s+1}, 0xffff")
    a(f"s_mov_b32 s{s+2}, {size:#x}")
    a(f"s_mov_b32 s{s+3}, 0x00020000")

class Stamper:
    def __init__(self, a, on, vreg, slot, sreg=84):
        self.a, self.on, self.v, self.slot, self.s = a, on, vreg, slot, sreg
    def init(self):
        if not self.on: return
        a = self.a
        a(f"s_load_dwordx2 s[{self.s+2}:{self.s+3}], s[0:1], {ARG_DBG}")
        a(f"v_mov_b32 v{self.v}, 0")
        self(0)
    def __call__(self, idx):
        if not self.on: return
        a = self.a
        import os
        a(f"{'s_memrealtime' if os.environ.get('RT') else 's_memtime'} s[{self.s}:{self.s+1}]")
        a("s_waitcnt lgkmcnt(0)")
        a(f"v_writelane_b32 v{self.v}, s{self.s}, {idx}")
    def dump(self, sW, endlabel):
        if not self.on: return
        a = self.a
        a("s_waitcnt vmcnt(0)")
        self(63)
        a(f"s_lshl_b32 s{self.s}, s2, 4")
        a(f"s_add_u32 s{self.s}, s{self.s}, s{sW}")
        a(f"s_lshl_b32 s{self.s}, s{self.s}, 8")
        a(f"s_add_u32 s{self.s}, s{self.s}, {self.slot*0x100000}")
        a(f"v_mbcnt_lo_u32_b32 v8, -1, 0")
        a(f"v_mbcnt_hi_u32_b32 v8, -1, v8")
        a(f"v_lshlrev_b32 v8, 2, v8")
        a(f"v_add_u32 v8, s{self.s}, v8")
        a(f"global_store_dword v8, v{self.v}, s[{self.s+2}:{self.s+3}]")

def code_prefetch(a, name, vtmp, vdst, spair, nbytes_label_end):
    a(f"s_getpc_b64 s[{spair}:{spair+1}]")
    a(f"{name}_pc:")
    a(f"s_sub_u32 s{spair}, s{spair}, {name}_pc-{name}")
    a(f"s_subb_u32 s{spair+1}, s{spair+1}, 0")
    a(f"v_mbcnt_lo_u32_b32 v{vtmp}, -1, 0")
    a(f"v_mbcnt_hi_u32_b32 v{vtmp}, -1, v{vtmp}")
    a(f"v_lshlrev_b32 v{vtmp}, 7, v{vtmp}")
    return f"{nbytes_label_end}-{name}"
def code_prefetch_loads(a, name, vtmp, vt2, vdst, spair, endlabel, n):
    for i in range(n):
        a(f"v_add_u32 v{vt2}, {i*8192}, v{vtmp}")
        a(f"v_min_u32 v{vt2}, {endlabel}-{name}-4, v{vt2}")
        a(f"global_load_dword v{vdst+i}, v{vt2}, s[{spair}:{spair+1}]")

def code_touch(a, tag, first, last, vtmp, vdst, spair, here_kernel):
    a(f"s_getpc_b64 s[{spair}:{spair+1}]")
    a(f"{tag}_pc:")
    a(f"s_add_u32 s{spair}, s{spair}, {first}-{tag}_pc")
    a(f"s_addc_u32 s{spair+1}, s{spair+1}, 0" if first != here_kernel else f"s_addc_u32 s{spair+1}, s{spair+1}, -1")
    a(f"s_lshr_b32 s3, s2, 3")
    a(f"s_lshl_b32 s3, s3, 9")
    a(f"v_and_b32 v{vtmp}, 3, v0")
    a(f"v_lshlrev_b32 v{vtmp}, 7, v{vtmp}")
    a(f"v_add_u32 v{vtmp}, s3, v{vtmp}")
    a(f"v_min_u32 v{vtmp}, {last}-{first}-4, v{vtmp}")
    a(f"global_load_dword v{vdst}, v{vtmp}, s[{spair}:{spair+1}]")

class SStamper(Stamper):
    def __init__(self, a, on, slot, sreg=84):
        Stamper.__init__(self, a, on, 8, slot, sreg); self.map = {}
    def init(self):
        if not self.on: return
        self.a(f"s_load_dwordx2 s[{self.s+2}:{self.s+3}], s[0:1], {ARG_DBG}")
        for i in range(48, 72): self.a(f"s_mov_b32 s{i}, 0")
        self(0)
    def reg(self, idx):
        if idx not in self.map: self.map[idx] = 48 + len(self.map)
        return self.map[idx]
    def __call__(self, idx):
        if not self.on: return
        import os
        a = self.a
        a(f"{'s_memrealtime' if os.environ.get('RT') else 's_memtime'} s[{self.s}:{self.s+1}]")
        a("s_waitcnt lgkmcnt(0)")
        a(f"s_mov_b32 s{self.reg(idx)}, s{self.s}")
    def dump(self, sW, endlabel):
        if not self.on: return
        a = self.a
        a("s_waitcnt vmcnt(0)")
        self(63)
        a("v_mov_b32 v9, 0")
        for idx in range(64):
            if idx in self.map or idx in (1, 2, 3, 4, 5): a(f"v_writelane_b32 v9, s{self.reg(idx)}, {idx}")
        a(f"s_lshl_b32 s{self.s}, s2, 4")
        a(f"s_add_u32 s{self.s}, s{self.s}, s{sW}")
        a(f"s_lshl_b32 s{self.s}, s{self.s}, 8")
        a(f"s_add_u32 s{self.s}, s{self.s}, {self.slot*0x100000}")
        a(f"v_mbcnt_lo_u32_b32 v8, -1, 0")
        a(f"v_mbcnt_hi_u32_b32 v8, -1, v8")
        a(f"v_lshlrev_b32 v8, 2, v8")
        a(f"v_add_u32 v8, s{self.s}, v8")
        a(f"global_store_dword v8, v9, s[{self.s+2}:{self.s+3}]")
```

```python
from common import *
LDS_K, LDS_V, LDS_ONES, LDS_XCH, LDS_FLAG = 0, 65536, 131072, 141312, 141312 + 8*2304
K2_LDS = LDS_FLAG + 64
def gen_k2(a, name="attn_kernel", stamps=False, exp={}):
    kernel_header(a, name)
    Q, KB, VB = [8, 12], [16, 20], [24, 32]
    P, S, O, C = [40, 48], [[56, 72], [88, 104]], [120, 136], 152
    vL16, vK, vV, vInc, vT, vT2, vF = 1, 2, 3, 4, 5, 6, 7
    sW, sHead, sQt, sI, sG, sL, sKh = 16, 17, 18, 20, 21, 22, 31
    MF = "v_mfma_f32_32x32x16_bf16"
    a("s_cmp_ge_u32 s2, 256")
    a(f"s_cbranch_scc1 {name}_end")
    a(f"s_load_dwordx2 s[4:5], s[0:1], {ARG_WS}")
    a(f"s_load_dwordx2 s[6:7], s[0:1], {ARG_X}")
    a(f"s_load_dwordx2 s[32:33], s[0:1], {ARG_OUT}")
    ST = SStamper(a, stamps, 0)
    for _i in (0, 1, 2, 3, 4, 5, 63, 8, 9, 10, 11): ST.reg(_i)
    ST.init()
    a(f"v_lshrrev_b32 v{vT}, 6, v0")
    a(f"v_and_b32 v{vL16}, 63, v0")
    a(f"v_readfirstlane_b32 s{sW}, v{vT}")
    a(f"v_lshlrev_b32 v{vL16}, 4, v{vL16}")
    a("s_and_b32 s17, s2, 7")
    a("s_lshr_b32 s18, s2, 3")
    a("s_and_b32 s19, s18, 3")
    a("s_lshl_b32 s26, s17, 2")
    a(f"s_add_u32 s{sHead}, s26, s19")
    a("s_lshr_b32 s27, s18, 2")
    a("s_mov_b32 s34, s27")
    a(f"s_lshl_b32 s23, s{sHead}, 16")
    a(f"s_cmp_ge_u32 s{sW}, 8")
    a(f"s_cbranch_scc1 {name}_G")
    XR = 8
    def resid():
        srd(a, 12, 6, 2048*1024)
        srd(a, 36, 32, 2048*1024)
        a(f"v_lshrrev_b32 v5, 3, v0")
        a(f"v_lshlrev_b32 v5, 10, v5")
        a(f"v_and_b32 v6, 7, v0")
        a(f"v_lshlrev_b32 v6, 4, v6")
        a(f"v_add_u32 v7, v5, v6")
        a(f"s_lshl_b32 s25, s{sHead}, 16")
        a(f"s_lshl_b32 s26, s34, 7")
        a("s_add_u32 s25, s25, s26")
        a(f"buffer_load_dwordx4 {vr(XR,4)}, v7, s[12:15], s25 offen")
    a(f"s_lshr_b32 s{sKh}, s{sW}, 2")
    a(f"s_and_b32 s19, s{sW}, 3")
    a("s_lshl_b32 s18, s27, 3")
    a("s_lshl_b32 s19, s19, 1")
    a(f"s_add_u32 s{sQt}, s18, s19")
    a(f"s_lshl_b32 s24, s{sQt}, 10")
    a("s_add_u32 s24, s24, s23")
    a(f"s_lshl_b32 s35, s{sKh}, 15")
    a(f"s_lshl_b32 s{sL}, s19, 10")
    a(f"s_add_u32 s{sL}, s{sL}, s35")
    a(f"s_add_u32 s{sG}, s23, s{sL}")
    a(f"s_add_u32 s{sG}, s{sG}, {WS_K}")
    a("s_waitcnt lgkmcnt(0)")
    srd(a, 8, 4, WS_SIZE)
    a(f"s_mov_b32 m0, s{sL}")
    a(f"s_add_u32 s25, s{sG}, {WS_V-WS_K}")
    a(f"buffer_load_dwordx4 v{vL16}, s[8:11], s{sG} offen lds")
    a(f"buffer_load_dwordx4 v{vL16}, s[8:11], s{sG} offen offset:1024 lds")
    a(f"s_add_u32 m0, s{sL}, {LDS_V}")
    a(f"buffer_load_dwordx4 {vr(Q[0],4)}, v{vL16}, s[8:11], s24 offen")
    a(f"buffer_load_dwordx4 v{vL16}, s[8:11], s25 offen lds")
    a(f"buffer_load_dwordx4 v{vL16}, s[8:11], s25 offen offset:1024 lds")
    a(f"buffer_load_dwordx4 {vr(Q[1],4)}, v{vL16}, s[8:11], s24 offen offset:1024")
    a(f"v_lshlrev_b32 v{vT}, 4, v0")
    a(f"v_add_u32 v{vT}, {LDS_ONES}, v{vT}")
    a(f"v_and_b32 v{vT2}, 11, v0")
    a(f"v_cmp_eq_u32 vcc, 0, v{vT2}")
    a(f"v_mov_b32 v{vT2}, 0x3f803f80")
    a("s_nop 0")
    a(f"v_cndmask_b32 v{P[0]}, 0, v{vT2}, vcc")
    for i in range(1, 4):
        a(f"v_mov_b32 v{P[0]+i}, v{P[0]}")
    for off in (0, 2048):
        a(f"ds_write_b128 v{vT}, {vr(P[0],4)} offset:{off}")
    a(f"v_add_u32 v{vK}, s35, v{vL16}")
    a(f"v_and_b32 v{vT}, 15, v0")
    a(f"v_lshlrev_b32 v{vT}, 4, v{vT}")
    a(f"v_and_b32 v{vT2}, 32, v0")
    a(f"v_lshlrev_b32 v{vT2}, 3, v{vT2}")
    a(f"v_add_u32 v{vT}, v{vT}, v{vT2}")
    a(f"s_add_u32 s36, s35, {LDS_V}")
    a(f"v_add_u32 v{vV}, s36, v{vT}")
    a(f"v_and_b32 v{vT}, 31, v0")
    a(f"v_subrev_u32 v{vT2}, 20, v{vT}")
    a(f"v_cmp_gt_u32 vcc, 8, v{vT2}")
    a(f"v_mov_b32 v{vT2}, {LDS_ONES}")
    a(f"v_mov_b32 v{vInc}, {LDS_ONES+64}")
    a(f"v_cndmask_b32 v{vT2}, v{vT2}, v{vInc}, vcc")
    a(f"v_and_b32 v{vInc}, 27, v0")
    a(f"v_cmp_ne_u32 vcc, 16, v{vInc}")
    a(f"v_add_u32 v{vInc}, 16, v{vT2}")
    a("s_nop 0")
    a(f"v_cndmask_b32 v{vT2}, v{vT2}, v{vInc}, vcc")
    a(f"v_cmp_gt_u32 vcc, 16, v{vT}")
    a(f"v_mov_b32 v{vInc}, 0")
    a(f"v_mov_b32 v{vT}, 8192")
    a(f"v_cndmask_b32 v{vV}, v{vT2}, v{vV}, vcc")
    a(f"v_cndmask_b32 v{vInc}, v{vInc}, v{vT}, vcc")
    a(f"v_mov_b32 v{vF}, {LDS_FLAG+4}")
    for i in range(32):
        a(f"v_mov_b32 v{O[0]+i}, 0")
    for i in range(4):
        a(f"v_mov_b32 v{P[1]+4+i}, 0")
        a(f"v_mov_b32 v{VB[1]+4+i}, 0")
    a("s_waitcnt vmcnt(0) lgkmcnt(0)")
    a("s_barrier")
    a(f"ds_read_b128 {vr(KB[0],4)}, v{vK}")
    a(f"ds_read_b128 {vr(KB[1],4)}, v{vK} offset:1024")
    a(f"ds_read_b128 {vr(VB[0],4)}, v{vV}")
    a(f"ds_read_b128 {vr(VB[0]+4,4)}, v{vV} offset:512")
    a(f"s_mov_b32 s{sI}, 0")
    if exp.get("ladder", 1): a("s_setprio 3")
    a("s_waitcnt lgkmcnt(3)")
    a(f"{MF} {vr(S[0][0],16)}, {vr(KB[0],4)}, {vr(Q[0],4)}, 0")
    a(f"{MF} {vr(S[1][0],16)}, {vr(KB[0],4)}, {vr(Q[1],4)}, 0")
    a("s_nop 15")
    ST(1)
    a(".p2align 6")
    a(f"{name}_loop:")
    for p in range(8):
        cur, nxt = p & 1, (p & 1) ^ 1
        E = lambda x, lo, hi: [f"v_exp_f32 v{S[x][cur]+i}, v{S[x][cur]+i}" for i in range(lo, hi)]
        Cv = lambda x, lo, hi: [f"v_cvt_pk_bf16_f32 v{P[x]+i}, v{S[x][cur]+2*i}, v{S[x][cur]+2*i+1}" for i in range(lo, hi)]
        QK = lambda x: [f"{MF} {vr(S[x][nxt],16)}, {vr(KB[nxt],4)}, {vr(Q[x],4)}, 0"]
        PV0 = lambda x: [f"{MF} {vr(O[x],16)}, {vr(VB[cur],4)}, {vr(P[x],4)}, {vr(O[x],16)}"]
        PV1 = lambda x: [f"{MF} {vr(O[x],16)}, {vr(VB[cur]+4,4)}, {vr(P[x]+4,4)}, {vr(O[x],16)}"]
        PV1d = [f"{MF} {vr(O[1],16)}, {vr(VB[nxt]+4,4)}, {vr(P[1]+4,4)}, {vr(O[1],16)}"]
        RK = [f"ds_read_b128 {vr(KB[cur],4)}, v{vK} offset:{(p+2)*1024}"]
        RV0 = [f"ds_read_b128 {vr(VB[nxt],4)}, v{vV} offset:{(p+1)*1024}"]
        RV1 = [f"ds_read_b128 {vr(VB[nxt]+4,4)}, v{vV} offset:{(p+1)*1024+512}"]
        a.extend(["s_waitcnt lgkmcnt(0)"] + QK(0))
        if p == 6:
            a(f"v_readfirstlane_b32 s28, v{vT}   ; @chk s28=4")
            a("s_nop 0")
            a("s_cmp_lt_u32 s28, 4")
            a(f"s_cbranch_scc1 {name}_spin")
            a(f"{name}_spinret:")
        RF = [f"ds_read_b32 v{vT}, v{vF}"] if p == 5 else []
        a.extend(RK + E(0,0,4) + PV1d + RV0 + RV1 + RF + E(0,4,8) + Cv(0,0,4) + QK(1) + E(0,8,12) + PV0(0) + E(0,12,16) + Cv(0,4,8)
                 + E(1,0,4) + PV1(0) + E(1,4,8) + Cv(1,0,4) + E(1,8,12) + PV0(1) + E(1,12,16) + Cv(1,4,8))
    if stamps and exp.get("itstamp"):
        a("s_memtime s[84:85]")
        a("s_waitcnt lgkmcnt(0)")
        for _i in range(4):
            a(f"s_cmp_eq_u32 s{sI}, {_i}")
            a(f"s_cselect_b32 s{ST.reg(8+_i)}, s84, s{ST.reg(8+_i)}")
    a(f"v_add_u32 v{vK}, 8192, v{vK}")
    a(f"v_add_u32 v{vV}, v{vInc}, v{vV}")
    a(f"v_add_u32 v{vF}, 4, v{vF}")
    a(f"s_add_u32 s{sI}, s{sI}, 1")
    if exp.get("ladder", 1):
        for lv in (1, 2, 3):
            a(f"s_cmp_eq_u32 s{sI}, {lv}")
            a(f"s_cbranch_scc0 {name}_lv{lv}")
            a(f"s_setprio {3-lv}")
            a(f"{name}_lv{lv}:")
    a(f"s_cmp_lt_u32 s{sI}, 4")
    a(f"s_cbranch_scc1 {name}_loop")
    a("s_waitcnt lgkmcnt(0)")
    a(f"{MF} {vr(O[1],16)}, {vr(VB[1]+4,4)}, {vr(P[1]+4,4)}, {vr(O[1],16)}")
    a(f"s_mul_i32 s26, s{sW}, 2304")
    a(f"s_add_u32 s26, s26, {LDS_XCH}")
    a(f"s_xor_b32 s28, s{sW}, 4")
    a(f"s_mul_i32 s28, s28, 2304")
    a(f"s_add_u32 s28, s28, {LDS_XCH}")
    a(f"v_add_u32 v{vT}, s26, v{vL16}")
    a(f"v_lshrrev_b32 v{vT2}, 2, v{vL16}")
    a(f"v_add_u32 v{vF}, s26, v{vT2}")
    a(f"v_add_u32 v{vK}, s28, v{vL16}")
    a(f"v_add_u32 v{vT2}, s28, v{vT2}")
    a("s_nop 7")
    ST(2)
    a(f"s_cmp_eq_u32 s{sKh}, 0")
    a(f"s_cbranch_scc0 {name}_x1")
    vSt = 7
    for x in range(2):
        Ox, Oo, Px, Qx = O[x], O[1-x], P[x], Q[x]
        a(f"{name}_x{x}:")
        a(f"ds_write_b128 v{vT}, {vr(Oo,4)}")
        a(f"ds_write_b128 v{vT}, {vr(Oo+4,4)} offset:1024")
        a(f"ds_write_b32 v{vF}, v{Oo+8} offset:2048")
        a("s_waitcnt lgkmcnt(0)")
        a("s_barrier          ; Bx")
        a(f"ds_read_b128 {vr(Oo,4)}, v{vK}")
        a(f"ds_read_b128 {vr(Oo+4,4)}, v{vK} offset:1024")
        a(f"ds_read_b32 v{Oo+8}, v{vT2} offset:2048")
        a("s_waitcnt lgkmcnt(0)")
        for i in range(9): a(f"v_add_f32 v{Ox+i}, v{Ox+i}, v{Oo+i}")
        a(f"v_mul_f32 v{vT}, 0, v{Ox}")
        for i in range(1, 8): a(f"v_fmac_f32 v{vT}, 0, v{Ox+i}")
        a(f"v_add_f32 v{vT}, v{vT}, v{Ox+8}")
        a(f"s_mov_b32 s26, 0x21800000")
        a(f"s_mov_b32 s27, 0x5d800000")
        a(f"v_cmp_le_f32 s[28:29], s26, v{vT}")
        a(f"v_cmp_ge_f32 vcc, s27, v{vT}")
        a("s_nop 1")
        a("s_and_b64 s[28:29], s[28:29], vcc")
        a("s_cmp_eq_u64 s[28:29], exec")
        a(f"s_cbranch_scc0 {name}_slow{x}")
        a(f"{name}_fin{x}:")
        a(f"v_rcp_f32 v{vT}, v{Ox+8}")
        a(f"s_add_u32 s24, s{sQt}, {x}")
        a(f"s_mul_i32 s24, s24, 144")
        a(f"s_add_u32 s24, s24, s{sHead}")
        a("s_lshl_b32 s24, s24, 10")
        a(f"s_add_u32 s24, s24, {WS_A2}")
        for i in range(8): a(f"v_mul_f32 v{Ox+i}, v{Ox+i}, v{vT}")
        for i in range(4): a(f"v_cvt_pk_bf16_f32 v{Px+i}, v{Ox+2*i}, v{Ox+2*i+1}")
        a(f"v_add_u32 v{vT2}, s24, v{vL16}")
        a(f"global_store_dwordx4 v{vT2}, {vr(Px,4)}, s[4:5] sc1")
        if x == 0: a(f"s_branch {name}_pub")
    a(f"{name}_pub:")
    a(f"v_mov_b32 v{vT}, {LDS_FLAG+32}")
    a(f"v_mov_b32 v{vT2}, 1")
    a("s_waitcnt vmcnt(0)")
    a("s_mov_b64 exec, 1")
    a(f"ds_add_rtn_u32 v{vK}, v{vT}, v{vT2}")
    a("s_lshl_b32 s24, s34, 2")
    a(f"s_lshr_b32 s26, s{sHead}, 3")
    a("s_add_u32 s24, s24, s26")
    a("s_lshl_b32 s24, s24, 7")
    a(f"s_add_u32 s24, s24, {WS_CNT}")
    a(f"v_mov_b32 v{vT}, s24")
    a("s_waitcnt lgkmcnt(0)")
    a(f"v_readfirstlane_b32 s28, v{vK}   ; @chk s28=7")
    a("s_nop 0")
    a("s_cmp_lg_u32 s28, 7")
    a(f"s_cbranch_scc1 {name}_nosig0")
    a(f"global_atomic_add v{vT}, v{vT2}, s[4:5] sc1")
    a(f"{name}_nosig0:")
    a("s_mov_b64 exec, -1")
    ST(3)
    a("s_barrier")
    a(f"{name}_nosig:")
    resid()
    a(f"v_lshrrev_b32 v5, 3, v0")
    a(f"v_mul_u32_u24 v5, 272, v5")
    a(f"v_and_b32 v6, 7, v0")
    a(f"v_lshlrev_b32 v6, 5, v6")
    a(f"v_add_u32 v6, v5, v6")
    a("s_barrier          ; B3e")
    SS = 80
    for w in range(4):
        for i in range(2):
            a(f"ds_read_b128 {vr(SS+w*8+4*i,4)}, v6 offset:{w*17408 + i*16}")
    a("s_waitcnt vmcnt(0)")
    for i in range(4):
        a(f"v_lshlrev_b32 v{16+2*i}, 16, v{XR+i}")
        a(f"v_and_b32 v{17+2*i}, 0xffff0000, v{XR+i}")
    for w in range(4):
        a(f"s_waitcnt lgkmcnt({2*(3-w)})")
        for i in range(8): a(f"v_add_f32 v{16+i}, v{16+i}, v{SS+w*8+i}")
    for i in range(4): a(f"v_cvt_pk_bf16_f32 v{32+i}, v{16+2*i}, v{17+2*i}")
    a(f"buffer_store_dwordx4 {vr(32,4)}, v7, s[36:39], s25 offen")
    a(f"{name}_done:")
    ST.dump(sW, None)
    a(f"{name}_end:")
    a("s_endpgm")
    a(f"{name}_spin:")
    a(f"ds_read_b32 v{vT}, v{vF}")
    a("s_waitcnt lgkmcnt(0)")
    a(f"v_readfirstlane_b32 s28, v{vT}   ; @chk s28=4")
    a("s_nop 0")
    a("s_cmp_lt_u32 s28, 4")
    a(f"s_cbranch_scc1 {name}_spin")
    a(f"s_branch {name}_spinret")
    for x in range(2):
        Ox, Px, Qx, S0 = O[x], P[x], Q[x], S[x][0]
        a(f"{name}_slow{x}:")
        a(f"v_mov_b32 v{vK}, v{vL16}")
        a(f"v_mov_b32 v{vT}, 0xff800000")
        a(f"s_mov_b32 s{sI}, 0")
        a(f"{name}_slow{x}a:")
        a(f"ds_read_b128 {vr(KB[0],4)}, v{vK}")
        a(f"v_add_u32 v{vK}, 1024, v{vK}")
        a("s_waitcnt lgkmcnt(0)")
        a(f"{MF} {vr(S0,16)}, {vr(KB[0],4)}, {vr(Qx,4)}, 0")
        a("s_nop 15")
        for i in range(8): a(f"v_max3_f32 v{vT}, v{vT}, v{S0+2*i}, v{S0+2*i+1}")
        a(f"s_add_u32 s{sI}, s{sI}, 1")
        a(f"s_cmp_lt_u32 s{sI}, 64")
        a(f"s_cbranch_scc1 {name}_slow{x}a")
        a(f"v_mov_b32 v{vT2}, v{vT}")
        a("s_nop 1")
        a(f"v_permlane32_swap_b32 v{vT}, v{vT2}")
        a("s_nop 1")
        a(f"v_max_f32 v{vT}, v{vT}, v{vT2}")
        for i in range(16): a(f"v_sub_f32 v{C+i}, 0, v{vT}")
        for i in range(16): a(f"v_mov_b32 v{Ox+i}, 0")
        a(f"v_mov_b32 v{vK}, v{vL16}")
        a(f"s_lshl_b32 s28, s{sKh}, 2")
        a("s_add_u32 s28, s28, 4")
        a(f"v_mul_lo_u32 v{vT2}, s28, v{vInc}")
        a(f"v_sub_u32 v{vT2}, v{vV}, v{vT2}")
        a(f"v_lshrrev_b32 v{vSt}, 3, v{vInc}")
        a(f"s_mov_b32 s{sI}, 0")
        a(f"{name}_slow{x}b:")
        a(f"ds_read_b128 {vr(KB[0],4)}, v{vK}")
        a(f"ds_read_b128 {vr(VB[0],4)}, v{vT2}")
        a(f"ds_read_b128 {vr(VB[0]+4,4)}, v{vT2} offset:512")
        a(f"v_add_u32 v{vK}, 1024, v{vK}")
        a(f"v_add_u32 v{vT2}, v{vSt}, v{vT2}")
        a("s_waitcnt lgkmcnt(0)")
        a(f"{MF} {vr(S0,16)}, {vr(KB[0],4)}, {vr(Qx,4)}, {vr(C,16)}")
        a("s_nop 15")
        for i in range(16): a(f"v_exp_f32 v{S0+i}, v{S0+i}")
        a("s_nop 0")
        for i in range(8): a(f"v_cvt_pk_bf16_f32 v{Px+i}, v{S0+2*i}, v{S0+2*i+1}")
        a("s_nop 1")
        a(f"{MF} {vr(Ox,16)}, {vr(VB[0],4)}, {vr(Px,4)}, {vr(Ox,16)}")
        a(f"{MF} {vr(Ox,16)}, {vr(VB[0]+4,4)}, {vr(Px+4,4)}, {vr(Ox,16)}")
        a(f"s_add_u32 s{sI}, s{sI}, 1")
        a(f"s_cmp_lt_u32 s{sI}, 64")
        a(f"s_cbranch_scc1 {name}_slow{x}b")
        a("s_nop 15")
        a(f"s_branch {name}_fin{x}")
    a(f"{name}_G:")
    sU = 30
    ACC, RING, R = 8, 72, 4
    vT0, vT1, vW0, vW1, vA, vX = 2, 3, 4, 5, 6, 7
    a("s_setprio 3")
    a(f"s_sub_u32 s{sU}, s{sW}, 8")
    a(f"s_lshl_b32 s{sL}, s{sU}, 11")
    a(f"s_add_u32 s{sL}, s{sL}, 8192")
    a(f"s_add_u32 s{sG}, s23, s{sL}")
    a(f"s_add_u32 s{sG}, s{sG}, {WS_K}")
    a("s_waitcnt lgkmcnt(0)")
    srd(a, 8, 4, WS_SIZE)
    def stage():
        for hf in range(2):
            a(f"s_add_u32 m0, s{sL}, {hf*32768}" if hf else f"s_mov_b32 m0, s{sL}")
            a(f"s_add_u32 s24, s{sG}, {hf*32768}" if hf else f"s_mov_b32 s24, s{sG}")
            a(f"s_add_u32 s25, s24, {WS_V-WS_K}")
            a(f"buffer_load_dwordx4 v{vL16}, s[8:11], s24 offen lds")
            a(f"buffer_load_dwordx4 v{vL16}, s[8:11], s24 offen offset:1024 lds")
            a(f"s_add_u32 m0, s{sL}, {LDS_V + hf*32768}")
            a("s_nop 0")
            a(f"buffer_load_dwordx4 v{vL16}, s[8:11], s25 offen lds")
            a(f"buffer_load_dwordx4 v{vL16}, s[8:11], s25 offen offset:1024 lds")
        a(f"s_add_u32 s{sL}, s{sL}, 8192")
        a(f"s_add_u32 s{sG}, s{sG}, 8192")
    def signal(st):
        a("s_mov_b64 exec, 1")
        a(f"ds_add_u32 v{vA}, v{vX} offset:{4*st}")
        a("s_mov_b64 exec, -1")
    if exp.get("codepf", 0):
        code_touch(a, name + "_cp", name, name + "_end2", 8, 9, 40, name)
    a(f"v_mov_b32 v{vA}, {LDS_FLAG}")
    a(f"v_mov_b32 v10, 0")
    a(f"v_mov_b32 v11, 0")
    a(f"v_mov_b32 v12, 0")
    a(f"v_mov_b32 v13, 0")
    a(f"v_mov_b32 v14, 4")
    a(f"ds_write_b128 v{vA}, v[10:13]")
    a(f"ds_write_b32 v{vA}, v14 offset:16")
    a(f"ds_write_b32 v{vA}, v10 offset:32")
    a(f"v_mov_b32 v{vX}, 1")
    a("s_waitcnt lgkmcnt(0)")
    a("s_barrier          ; Ba")
    stage()
    stage()
    a("s_waitcnt vmcnt(8)")
    signal(1)
    stage()
    a("s_waitcnt vmcnt(8)")
    signal(2)
    a(f"s_mul_i32 s22, s{sHead}, {2*144*1024}")
    a(f"s_add_u32 s22, s22, {WS_A2}")
    a(f"s_mul_i32 s23, s27, {2*144*1024}")
    a(f"s_add_u32 s23, s23, {WS_WT}")
    a(f"s_mul_i32 s24, s{sU}, {28*1024}")
    a(f"s_add_u32 s24, s24, {32*1024}")
    a(f"v_add_u32 v{vT0}, s22, v{vL16}")
    a(f"v_add_u32 v{vW0}, s23, v{vL16}")
    a(f"v_add_u32 v{vT1}, {144*1024}, v{vT0}")
    a(f"v_add_u32 v{vW1}, {144*1024}, v{vW0}")
    a(f"s_setprio {exp.get('gprio', 0)}")
    ST(1)
    def loads(slot):
        b = RING + slot*16
        for i, v in enumerate((vT0, vT1, vW0, vW1)):
            a(f"buffer_load_dwordx4 {vr(b+4*i,4)}, v{v}, s[8:11], s24 offen offset:{slot*1024}")
    gap = exp.get("ggap", 0)
    def mfmas(slot, first=False):
        b = RING + slot*16
        for aa in range(2):
            for bb in range(2):
                d = ACC + (aa*2+bb)*16
                a(f"{MF} {vr(d,16)}, {vr(b+8+4*aa,4)}, {vr(b+4*bb,4)}, {'0' if first else vr(d,16)}")
                if gap == 1: a("s_nop 15")
    for i in range(R): loads(i)
    a("s_add_u32 s24, s24, 4096")
    a("s_waitcnt vmcnt(16)")
    signal(3)
    for i in range(R):
        a(f"s_waitcnt vmcnt({4*(R-1)})")
        mfmas(i, first=(i == 0))
        loads(i)
    a("s_add_u32 s24, s24, 4096")
    LATE = exp.get("late", 0)
    a(f"s_mov_b32 s28, {5 - LATE}")
    a(f"{name}_Gl:")
    for i in range(R):
        a(f"s_waitcnt vmcnt({4*(R-1)})")
        mfmas(i)
        loads(i)
    a("s_add_u32 s24, s24, 4096")
    a("s_sub_u32 s28, s28, 1")
    a("s_cmp_lg_u32 s28, 0")
    a(f"s_cbranch_scc1 {name}_Gl")
    WO, OF = 136, 72
    def wo(i):
        for j, v in enumerate((vW0, vW1)):
            a(f"buffer_load_dwordx4 {vr(WO+8*(i%4)+4*j,4)}, v{v}, s[8:11], s35 offen offset:{(i%4)*1024}")
    a(f"s_lshl_b32 s35, s{sU}, 13")
    if LATE:
        for i in range(4): wo(i)
        ST(2)
        a("s_barrier          ; Bx")
        for _ in range(LATE):
            for i in range(R):
                a(f"s_waitcnt vmcnt({4*(R-1)})")
                mfmas(i)
                loads(i)
            a("s_add_u32 s24, s24, 4096")
        for i in range(R):
            a(f"s_waitcnt vmcnt({4*(R-1-i)})")
            mfmas(i)
    else:
        for i in range(R):
            a(f"s_waitcnt vmcnt({4*(R-1-i)})")
            mfmas(i)
        ST(2)
        for i in range(4): wo(i)
        a("s_barrier          ; Bx")
    a(f"v_add_u32 v{vT0}, s35, v{vT0}")
    a(f"v_add_u32 v{vT1}, s35, v{vT1}")
    a("s_add_u32 s24, s35, 4096")
    a("s_barrier          ; B1e")
    ST(3)
    LW = 73728
    a(f"s_lshl_b32 s26, s{sU}, 13")
    a(f"s_add_u32 s26, s26, {LW}")
    for j, v in enumerate((vW0, vW1)):
        a(f"s_add_u32 m0, s26, {j*4096}")
        a("s_nop 0")
        for i in range(4):
            a(f"buffer_load_dwordx4 v{v}, s[8:11], s24 offen offset:{i*1024} lds")
    a(f"v_add_u32 v{vW0}, s26, v{vL16}")
    a(f"s_lshr_b32 s26, s{sHead}, 2")
    a("s_lshl_b32 s26, s26, 2")
    a(f"s_add_u32 s26, s26, s{sU}")
    a("s_lshl_b32 s26, s26, 7")
    a(f"s_add_u32 s26, s26, {WS_CNT}")
    a(f"v_mov_b32 v{vX}, s26")
    a("s_mov_b32 s28, 0x10000")
    a(f"{name}_Gpoll:")
    a(f"global_load_dword v{vA}, v{vX}, s[4:5] sc1")
    a("s_waitcnt vmcnt(0)")
    a(f"v_readfirstlane_b32 s29, v{vA}   ; @chk s29=8")
    a("s_nop 1")
    a("s_cmp_ge_u32 s29, 8")
    a(f"s_cbranch_scc1 {name}_Gnp")
    a("s_sub_u32 s28, s28, 1")
    a("s_cmp_lg_u32 s28, 0")
    a(f"s_cbranch_scc1 {name}_Gpoll")
    a(f"{name}_Gnp:")
    ST(4)
    for i in range(8):
        for j, v in enumerate((vT0, vT1)):
            a(f"global_load_dwordx4 {vr(OF+8*i+4*j,4)}, v{v}, s[4:5] offset:{(i%4)*1024} sc1")
        if i == 3:
            a(f"v_add_u32 v{vT0}, 4096, v{vT0}")
            a(f"v_add_u32 v{vT1}, 4096, v{vT1}")
    a(f"v_and_b32 v{vW0 if False else vX}, 31, v0")
    a(f"v_mul_u32_u24 v{vX}, 272, v{vX}")
    a(f"v_and_b32 v{vA}, 32, v0")
    a(f"v_lshrrev_b32 v{vA}, 1, v{vA}")
    a(f"v_add_u32 v{vX}, v{vX}, v{vA}")
    a(f"s_mul_i32 s26, s{sU}, 17408")
    a(f"v_add_u32 v{vA}, s26, v{vX}")
    def fm(i, t):
        aa, bb = t >> 1, t & 1
        d = ACC + t*16
        return f"{MF} {vr(d,16)}, {vr(WO+8*(i%4)+4*aa,4)}, {vr(OF+8*i+4*bb,4)}, {vr(d,16)}"
    def wr(t):
        aa, bb = t >> 1, t & 1
        return [f"ds_write_b128 v{vA}, {vr(ACC+t*16+4*q,4)} offset:{bb*32*272 + aa*128 + q*32}" for q in range(4)]
    for i in range(4):
        a(f"s_waitcnt vmcnt({2*(7-i)})")
        for t in range(4): a(fm(i, t))
        for j in range(2):
            a(f"ds_read_b128 {vr(WO+8*i+4*j,4)}, v{vW0} offset:{j*4096 + i*1024}")
    for i in range(4, 8):
        a(f"s_waitcnt vmcnt({2*(7-i)}) lgkmcnt({2*(7-i)})")
        a(fm(i, 0))
    for i in range(4, 8): a(fm(i, 1))
    for i in range(4, 8): a(fm(i, 2))
    a("s_nop 3")
    a.extend(wr(0))
    for i in range(4, 8): a(fm(i, 3))
    a.extend(wr(1))
    a("s_nop 3")
    a.extend(wr(2))
    a("s_nop 3")
    a.extend(wr(3))
    ST(5)
    a("s_waitcnt lgkmcnt(0)")
    a("s_barrier          ; B3e")
    a(f"s_branch {name}_done")
    a(f"{name}_end2:")
    a("s_endpgm")
    kernel_desc(a, name, 168)

if __name__ == "__main__":
    a = Asm()
    a('.amdgcn_target "amdgcn-amd-amdhsa--gfx950"')
    gen_k2(a)
    txt = a.text()
    ins, labels = parse_kernel(txt, "attn_kernel")
    for (wave, safe) in ((3, 1), (3, 0), (6, 1), (6, 0), (8, 1), (9, 1), (11, 1)):
        tr = trace(ins, labels, {2: 5, "wave": wave, "$safe": safe})
        pr = check_trace(tr)
        print("wave", wave, "safe", safe, "trace len", len(tr), "barriers", sum(1 for I in tr if I.op == "s_barrier"), "problems", len(pr))
        for p in pr[:20]: print("  ", p)
    open("k2g.s", "w").write(txt)
```
